```python
import torch

def _softmax(x, axis=-1):
    return torch.softmax(x, dim=axis)
def _gelu(x):
    return torch.nn.functional.gelu(x, approximate="tanh")
def _silu(x):
    return torch.nn.functional.silu(x)
def _sigmoid(x):
    return torch.sigmoid(x)
def _layernorm(x, axis=-1, eps=1e-5):
    m = x.mean(dim=axis, keepdim=True)
    v = x.var(dim=axis, keepdim=True, unbiased=False)
    return (x - m) / torch.sqrt(v + eps)
def _scatter_add(tgt, idx, src, axis=0):
    return tgt.clone().index_add_(axis, idx, src)
def _segment_sum(src, seg, n):
    out = torch.zeros((n,) + src.shape[1:], dtype=src.dtype)
    return out.index_add_(0, seg, src)
def _pad(x, pw):
    flat = tuple(v for pair in reversed(pw) for v in pair)
    return torch.nn.functional.pad(x, flat)

kernel_name = 'recurrent_scan__compressed_kv_cla__geglu_ffn__prompt'

def setup_inputs():

    _w = (lambda a: (lambda t: t.to(torch.bfloat16) if t.is_floating_point() else t)(torch.as_tensor(a)))
    def _A_setup():
        B, H, Sq, Sk, D, M = 1, 32, 2048, 2048, 128, 512
        Dc = 4 * D
        return {
            "x": _w((lambda *s: torch.randn(*s, dtype=torch.bfloat16) * 0.05)(B, Sq, M)),
            "c_kv": _w((lambda *s: torch.randn(*s, dtype=torch.bfloat16) * 0.2)(B, Sk, Dc)),
            "w_q": _w((lambda *s: torch.randn(*s, dtype=torch.bfloat16) * 3.2)(M, H, D) * (M ** -0.5)),
            "w_uk": _w((lambda *s: torch.randn(*s, dtype=torch.bfloat16) * 3.2)(Dc, H, D) * (Dc ** -0.5)),
            "w_uv": _w((lambda *s: torch.randn(*s, dtype=torch.bfloat16) * 0.2)(Dc, H, D) * (Dc ** -0.5)),
            "w_o": _w((lambda *s: torch.randn(*s, dtype=torch.bfloat16) * 0.2)(H, D, M) * ((H * D) ** -0.5)),
        }
    _A_in = _A_setup()

    def _B_setup():
        B, S, D, F = 1, 2048, 512, 1792
        return {
            "x": _w((lambda *s: torch.randn(*s, dtype=torch.bfloat16) * 0.05)(B, S, D)),
            "w_gate": _w((lambda *s: torch.randn(*s, dtype=torch.bfloat16) * 0.1)(D, F)),
            "w_up": _w((lambda *s: torch.randn(*s, dtype=torch.bfloat16) * 0.1)(D, F)),
            "w_down": _w((lambda *s: torch.randn(*s, dtype=torch.bfloat16) * 0.1)(F, D)),
        }
    _B_in = _B_setup()

    return {
        "A_x": _A_in["x"],
        "A_c_kv": _A_in["c_kv"],
        "A_w_q": _A_in["w_q"],
        "A_w_uk": _A_in["w_uk"],
        "A_w_uv": _A_in["w_uv"],
        "A_w_o": _A_in["w_o"],
        "B_x": _B_in["x"],
        "B_w_gate": _B_in["w_gate"],
        "B_w_up": _B_in["w_up"],
        "B_w_down": _B_in["w_down"],
    }

def reference(A_x, A_c_kv, A_w_q, A_w_uk, A_w_uv, A_w_o, B_x, B_w_gate, B_w_up, B_w_down):
    def _A_ref(x, c_kv, w_q, w_uk, w_uv, w_o):
        B, Sq, M = x.shape[0], x.shape[1], x.shape[2]
        Sk = c_kv.shape[1]
        H, D = w_q.shape[1], w_q.shape[2]
        q = torch.einsum("bqm,mhd->bhqd", x, w_q)
        k = torch.einsum("bkc,chd->bhkd", c_kv, w_uk)
        v = torch.einsum("bkc,chd->bhkd", c_kv, w_uv)
        scores = torch.einsum("bhqd,bhkd->bhqk", q, k) * (D ** -0.5)
        off = Sk - Sq
        qi = torch.arange(Sq)[:, None]
        kj = torch.arange(Sk)[None, :]
        cmask = kj <= (qi + off)
        scores = torch.where(cmask[None, None], scores, -1e9)
        p = _softmax(scores, axis=-1)
        ctx = torch.einsum("bhqk,bhkd->bhqd", p, v)
        return torch.einsum("bhqd,hdm->bqm", ctx, w_o)

    def _B_ref(x, w_gate, w_up, w_down):
        return (_gelu(x @ w_gate) * (x @ w_up)) @ w_down

    x = A_x
    xn = _layernorm(x, axis=-1)
    s = _A_ref(xn, A_c_kv, A_w_q, A_w_uk, A_w_uv, A_w_o)
    g = _silu(_B_ref(xn, B_w_gate, B_w_up, B_w_down))
    return x + s * g
```

```python
class Asm:
    def __init__(self):
        self.lines = []
        self.kernels = []
        self.launch = []
        self._lbl = 0
    def __call__(self, s):
        for l in s.strip("\n").split("\n"):
            self.lines.append("    " + l.strip())
    def label(self, name):
        self.lines.append(name + ":")
    def newlabel(self, base="L"):
        self._lbl += 1
        return "%s_%d" % (base, self._lbl)
    def comment(self, s):
        self.lines.append("    ; " + s)
    def begin_kernel(self, name):
        self.lines.append(".globl %s" % name)
        self.lines.append(".p2align 8")
        self.lines.append(".type %s,@function" % name)
        self.lines.append("%s:" % name)
    def end_kernel(self, name, vgpr, sgpr=102, accum=None, grid=None, block=None, lds=0):
        if accum is None:
            accum = (vgpr + 3) // 4 * 4
        self.kernels.append((name, vgpr, sgpr, accum))
    def add_launch(self, name, grid, block, lds):
        self.launch.append("; @launch kernel=%s grid=(%d,1,1) block=(%d,1,1) lds=%d" % (name, grid, block, lds))
    def text(self, header=""):
        out = []
        out.append(header.rstrip("\n"))
        out += self.launch
        out.append('.amdgcn_target "amdgcn-amd-amdhsa--gfx950"')
        out.append(".text")
        out += self.lines
        out.append('.section .rodata,"a"')
        for (name, vgpr, sgpr, accum) in self.kernels:
            out.append(".p2align 6")
            out.append(".amdhsa_kernel %s" % name)
            out.append("  .amdhsa_next_free_vgpr %d" % vgpr)
            out.append("  .amdhsa_next_free_sgpr %d" % sgpr)
            out.append("  .amdhsa_accum_offset %d" % accum)
            out.append("  .amdhsa_group_segment_fixed_size 0")
            out.append("  .amdhsa_kernarg_size 104")
            out.append("  .amdhsa_user_sgpr_count 2")
            out.append("  .amdhsa_user_sgpr_kernarg_segment_ptr 1")
            out.append("  .amdhsa_system_sgpr_workgroup_id_x 1")
            out.append(".end_amdhsa_kernel")
        return "\n".join(out) + "\n"

def v(i, n=1):
    return "v%d" % i if n == 1 else "v[%d:%d]" % (i, i + n - 1)
def a(i, n=1):
    return "a%d" % i if n == 1 else "a[%d:%d]" % (i, i + n - 1)
def s(i, n=1):
    return "s%d" % i if n == 1 else "s[%d:%d]" % (i, i + n - 1)
```

```python
import sys
from asmlib import *

HEADER = open("recurrent_scan__compressed_kv_cla__geglu_ffn__prompt.s.ref").read().split("; Override launch")[0]

WS_XN  = 0x0000000
WS_KF  = 0x1000000
WS_VF  = 0x2000000
WS_H   = 0x3000000
WS_CTX = 0x4000000
WS_SIZE = 0x10000000

KA_X, KA_CKV, KA_WQ, KA_WUK, KA_WUV, KA_WO, KA_BX, KA_WG, KA_WU, KA_WD, KA_OUT, KA_DBG, KA_WS = [8*i for i in range(13)]

def srd(A, d, lo, hi, nbytes, add=0):
    if add:
        A(f"s_add_u32 s{d}, s{lo}, {add:#x}")
        A(f"s_addc_u32 s{d+1}, s{hi}, 0")
    else:
        A(f"s_mov_b32 s{d}, s{lo}")
        A(f"s_mov_b32 s{d+1}, s{hi}")
    A(f"s_mov_b32 s{d+2}, {nbytes:#x}")
    A(f"s_mov_b32 s{d+3}, 0x00020000")

def mfma(A, d, a_, b_, c=None):
    cs = "0" if c is None else v(c, 16)
    A(f"v_mfma_f32_32x32x16_bf16 {v(d,16)}, {v(a_,4)}, {v(b_,4)}, {cs}")

def wave_allreduce_add(A, x, t, s0):
    A(f"""
    s_nop 1
    v_add_f32_dpp v{x}, v{x}, v{x} quad_perm:[1,0,3,2] row_mask:0xf bank_mask:0xf
    s_nop 1
    v_add_f32_dpp v{x}, v{x}, v{x} quad_perm:[2,3,0,1] row_mask:0xf bank_mask:0xf
    s_nop 1
    v_add_f32_dpp v{x}, v{x}, v{x} row_half_mirror row_mask:0xf bank_mask:0xf
    s_nop 1
    v_add_f32_dpp v{x}, v{x}, v{x} row_mirror row_mask:0xf bank_mask:0xf
    s_nop 1
    v_readlane_b32 s{s0}, v{x}, 0
    v_readlane_b32 s{s0+1}, v{x}, 16
    v_readlane_b32 s{s0+2}, v{x}, 32
    v_readlane_b32 s{s0+3}, v{x}, 48
    s_nop 1
    v_mov_b32 v{x}, s{s0}
    v_add_f32 v{x}, s{s0+1}, v{x}
    v_add_f32 v{x}, s{s0+2}, v{x}
    v_add_f32 v{x}, s{s0+3}, v{x}
    """)

def round_bf16(A, x):
    A(f"v_cvt_pk_bf16_f32 v{x}, v{x}, v{x}")
    A(f"v_lshlrev_b32 v{x}, 16, v{x}")

STAMPS = False
WS_STAMP = 0x8000000
def stamp(A, idx, real=False):
    if not STAMPS: return
    A(f"s_memrealtime s[{80+2*idx}:{81+2*idx}]" if real else f"s_memtime s[{80+2*idx}:{81+2*idx}]")
def stamp_flush(A, n, ws_lo, ws_hi, swave, slot=0):
    if not STAMPS: return
    A("s_waitcnt lgkmcnt(0)")
    srd(A, 76, ws_lo, ws_hi, 0x1000000, WS_STAMP + slot*0x100000)
    A(f"s_lshl_b32 s74, s2, 3")
    A(f"s_add_u32 s74, s74, s{swave}")
    A(f"s_lshl_b32 s74, s74, 6")
    A("v_mov_b32 v1, 0")
    for i in range(n):
        A(f"v_mov_b32 v2, s{80+2*i}")
        A(f"buffer_store_dword v2, v1, s[76:79], s74 offen offset:{4*i}")
        A("s_nop 1")

def gen_k1(A):
    name = "kv_kernel"
    A.begin_kernel(name)
    done = A.newlabel("k1_done")
    S_X, S_CKV, S_W, S_XN, S_OUT = 8, 12, 16, 20, 24
    sW, sH, sJ, sWM, sWN = 28, 29, 30, 31, 32
    sSX, sSW, sM0X, sM0W = 33, 34, 35, 36
    sT = 40
    A(f"""
    s_cmp_ge_u32 s2, 256
    s_cbranch_scc1 {done}
    s_load_dwordx4 s[44:47], s[0:1], {KA_X}      ; x, ckv
    s_load_dwordx4 s[48:51], s[0:1], {KA_WUK}
    s_load_dwordx2 s[52:53], s[0:1], {KA_WS}
    v_lshrrev_b32 v1, 6, v0
    v_and_b32 v0, 63, v0                          ; lane
    v_readfirstlane_b32 s{sW}, v1
    s_and_b32 s{sH}, s2, 7
    s_lshl_b32 s{sH}, s{sH}, 2
    s_lshr_b32 s{sT}, s2, 3
    s_and_b32 s{sT}, s{sT}, 3
    s_add_u32 s{sH}, s{sH}, s{sT}                 ; head
    s_lshr_b32 s{sJ}, s2, 5
    s_lshr_b32 s{sWM}, s{sW}, 2
    s_and_b32 s{sWN}, s{sW}, 3
    s_waitcnt lgkmcnt(0)
    """)
    stamp(A, 0); stamp(A, 5, True)
    srd(A, S_X, 44, 45, 2048*1024)
    srd(A, S_CKV, 46, 47, 2048*1024)
    A(f"""
    s_cmp_lt_u32 s{sW}, 4
    s_cselect_b32 s{S_W}, s48, s50
    s_cselect_b32 s{S_W+1}, s49, s51
    s_mov_b32 s{S_W+2}, {512*8192:#x}
    s_mov_b32 s{S_W+3}, 0x00020000
    """)
    srd(A, S_XN, 52, 53, 2048*1024, WS_XN)
    A(f"""
    s_mov_b32 s{sT}, {WS_KF:#x}
    s_cmp_lt_u32 s{sWN}, 2
    s_cselect_b32 s{sT}, s{sT}, {WS_VF:#x}
    s_add_u32 s{S_OUT}, s52, s{sT}
    s_addc_u32 s{S_OUT+1}, s53, 0
    s_mov_b32 s{S_OUT+2}, {16*1024*1024:#x}
    s_mov_b32 s{S_OUT+3}, 0x00020000
    """)
    vLN = 200
    A(f"""
    s_lshl_b32 s{sT}, s2, 3
    s_add_u32 s{sT}, s{sT}, s{sW}                 ; row
    s_lshl_b32 s{sT+1}, s{sT}, 10                 ; row*1024
    v_lshlrev_b32 v1, 4, v0                       ; lane*16
    buffer_load_dwordx4 v[{vLN}:{vLN+3}], v1, s[{S_X}:{S_X+3}], s{sT+1} offen
    """)
    vDX, vDX2, vDW, vDW2 = 2, 3, 4, 5
    A(f"""
    v_lshrrev_b32 v6, 2, v0                       ; l>>2
    v_lshlrev_b32 v6, 10, v6                      ; *1024
    v_lshrrev_b32 v7, 4, v0                       ; l>>4
    v_and_b32 v8, 3, v0
    v_xor_b32 v8, v8, v7                          ; (l&3)^((l>>4)&3)
    v_lshlrev_b32 v8, 4, v8
    v_add_u32 v{vDX}, v6, v8
    v_add_u32 v{vDX2}, {16*1024-1024}, v{vDX}
    v_lshlrev_b32 v6, 13, v7                      ; (l>>4)*8192
    v_and_b32 v8, 15, v0
    v_lshlrev_b32 v9, 2, v7
    v_xor_b32 v8, v8, v9                          ; (l&15)^((l>>4)<<2)
    v_lshlrev_b32 v8, 4, v8
    v_add_u32 v{vDW}, v6, v8
    v_add_u32 v{vDW2}, {32768-1024}, v{vDW}
    """)
    A(f"""
    s_lshl_b32 s{sSX}, s{sJ}, 18                  ; j*256*1024
    s_lshl_b32 s{sT+2}, s{sW}, 15                 ; w*32*1024
    s_add_u32 s{sSX}, s{sSX}, s{sT+2}
    s_lshl_b32 s{sSW}, s{sWN}, 16                 ; (w&3)*8*8192
    s_lshl_b32 s{sT+2}, s{sH}, 8
    s_add_u32 s{sSW}, s{sSW}, s{sT+2}
    s_lshl_b32 s{sM0X}, s{sW}, 11                 ; w*2048
    s_add_u32 s{sM0W}, s{sM0X}, 0x10000
    """)
    def issue(st):
        buf = st & 3
        A(f"""
        s_add_u32 m0, s{sM0X}, {buf*16384}
        s_add_u32 s{sT+2}, s{sSX}, {st*64}
        buffer_load_dwordx4 v{vDX}, s[{S_CKV}:{S_CKV+3}], s{sT+2} offen lds
        buffer_load_dwordx4 v{vDX2}, s[{S_CKV}:{S_CKV+3}], s{sT+2} offen offset:1024 lds
        s_add_u32 m0, s{sM0W}, {buf*16384}
        s_add_u32 s{sT+3}, s{sSW}, {st*32*8192}
        buffer_load_dwordx4 v{vDW}, s[{S_W}:{S_W+3}], s{sT+3} offen lds
        buffer_load_dwordx4 v{vDW2}, s[{S_W}:{S_W+3}], s{sT+3} offen offset:1024 lds
        """)
    issue(0); issue(1); issue(2)
    vRX = [10, 11]
    vRW = [12, 13]
    A(f"""
    v_and_b32 v6, 31, v0                          ; row
    v_lshrrev_b32 v7, 5, v0                       ; half
    v_lshrrev_b32 v8, 2, v6
    v_and_b32 v8, 3, v8                           ; (row>>2)&3
    v_xor_b32 v8, v8, v7                          ; half ^ f
    v_lshlrev_b32 v8, 4, v8
    v_lshlrev_b32 v6, 6, v6                       ; row*64
    v_add_u32 v6, v6, v8
    s_lshl_b32 s{sT+2}, s{sWM}, 13                ; wm*4*2048
    v_add_u32 v{vRX[0]}, s{sT+2}, v6
    v_xor_b32 v{vRX[1]}, 32, v{vRX[0]}            ; chunk ^ 2
    v_lshrrev_b32 v6, 5, v0                       ; g>>1
    v_lshlrev_b32 v6, 11, v6                      ; *8*256
    v_bfe_u32 v7, v0, 2, 2                        ; r
    v_lshlrev_b32 v8, 8, v7                       ; r*256
    v_add_u32 v6, v6, v8
    v_lshlrev_b32 v8, 6, v7                       ; r<<6
    v_add_u32 v6, v6, v8
    v_bfe_u32 v8, v0, 4, 1                        ; g&1
    v_lshlrev_b32 v8, 5, v8
    v_add_u32 v6, v6, v8
    v_and_b32 v8, 3, v0
    v_lshlrev_b32 v8, 3, v8
    v_add_u32 v6, v6, v8
    s_lshr_b32 s{sT+2}, s{sWN}, 1
    s_lshl_b32 s{sT+2}, s{sT+2}, 13
    s_add_u32 s{sT+2}, s{sT+2}, 0x10000
    v_add_u32 v6, s{sT+2}, v6
    s_and_b32 s{sT+2}, s{sWN}, 1
    s_lshl_b32 s{sT+2}, s{sT+2}, 7                ; (2*(wn&1))<<6
    v_xor_b32 v{vRW[0]}, s{sT+2}, v6
    v_xor_b32 v{vRW[1]}, 64, v{vRW[0]}
    """)
    f = vLN + 4
    t = vLN + 12
    A("s_waitcnt vmcnt(12)")
    for i in range(4):
        A(f"v_lshlrev_b32 v{f+2*i}, 16, v{vLN+i}")
        A(f"v_and_b32 v{f+2*i+1}, 0xffff0000, v{vLN+i}")
    A(f"v_add_f32 v{t}, v{f}, v{f+1}")
    for i in range(2, 8):
        A(f"v_add_f32 v{t}, v{t}, v{f+i}")
    wave_allreduce_add(A, t, None, sT+4)
    A(f"v_mul_f32 v{t}, {1.0/512!r}, v{t}")
    A(f"v_sub_f32 v{t+1}, v{f}, v{t}")
    A(f"v_mul_f32 v{t+2}, v{t+1}, v{t+1}")
    for i in range(1, 8):
        A(f"v_sub_f32 v{t+1}, v{f+i}, v{t}")
        A(f"v_fmac_f32 v{t+2}, v{t+1}, v{t+1}")
    wave_allreduce_add(A, t+2, None, sT+4)
    A(f"v_mul_f32 v{t+2}, {1.0/512!r}, v{t+2}")
    round_bf16(A, t)
    round_bf16(A, t+2)
    A(f"v_add_f32 v{t+2}, 0x3727c5ac, v{t+2}")
    round_bf16(A, t+2)
    A(f"v_sqrt_f32 v{t+2}, v{t+2}")
    A("s_nop 0")
    round_bf16(A, t+2)
    A(f"v_rcp_f32 v{t+3}, v{t+2}")
    A("s_nop 0")
    for i in range(8):
        A(f"v_sub_f32 v{f+i}, v{f+i}, v{t}")
        round_bf16(A, f+i)
        A(f"v_mul_f32 v{t+4}, v{f+i}, v{t+3}")
        A(f"v_fma_f32 v{t+5}, -v{t+4}, v{t+2}, v{f+i}")
        A(f"v_fma_f32 v{f+i}, v{t+5}, v{t+3}, v{t+4}")
    for i in range(4):
        A(f"v_cvt_pk_bf16_f32 v{vLN+i}, v{f+2*i}, v{f+2*i+1}")
    A(f"""
    v_lshrrev_b32 v6, 1, v0
    v_lshlrev_b32 v6, 10, v6
    v_and_b32 v7, 1, v0
    v_lshlrev_b32 v7, 9, v7
    v_add_u32 v6, v6, v7
    s_lshr_b32 s{sT+2}, s{sT}, 5
    s_lshl_b32 s{sT+2}, s{sT+2}, 15
    s_and_b32 s{sT+3}, s{sT}, 31
    s_lshl_b32 s{sT+3}, s{sT+3}, 4
    s_add_u32 s{sT+2}, s{sT+2}, s{sT+3}
    buffer_store_dwordx4 v[{vLN}:{vLN+3}], v6, s[{S_XN}:{S_XN+3}], s{sT+2} offen
    """)
    ACC = 64
    FR = [16, 40]
    def reads(ks):
        st, kp = ks >> 1, ks & 1
        buf = st & 3
        fr = FR[ks & 1]
        L = []
        for nb in range(2):
            for tt in range(2):
                L.append(f"ds_read_b64_tr_b16 {v(fr+16+nb*4+tt*2,2)}, v{vRW[nb]} offset:{buf*16384 + kp*4096 + tt*1024}")
        for kb in range(4):
            L.append(f"ds_read_b128 {v(fr+kb*4,4)}, v{vRX[kp]} offset:{buf*16384 + kb*2048}")
        return L
    lblV = A.newlabel("k1_v"); lblE = A.newlabel("k1_epi")
    stamp(A, 1)
    A("s_waitcnt vmcnt(5)")
    A("s_barrier")
    stamp(A, 2)
    A(f"s_cmp_ge_u32 s{sWN}, 2")
    A(f"s_cbranch_scc1 {lblV}")
    for ver in range(2):
        if ver == 1:
            A.label(lblV)
        for r in reads(0): A(r)
        for st in range(16):
            if st > 0:
                n_out = 4 if st < 14 else (0 if st == 14 else None)
                if n_out is not None:
                    A(f"s_waitcnt vmcnt({n_out})")
                    A("s_barrier")
            if st + 3 < 16:
                issue(st + 3)
            for kp in range(2):
                ks = 2*st + kp
                fr = FR[ks & 1]
                nxt = reads(ks + 1) if ks + 1 < 32 else []
                idx = 0
                for kb in range(4):
                    for nb in range(2):
                        if nb == 0:
                            need_done = 4 + kb + 1
                            outstanding_after = (8 - need_done) + idx
                            A(f"s_waitcnt lgkmcnt({min(outstanding_after,15)})")
                        d = ACC + (kb*2+nb)*16
                        xa, wa = fr + kb*4, fr + 16 + nb*4
                        c = None if ks == 0 else d
                        if ver == 0: mfma(A, d, wa, xa, c)
                        else:        mfma(A, d, xa, wa, c)
                        if idx < len(nxt):
                            A(nxt[idx]); idx += 1
        if ver == 0:
            A(f"s_branch {lblE}")
    A.label(lblE)
    stamp(A, 3)
    A(f"""
    s_nop 7
    s_nop 7
    v_lshlrev_b32 v1, 4, v0
    s_lshl_b32 s{sT+2}, s{sH}, 19                 ; h*512KB
    s_lshl_b32 s{sT+3}, s{sJ}, 16                 ; j*8 keyblks*8192
    s_add_u32 s{sT+2}, s{sT+2}, s{sT+3}
    s_lshl_b32 s{sT+3}, s{sWM}, 15                ; wm*4*8192
    s_add_u32 s{sT+2}, s{sT+2}, s{sT+3}
    s_and_b32 s{sT+3}, s{sWN}, 1
    s_lshl_b32 s{sT+3}, s{sT+3}, 12
    s_add_u32 s{sT+2}, s{sT+2}, s{sT+3}
    """)
    for kb in range(4):
        for nb in range(2):
            d = ACC + (kb*2+nb)*16
            p = 16 + ((kb*2+nb) & 3) * 8
            for i in range(8):
                A(f"v_cvt_pk_bf16_f32 v{p+i}, v{d+2*i}, v{d+2*i+1}")
            A(f"buffer_store_dwordx4 {v(p,4)}, v1, s[{S_OUT}:{S_OUT+3}], s{sT+2} offen offset:{nb*2048}")
            A(f"buffer_store_dwordx4 {v(p+4,4)}, v1, s[{S_OUT}:{S_OUT+3}], s{sT+2} offen offset:{nb*2048+1024}")
        if kb < 3:
            A(f"s_add_u32 s{sT+2}, s{sT+2}, 8192")
    if STAMPS:
        A("s_waitcnt vmcnt(0)")
        stamp(A, 4); stamp(A, 6, True)
        stamp_flush(A, 7, 52, 53, sW)
    A.label(done)
    A("s_endpgm")
    A.end_kernel(name, 224, 100)
    A.add_launch(name, 256, 512, 131072)

if __name__ == "__main__":
    A = Asm()
    if "stamps" in sys.argv: STAMPS = True
    gen_k1(A)
    out = sys.argv[1] if len(sys.argv) > 1 else "k.s"
    open(out, "w").write(A.text(HEADER))
```

```python
from asmlib import *
import gen
from gen import *
import math, struct

def f32hex(x):
    return "0x%08x" % struct.unpack("<I", struct.pack("<f", x))[0]

LOG2E = 1.4426950408889634
QSCALE = LOG2E / math.sqrt(128.0)
GC1 = -2.0 * 0.7978845608028654 * LOG2E
GC2 = GC1 * 0.044715
BIGL = 2.0 ** 30
NEGBIG = -1.0e30
MFLOOR = -1.0e20

def gen_k2(A):
    name = "attn_kernel"
    A.begin_kernel(name)
    done = A.newlabel("k2_done")
    S_XN, S_WG, S_WU, S_WQ, S_KF, S_VF, S_H, S_CTX = 8, 12, 16, 20, 24, 28, 32, 36
    sW, sH, sI, sP, sC, sG, sWR = 40, 41, 42, 43, 44, 45, 46
    sSX, sSWF, sSWQ, sM0 = 47, 48, 49, 50
    sFT, sRBF, sRBO = 51, 52, 53
    sBLK, sIT, sNIT = 54, 55, 56
    sKN, sVN = 57, 58
    sKS, sVS = 59, 60
    sHB = 61
    sPASS = 62
    sKJ, sVJ = 63, 64
    sB0 = 65
    sT = 66
    sMK = 12
    A(f"""
    s_cmp_ge_u32 s2, 256
    s_cbranch_scc1 {done}
    s_load_dwordx2 s[66:67], s[0:1], {KA_WQ}
    s_load_dwordx4 s[68:71], s[0:1], {KA_WG}
    s_load_dwordx2 s[4:5], s[0:1], {KA_WS}
    v_lshrrev_b32 v1, 6, v0
    v_and_b32 v0, 63, v0
    v_readfirstlane_b32 s{sW}, v1
    s_and_b32 s{sH}, s2, 7
    s_lshl_b32 s{sH}, s{sH}, 2
    s_lshr_b32 s{sI}, s2, 3
    s_and_b32 s{sI}, s{sI}, 3
    s_add_u32 s{sH}, s{sH}, s{sI}                ; head
    s_lshr_b32 s{sI}, s2, 5
    s_and_b32 s{sP}, s{sW}, 1
    s_lshr_b32 s{sC}, s{sW}, 1
    s_lshr_b32 s{sG}, s{sW}, 2                   ; group
    s_and_b32 s{sWR}, s{sW}, 3
    s_sub_u32 s{sB0}, 15, s{sI}
    ; ffn tile: h<14: rows i ; 14<=h<28: rows 15-i ; ft = h%14 (h>=28: dummy tile, not stored)
    s_cmp_lt_u32 s{sH}, 14
    s_cselect_b32 s{sRBF}, s{sI}, s{sB0}
    s_cselect_b32 s{sRBO}, s{sB0}, s{sI}
    s_sub_u32 s{sFT}, s{sH}, 14
    s_cselect_b32 s{sFT}, s{sH}, s{sFT}
    s_cmp_ge_u32 s{sFT}, 14
    s_cselect_b32 s{sFT}, 0, s{sFT}
    s_waitcnt lgkmcnt(0)
    """)
    stamp(A, 0); stamp(A, 8, True)
    srd(A, S_WQ, 66, 67, 512*8192)
    srd(A, S_WG, 68, 69, 512*3584)
    srd(A, S_WU, 70, 71, 512*3584)
    srd(A, S_XN, 4, 5, 2048*1024, WS_XN)
    srd(A, S_KF, 4, 5, 16*1024*1024, WS_KF)
    srd(A, S_VF, 4, 5, 16*1024*1024, WS_VF)
    srd(A, S_H, 4, 5, 64*112*1024, WS_H)
    srd(A, S_CTX, 4, 5, 16*1024*1024, WS_CTX)
    vL16 = 1
    vDF, vDQ = 192, 193
    vRXl, vRXh, vRWl, vRWh = 194, 195, 196, 197
    A(f"""
    v_lshlrev_b32 v{vL16}, 4, v0
    v_lshrrev_b32 v7, 4, v0                       ; l>>4
    v_and_b32 v8, 15, v0
    v_lshlrev_b32 v9, 2, v7
    v_xor_b32 v8, v8, v9
    v_lshlrev_b32 v8, 4, v8
    v_mul_u32_u24 v6, 3584, v7
    v_add_u32 v{vDF}, v6, v8
    v_lshlrev_b32 v6, 13, v7
    v_add_u32 v{vDQ}, v6, v8
    s_cmp_lt_u32 s{sW}, 4
    s_cselect_b32 s{sT}, s{sRBF}, s{sRBO}
    s_lshl_b32 s{sT}, s{sT}, 2
    s_add_u32 s{sT}, s{sT}, s{sWR}
    s_lshl_b32 s{sSX}, s{sT}, 15
    s_mul_i32 s{sSWF}, s{sW}, {4*3584}
    s_lshl_b32 s{sT}, s{sFT}, 8
    s_add_u32 s{sSWF}, s{sSWF}, s{sT}
    s_lshl_b32 s{sSWQ}, s{sW}, 15                 ; 4*w*8192
    s_lshl_b32 s{sT}, s{sH}, 8
    s_add_u32 s{sSWQ}, s{sSWQ}, s{sT}
    s_lshl_b32 s{sM0}, s{sW}, 10                  ; w*1024
    """)
    STG = 40960
    def gissue(st):
        b = (st & 3) * STG
        A(f"""
        s_lshl_b32 s{sT}, s{sM0}, 1
        s_add_u32 m0, s{sT}, {b}
        s_add_u32 s{sT+1}, s{sSX}, {st*2048}
        buffer_load_dwordx4 v{vL16}, s[{S_XN}:{S_XN+3}], s{sT+1} offen lds
        buffer_load_dwordx4 v{vL16}, s[{S_XN}:{S_XN+3}], s{sT+1} offen offset:1024 lds
        s_add_u32 m0, s{sM0}, {b+16384}
        s_add_u32 s{sT+2}, s{sSWF}, {st*32*3584}
        buffer_load_dwordx4 v{vDF}, s[{S_WG}:{S_WG+3}], s{sT+2} offen lds
        s_add_u32 m0, s{sM0}, {b+24576}
        s_add_u32 s{sT+3}, s{sSWQ}, {st*32*8192}
        buffer_load_dwordx4 v{vDF}, s[{S_WU}:{S_WU+3}], s{sT+2} offen lds
        s_add_u32 m0, s{sM0}, {b+32768}
        s_nop 0
        buffer_load_dwordx4 v{vDQ}, s[{S_WQ}:{S_WQ+3}], s{sT+3} offen lds
        """)
    gissue(0); gissue(1); gissue(2)
    A(f"""
    s_lshl_b32 s{sT}, s{sP}, 12                   ; p*4096
    v_add_u32 v{vRXl}, s{sT}, v{vL16}
    v_add_u32 v{vRXh}, {2*STG}, v{vRXl}
    v_lshrrev_b32 v6, 5, v0
    v_lshlrev_b32 v6, 11, v6                      ; (g>>1)*8*256
    v_bfe_u32 v7, v0, 2, 2                        ; r
    v_lshlrev_b32 v8, 8, v7
    v_add_u32 v6, v6, v8
    v_lshlrev_b32 v8, 6, v7
    v_add_u32 v6, v6, v8
    v_bfe_u32 v8, v0, 4, 1
    v_lshlrev_b32 v8, 5, v8
    v_add_u32 v6, v6, v8
    v_and_b32 v8, 3, v0
    v_lshlrev_b32 v8, 3, v8
    v_add_u32 v6, v6, v8
    s_lshl_b32 s{sT}, s{sC}, 6
    v_xor_b32 v6, s{sT}, v6
    v_add_u32 v{vRWl}, 16384, v6
    v_add_u32 v{vRWh}, {2*STG}, v{vRWl}
    """)
    ACC = 64
    FR = [8, 36]
    XOFF = [0, 2048, 8192, 10240]
    def greads(ks):
        st, kp = ks >> 1, ks & 1
        buf = st & 3
        fr = FR[ks & 1]
        rx = vRXl if buf < 2 else vRXh
        rw = vRWl if buf < 2 else vRWh
        bo = (buf & 1) * STG
        L = []
        def wr(sub):
            return [f"ds_read_b64_tr_b16 {v(fr+sub*4+tt*2,2)}, v{rw} offset:{bo + sub*8192 + kp*4096 + tt*1024}" for tt in range(2)]
        def xr(i):
            return [f"ds_read_b128 {v(fr+12+i*4,4)}, v{rx} offset:{bo + XOFF[i] + kp*1024}"]
        L = wr(0) + xr(0) + xr(1) + wr(1) + wr(2) + xr(2) + xr(3)
        return L
    MF = [(0, 0, 0, 3), (1, 0, 1, 4), (2, 1, 0, 6), (3, 1, 1, 6), (4, 2, 0, 8), (5, 2, 1, 8), (6, 2, 2, 9), (7, 2, 3, 10)]
    stamp(A, 1)
    A("s_waitcnt vmcnt(5)")
    A("s_barrier")
    for r in greads(0): A(r)
    for st in range(16):
        if st > 0:
            n_out = 5 if st < 14 else (0 if st == 14 else None)
            if n_out is not None:
                A(f"s_waitcnt vmcnt({n_out})")
                A("s_barrier")
        if st + 3 < 16:
            gissue(st + 3)
        for kp in range(2):
            ks = 2*st + kp
            fr = FR[ks & 1]
            nxt = greads(ks + 1) if ks + 1 < 32 else []
            idx = 0
            prev_need = 0
            for (acc, sub, xi, need) in MF:
                if need > prev_need:
                    A(f"s_waitcnt lgkmcnt({min((10 - need) + idx, 15)})")
                    prev_need = need
                d = ACC + acc*16
                mfma(A, d, fr + sub*4, fr + 12 + xi*4, None if ks == 0 else d)
                for _ in range(2 if acc in (0, 1) else 1):
                    if idx < len(nxt):
                        A(nxt[idx]); idx += 1
    stamp(A, 2)
    A(f"""
    s_barrier
    s_lshl_b32 s{sHB}, s{sH}, 19
    s_lshl_b32 s{sT}, s{sW}, 12
    s_add_u32 s{sHB}, s{sHB}, s{sT}               ; head*512K + w*4096
    s_lshl_b32 s{sM0}, s{sW}, 12                  ; w*4096
    s_mov_b32 s{sKJ}, 0
    s_mov_b32 s{sVJ}, 0
    """)
    def kv_issue(isV):
        sJ = sVJ if isV else sKJ
        S = S_VF if isV else S_KF
        A(f"""
        s_sub_u32 s{sT}, s{sJ}, s{sB0}
        s_sub_u32 s{sT}, s{sT}, 1
        s_cmp_le_u32 s{sJ}, s{sB0}
        s_cselect_b32 s{sT}, s{sJ}, s{sT}
        s_lshl_b32 s{sT}, s{sT}, 15
        s_add_u32 s{sT}, s{sT}, s{sHB}
        s_cmp_lt_u32 s{sJ}, 17
        s_cselect_b32 s{sT}, s{sT}, 0x7ff00000
        s_and_b32 s{sT+1}, s{sJ}, 1
        s_lshl_b32 s{sT+1}, s{sT+1}, 15
        s_add_u32 s{sT+1}, s{sT+1}, s{sM0}
        s_add_u32 m0, s{sT+1}, {65536 if isV else 0}
        s_add_u32 s{sJ}, s{sJ}, 1
        """)
        for q in range(4):
            A(f"buffer_load_dwordx4 v{vL16}, s[{S}:{S+3}], s{sT} offen offset:{q*1024} lds")
    kv_issue(False)
    kv_issue(True)
    kv_issue(False)
    T = 200
    A(f"s_mov_b32 s{sT+2}, {f32hex(QSCALE)}")
    A(f"""
    s_lshl_b32 s{sT}, s{sP}, 14                   ; 2p*8192
    s_lshl_b32 s{sT+1}, s{sC}, 11                 ; 2c*1024
    s_add_u32 s{sT}, s{sT}, s{sT+1}
    s_add_u32 s{sT}, s{sT}, {96*1024}
    v_add_u32 v6, s{sT}, v{vL16}
    """)
    for qi in range(4):
        d = ACC + (4+qi)*16
        for r in range(16):
            A(f"v_mul_f32 v{d+r}, s{sT+2}, v{d+r}")
        p = T + (qi & 1)*8
        for i in range(8):
            A(f"v_cvt_pk_bf16_f32 v{p+i}, v{d+2*i}, v{d+2*i+1}")
        xb_off = [0, 8192, 32768, 40960][qi]
        A(f"ds_write_b128 v6, {v(p,4)} offset:{xb_off}")
        A(f"ds_write_b128 v6, {v(p+4,4)} offset:{xb_off+1024}")
    A(f"s_mov_b32 s{sT+2}, {f32hex(GC1)}")
    A(f"s_mov_b32 s{sT+3}, {f32hex(GC2)}")
    A(f"v_mov_b32 v{T+16}, s{sT+2}")
    A(f"""
    s_lshl_b32 s{sT}, s{sRBF}, 2
    s_lshl_b32 s{sT+1}, s{sP}, 1
    s_add_u32 s{sT}, s{sT}, s{sT+1}
    s_mul_i32 s{sT}, s{sT}, {112*1024}
    s_lshl_b32 s{sT+1}, s{sFT}, 13
    s_add_u32 s{sT}, s{sT}, s{sT+1}
    s_lshl_b32 s{sT+1}, s{sC}, 11
    s_add_u32 s{sT}, s{sT}, s{sT+1}
    s_cmp_lt_u32 s{sH}, 28
    s_cselect_b32 s{sT}, s{sT}, 0x7ff00000
    """)
    for j in range(2):
        g0 = ACC + j*16
        u0 = ACC + (2+j)*16
        for r in range(16):
            x = g0 + r
            t = T + 18 + (r & 3)
            A(f"v_mul_f32 v{t}, v{x}, v{x}")
            A(f"v_fma_f32 v{t}, v{t}, s{sT+3}, v{T+16}")
            A(f"v_mul_f32 v{t}, v{t}, v{x}")
            A(f"v_exp_f32 v{t}, v{t}")
            A(f"v_mul_f32 v{x}, v{x}, v{u0+r}")
            A(f"v_add_f32 v{t}, 1.0, v{t}")
            A(f"v_rcp_f32 v{t}, v{t}")
            A("s_nop 0")
            A(f"v_mul_f32 v{x}, v{x}, v{t}")
        p = T + j*8
        for i in range(8):
            A(f"v_cvt_pk_bf16_f32 v{p+i}, v{g0+2*i}, v{g0+2*i+1}")
        A(f"buffer_store_dwordx4 {v(p,4)}, v{vL16}, s[{S_H}:{S_H+3}], s{sT} offen")
        A(f"buffer_store_dwordx4 {v(p+4,4)}, v{vL16}, s[{S_H}:{S_H+3}], s{sT} offen offset:1024")
        if j == 0:
            A(f"s_add_u32 s{sT}, s{sT}, {112*1024}")
    stamp(A, 3)
    vKA, vVA, vL, vM, vTMP, vD = 2, 3, 4, 5, 6, 7
    F = 8; Q = 40; Q2 = 72; S = 104; NM = 136; P = 152; O = 168; T = 232
    A(f"""
    s_waitcnt lgkmcnt(0)
    s_barrier
    s_cmp_eq_u32 s{sRBF}, s{sB0}
    s_cselect_b32 s{sT}, 0, 32768
    s_cselect_b32 s{sT+1}, 32768, 0
    s_lshl_b32 s{sT+2}, s{sWR}, 13
    s_add_u32 s{sT+2}, s{sT+2}, {96*1024}
    s_add_u32 s{sT}, s{sT}, s{sT+2}
    s_add_u32 s{sT+1}, s{sT+1}, s{sT+2}
    v_add_u32 v{vTMP}, s{sT}, v{vL16}
    v_add_u32 v{vD}, s{sT+1}, v{vL16}
    """)
    for ks in range(8):
        A(f"ds_read_b128 {v(Q+4*ks,4)}, v{vTMP} offset:{ks*1024}")
    for ks in range(8):
        A(f"ds_read_b128 {v(Q2+4*ks,4)}, v{vD} offset:{ks*1024}")
    A(f"""
    s_waitcnt lgkmcnt(0)
    v_and_b32 v{vD}, 31, v0
    v_lshrrev_b32 v{vTMP}, 5, v0
    v_lshlrev_b32 v{vTMP}, 2, v{vTMP}
    v_sub_u32 v{vD}, v{vD}, v{vTMP}
    s_lshl_b32 s{sT}, s{sWR}, 5
    s_lshl_b32 s{sT+1}, s{sG}, 6
    s_sub_u32 s{sT}, s{sT}, s{sT+1}
    v_add_u32 v{vD}, s{sT}, v{vD}
    s_mov_b32 s{sPASS}, 0
    s_mov_b32 s{sBLK}, s{sB0}
    s_mov_b32 s{sKS}, 0
    s_mov_b32 s{sVS}, 0
    """)
    A("s_waitcnt vmcnt(12)")
    A("s_barrier")

    def kread(i, slot):
        return f"ds_read_b128 {v(F+4*slot,4)}, v{vKA} offset:{i*1024}"
    def vread(i, slot):
        kk, db = i >> 2, i & 3
        return f"ds_read_b128 {v(F+4*slot,4)}, v{vVA} offset:{(kk>>1)*8192 + db*2048 + (kk&1)*1024}"
    def set_kaddr():
        A(f"s_lshl_b32 s{sT}, s{sG}, 14")
        A(f"s_add_u32 s{sT}, s{sT}, s{sKS}")
        A(f"v_add_u32 v{vKA}, s{sT}, v{vL16}")
    def set_vaddr():
        A(f"s_lshl_b32 s{sT}, s{sG}, 14")
        A(f"s_add_u32 s{sT}, s{sT}, s{sVS}")
        A(f"s_add_u32 s{sT}, s{sT}, 65536")
        A(f"v_add_u32 v{vVA}, s{sT}, v{vL16}")
    def mask_ops(kb):
        L = []
        for r0 in range(0, 16, 4):
            for j in range(4):
                r = r0 + j
                c = 32*kb + 8*(r >> 2) + (r & 3)
                L.append(f"v_cmp_gt_i32 s[{sMK+2*j}:{sMK+2*j+1}], {c}, v{vD}")
            for j in range(4):
                r = r0 + j
                L.append(f"v_cndmask_b32 v{S+16*kb+r}, v{S+16*kb+r}, v{T+15}, s[{sMK+2*j}:{sMK+2*j+1}]")
        return L
    def max_ops(kb, dst):
        x = S + 16*kb
        L = [f"v_max3_f32 v{dst}, v{x}, v{x+1}, v{x+2}"]
        for r in range(3, 15, 2):
            L.append(f"v_max3_f32 v{dst}, v{dst}, v{x+r}, v{x+r+1}")
        L.append(f"v_max_f32 v{dst}, v{dst}, v{x+15}")
        L.append(f"v_mov_b32 v{dst+1}, v{dst}")
        L.append("s_nop 1")
        L.append(f"v_permlane32_swap_b32 v{dst}, v{dst+1}")
        L.append("s_nop 1")
        L.append(f"v_max_f32 v{dst}, v{dst}, v{dst+1}")
        return L
    def sm_ops(kb):
        x = S + 16*kb
        L = []
        for r in range(0, 16, 2):
            L.append(f"v_exp_f32 v{x+r}, v{x+r}")
            L.append(f"v_exp_f32 v{x+r+1}, v{x+r+1}")
            if r >= 2:
                q = r - 2
                if q == 0:
                    L.append(f"v_add_f32 v{T}, v{vL}, v{x}")
                    L.append(f"v_mov_b32 v{T+1}, v{x+1}")
                else:
                    L.append(f"v_add_f32 v{T}, v{T}, v{x+q}")
                    L.append(f"v_add_f32 v{T+1}, v{T+1}, v{x+q+1}")
                L.append(f"v_cvt_pk_bf16_f32 v{P+8*kb+q//2}, v{x+q}, v{x+q+1}")
        L.append(f"v_add_f32 v{T}, v{T}, v{x+14}")
        L.append(f"v_add_f32 v{T+1}, v{T+1}, v{x+15}")
        L.append(f"v_cvt_pk_bf16_f32 v{P+8*kb+7}, v{x+14}, v{x+15}")
        L.append(f"v_add_f32 v{T}, v{T}, v{T+1}")
        return L
    rescues = []
    def check(kb, last):
        lr = A.newlabel("resc"); lb = A.newlabel("back")
        A(f"v_cmp_nle_f32 vcc, v{T}, v{T+14}")
        A(f"s_cbranch_vccnz {lr}")
        A.label(lb)
        A(f"v_mov_b32 v{vL}, v{T}")
        rescues.append((lr, lb, kb, last))
    def emit_rescue(lr, lb, kb, last):
        A.label(lr)
        A("s_nop 15")
        A("s_nop 15")
        A(f"""
        s_lshl_b32 s{sT}, s{sIT}, 1
        s_add_u32 s{sT}, s{sT}, s{sG}
        s_lshl_b32 s{sT}, s{sT}, 14
        s_lshl_b32 s{sT+1}, s{sH}, 19
        s_add_u32 s{sT}, s{sT}, s{sT+1}
        s_add_u32 s{sT}, s{sT}, {kb*8192}
        s_add_u32 s{sT+1}, s{sT}, 4096
        """)
        for ks in range(8):
            so = sT if ks < 4 else sT+1
            A(f"buffer_load_dwordx4 {v(T+4,4)}, v{vL16}, s[{S_KF}:{S_KF+3}], s{so} offen offset:{(ks&3)*1024}")
            A("s_waitcnt vmcnt(0)")
            mfma(A, S+16*kb, T+4, Q+4*ks, NM if ks == 0 else S+16*kb)
            A("s_nop 7")
        A("s_nop 15")
        if last:
            for i, op in enumerate(mask_ops(kb)):
                if i % 8 == 4: A("s_nop 1")
                A(op)
        for op in max_ops(kb, T+2): A(op)
        A(f"v_max_f32 v{T+2}, 0, v{T+2}")
        A(f"v_sub_f32 v{T+3}, 0, v{T+2}")
        A(f"v_exp_f32 v{T+3}, v{T+3}")
        for r in range(16):
            A(f"v_sub_f32 v{NM+r}, v{NM+r}, v{T+2}")
        for r in range(16):
            A(f"v_sub_f32 v{S+16*kb+r}, v{S+16*kb+r}, v{T+2}")
        if kb == 0:
            for r in range(16):
                A(f"v_sub_f32 v{S+16+r}, v{S+16+r}, v{T+2}")
        for r in range(64):
            A(f"v_mul_f32 v{O+r}, v{O+r}, v{T+3}")
        A(f"v_mul_f32 v{vL}, v{vL}, v{T+3}")
        for op in sm_ops(kb): A(op)
        A("s_nop 1")
        A(f"s_branch {lb}")

    def interleave(mfmas, fillers, start=0):
        n = len(mfmas)
        slots = n - start
        per = [len(fillers) // slots + (1 if i < len(fillers) % slots else 0) for i in range(slots)] if slots else []
        k = 0
        for i, m in enumerate(mfmas):
            for line in m: A(line)
            if i >= start:
                for _ in range(per[i - start]):
                    A(fillers[k]); k += 1
        assert k == len(fillers)

    def body(first, last):
        A("s_waitcnt vmcnt(%d)" % (8 if first else 4))
        A("s_barrier")
        kv_issue(True)
        set_vaddr()
        def rd(i):
            return kread(i, i & 7) if i < 16 else vread(i - 16, i & 7)
        AHEAD = 4
        def mf_lines(i, extra_out=0):
            L = []
            if i + AHEAD < 32:
                L.append(rd(i + AHEAD))
                L.append(f"s_waitcnt lgkmcnt({AHEAD})")
            else:
                L.append(f"s_waitcnt lgkmcnt({31 - i + extra_out})")
            fr = F + 4*(i & 7)
            if i < 16:
                kb, ks = i >> 3, i & 7
                d = S + 16*kb
                L.append(f"v_mfma_f32_32x32x16_bf16 {v(d,16)}, {v(fr,4)}, {v(Q+4*ks,4)}, {v(NM if ks == 0 else d,16)}")
            else:
                kk, db = (i - 16) >> 2, (i - 16) & 3
                d = O + 16*db
                L.append(f"v_mfma_f32_32x32x16_bf16 {v(d,16)}, {v(fr,4)}, {v(P+4*kk,4)}, {v(d,16)}")
            return L
        interleave([mf_lines(i) for i in range(0, 8)], [])
        fill = []
        if last: fill += mask_ops(0)
        if first:
            fill += max_ops(0, T+2)
            fill += [f"v_max_f32 v{T+2}, v{T+13}, v{T+2}"]
            fill += [f"v_sub_f32 v{S+r}, v{S+r}, v{T+2}" for r in range(16)]
        fill += sm_ops(0)
        interleave([mf_lines(i) for i in range(8, 16)], fill, start=2)
        check(0, last)
        A("s_waitcnt vmcnt(4)")
        A("s_barrier")
        if not last:
            kv_issue(False)
        A(f"s_xor_b32 s{sKS}, s{sKS}, 32768")
        fill = []
        if first:
            fill += [f"v_sub_f32 v{NM+r}, 0, v{T+2}" for r in range(16)]
            fill += [f"v_sub_f32 v{S+16+r}, v{S+16+r}, v{T+2}" for r in range(16)]
        if last: fill += mask_ops(1)
        fill += sm_ops(1)
        A("s_nop 4")
        interleave([mf_lines(i) for i in range(16, 24)], fill, start=1)
        check(1, last)
        set_kaddr()
        A("s_nop 0")
        seg = []
        for i in range(24, 32):
            L = mf_lines(i, extra_out=max(0, i - 28) if not last else 0)
            seg.append(L)
            if not last and i >= 28:
                L.append(kread(i - 28, i - 28))
        interleave(seg, [])
        A(f"s_xor_b32 s{sVS}, s{sVS}, 32768")

    blk_top = A.newlabel("blk_top")
    A.label(blk_top)
    stamp(A, 4)
    for r in range(64): A(f"v_mov_b32 v{O+r}, 0")
    for r in range(16): A(f"v_mov_b32 v{NM+r}, 0")
    A(f"""
    v_mov_b32 v{vL}, 0
    v_mov_b32 v{T+13}, {f32hex(MFLOOR)}
    v_mov_b32 v{T+14}, {f32hex(BIGL)}
    v_mov_b32 v{T+15}, {f32hex(NEGBIG)}
    s_mov_b32 s{sIT}, 0
    """)
    set_kaddr()
    for i in range(4): A(kread(i, i))
    l_only = A.newlabel("only"); l_mid = A.newlabel("mid"); l_last = A.newlabel("last"); l_merge = A.newlabel("merge")
    A(f"s_cmp_eq_u32 s{sBLK}, 0")
    A(f"s_cbranch_scc1 {l_only}")
    body(True, False)
    A(f"s_mov_b32 s{sIT}, 1")
    A.label(l_mid)
    A(f"s_cmp_ge_u32 s{sIT}, s{sBLK}")
    A(f"s_cbranch_scc1 {l_last}")
    body(False, False)
    A(f"s_add_u32 s{sIT}, s{sIT}, 1")
    A(f"s_branch {l_mid}")
    A.label(l_last)
    body(False, True)
    A(f"s_branch {l_merge}")
    A.label(l_only)
    body(True, True)
    A.label(l_merge)
    stamp(A, 5)
    A(f"""
    v_mov_b32 v{T}, v{vL}
    s_nop 1
    v_permlane32_swap_b32 v{vL}, v{T}
    s_nop 1
    v_add_f32 v{vL}, v{vL}, v{T}
    s_barrier
    s_xor_b32 s{sT}, s{sKS}, 32768
    s_xor_b32 s{sT+1}, s{sVS}, 32768
    s_add_u32 s{sT+1}, s{sT+1}, 65536
    s_cmp_eq_u32 s{sG}, 0
    s_cselect_b32 s{sT+2}, s{sT}, s{sT+1}
    s_cselect_b32 s{sT+3}, s{sT+1}, s{sT}
    s_lshl_b32 s{sT}, s{sWR}, 13
    s_add_u32 s{sT+2}, s{sT+2}, s{sT}
    s_add_u32 s{sT+3}, s{sT+3}, s{sT}
    v_add_u32 v{T+2}, s{sT+2}, v{vL16}
    v_add_u32 v{T+3}, s{sT+3}, v{vL16}
    v_lshlrev_b32 v{T+4}, 3, v0                  ; lane*8
    s_lshl_b32 s{sT}, s{sW}, 9
    s_add_u32 s{sT}, s{sT}, 131072
    v_add_u32 v{T+5}, s{sT}, v{T+4}
    s_xor_b32 s{sT}, s{sT}, 2048
    v_add_u32 v{T+4}, s{sT}, v{T+4}
    v_mov_b32 v{T+6}, v{NM}
    v_mov_b32 v{T+7}, v{vL}
    ds_write_b64 v{T+5}, {v(T+6,2)}
    """)
    lg1 = A.newlabel("mg1"); lgd = A.newlabel("mgd")
    A(f"s_cmp_eq_u32 s{sG}, 0")
    A(f"s_cbranch_scc0 {lg1}")
    for gsel in range(2):
        if gsel == 1: A.label(lg1)
        give = O + (32 if gsel == 0 else 0)
        keep = O + (0 if gsel == 0 else 32)
        for i in range(8):
            A(f"ds_write_b128 v{T+2}, {v(give+4*i,4)} offset:{i*1024}")
        A("s_waitcnt lgkmcnt(0)")
        A("s_barrier")
        A(f"ds_read_b64 {v(T+8,2)}, v{T+4}")
        for i in range(8):
            A(f"ds_read_b128 {v(give+4*i,4)}, v{T+3} offset:{i*1024}")
        A(f"""
        s_waitcnt lgkmcnt(8)
        v_min_f32 v{T+10}, v{NM}, v{T+8}          ; -M
        v_sub_f32 v{T+11}, v{T+10}, v{NM}         ; m_self - M
        v_sub_f32 v{T+12}, v{T+10}, v{T+8}        ; m_part - M
        v_exp_f32 v{T+11}, v{T+11}
        v_exp_f32 v{T+12}, v{T+12}
        s_nop 0
        v_mul_f32 v{T+10}, v{vL}, v{T+11}
        v_fmac_f32 v{T+10}, v{T+9}, v{T+12}       ; l_total
        v_rcp_f32 v{T+10}, v{T+10}
        s_nop 0
        v_mul_f32 v{T+11}, v{T+11}, v{T+10}
        v_mul_f32 v{T+12}, v{T+12}, v{T+10}
        s_waitcnt lgkmcnt(0)
        """)
        for r in range(32):
            A(f"v_mul_f32 v{keep+r}, v{keep+r}, v{T+11}")
            A(f"v_fmac_f32 v{keep+r}, v{give+r}, v{T+12}")
        for i in range(16):
            A(f"v_cvt_pk_bf16_f32 v{S+i}, v{keep+2*i}, v{keep+2*i+1}")
        if gsel == 0: A(f"s_branch {lgd}")
    A.label(lgd)
    A("s_barrier")
    kv_issue(False)
    A(f"""
    s_lshl_b32 s{sT}, s{sBLK}, 2
    s_add_u32 s{sT}, s{sT}, s{sWR}
    s_lshl_b32 s{sT}, s{sT}, 18                  ; *256*1024
    s_lshl_b32 s{sT+1}, s{sH}, 13
    s_add_u32 s{sT}, s{sT}, s{sT+1}
    s_lshl_b32 s{sT+1}, s{sG}, 12
    s_add_u32 s{sT}, s{sT}, s{sT+1}
    """)
    for i in range(4):
        A(f"buffer_store_dwordx4 {v(S+4*i,4)}, v{vL16}, s[{S_CTX}:{S_CTX+3}], s{sT} offen offset:{i*1024}")
    stamp(A, 6)
    fin = A.newlabel("k2_fin")
    A(f"s_cmp_eq_u32 s{sPASS}, 1")
    A(f"s_cbranch_scc1 {fin}")
    A(f"s_mov_b32 s{sPASS}, 1")
    A(f"s_mov_b32 s{sBLK}, s{sI}")
    for r in range(32): A(f"v_mov_b32 v{Q+r}, v{Q2+r}")
    A(f"s_branch {blk_top}")
    for (lr, lb, kb, last) in rescues:
        emit_rescue(lr, lb, kb, last)
    A.label(fin)
    if gen.STAMPS:
        A("s_waitcnt vmcnt(0)")
        stamp(A, 7); stamp(A, 9, True)
        stamp_flush(A, 10, 4, 5, sW, 1)
    A.label(done)
    A("s_endpgm")
    A.end_kernel(name, 248, 102)
    A.add_launch(name, 256, 512, 163840)
```

```python
from asmlib import *
import gen
from gen import *
from gen_k2 import f32hex, LOG2E

def gen_k3(A):
    name = "out_kernel"
    A.begin_kernel(name)
    done = A.newlabel("k3_done")
    S_CTX, S_H, S_WO, S_WD, S_X, S_OUT = 8, 12, 16, 20, 24, 28
    sW, sRT, sCT, sQR, sQC, sKG = 40, 41, 42, 43, 44, 45
    sSX, sSH, sSW, sM0 = 46, 47, 48, 49
    sT = 56
    A(f"""
    s_cmp_ge_u32 s2, 256
    s_cbranch_scc1 {done}
    s_load_dwordx2 s[56:57], s[0:1], {KA_X}
    s_load_dwordx2 s[58:59], s[0:1], {KA_WO}
    s_load_dwordx4 s[60:63], s[0:1], {KA_WD}
    s_load_dwordx2 s[4:5], s[0:1], {KA_WS}
    v_lshrrev_b32 v1, 6, v0
    v_and_b32 v0, 63, v0
    v_readfirstlane_b32 s{sW}, v1
    s_and_b32 s{sRT}, s2, 7
    s_lshl_b32 s{sRT}, s{sRT}, 2
    s_lshr_b32 s{sCT}, s2, 6
    s_add_u32 s{sRT}, s{sRT}, s{sCT}
    s_lshr_b32 s{sCT}, s2, 3
    s_and_b32 s{sCT}, s{sCT}, 7
    s_and_b32 s{sQR}, s{sW}, 1
    s_lshr_b32 s{sQC}, s{sW}, 1
    s_and_b32 s{sQC}, s{sQC}, 1
    s_lshr_b32 s{sKG}, s{sW}, 2
    s_waitcnt lgkmcnt(0)
    """)
    stamp(A, 0); stamp(A, 5, True)
    srd(A, S_X, 56, 57, 2048*1024)
    srd(A, S_WO, 58, 59, 4096*1024)
    srd(A, S_WD, 60, 61, 1792*1024)
    srd(A, S_OUT, 62, 63, 2048*1024)
    srd(A, S_CTX, 4, 5, 16*1024*1024, WS_CTX)
    srd(A, S_H, 4, 5, 64*112*1024, WS_H)
    vL16, vDW, vDW2 = 1, 2, 3
    vRX, vRW = 4, 5
    NS_S, NS_F = 32, 14
    NS = NS_S + NS_F
    A(f"""
    v_lshlrev_b32 v{vL16}, 4, v0
    v_lshrrev_b32 v6, 3, v0                       ; row = l>>3
    v_lshlrev_b32 v6, 10, v6
    v_and_b32 v7, 7, v0
    v_bfe_u32 v8, v0, 4, 1
    v_lshlrev_b32 v8, 2, v8
    v_xor_b32 v7, v7, v8
    v_lshlrev_b32 v7, 4, v7
    v_add_u32 v{vDW}, v6, v7
    v_add_u32 v{vDW2}, {8*1024-1024}, v{vDW}
    s_lshl_b32 s{sT}, s{sRT}, 1
    s_add_u32 s{sT}, s{sT}, s{sKG}                ; rowblk32
    s_and_b32 s{sT+1}, s{sW}, 3
    s_lshl_b32 s{sT+1}, s{sT+1}, 11
    s_lshl_b32 s{sSX}, s{sT}, 18
    s_add_u32 s{sSX}, s{sSX}, s{sT+1}
    s_mul_i32 s{sSH}, s{sT}, {112*1024}
    s_add_u32 s{sSH}, s{sSH}, s{sT+1}
    s_lshl_b32 s{sSW}, s{sW}, 14
    s_lshl_b32 s{sT}, s{sCT}, 7
    s_add_u32 s{sSW}, s{sSW}, s{sT}
    s_lshl_b32 s{sM0}, s{sW}, 11
    """)
    def issue(st):
        b = (st & 3) * 16384
        if st < NS_S:
            SX, sx, SW, so = S_CTX, sSX, S_WO, st
        else:
            SX, sx, SW, so = S_H, sSH, S_WD, st - NS_S
        A(f"""
        s_add_u32 m0, s{sM0}, {b}
        s_add_u32 s{sT}, s{sx}, {so*8192}
        buffer_load_dwordx4 v{vL16}, s[{SX}:{SX+3}], s{sT} offen lds
        buffer_load_dwordx4 v{vL16}, s[{SX}:{SX+3}], s{sT} offen offset:1024 lds
        s_add_u32 m0, s{sM0}, {b + 65536}
        s_add_u32 s{sT+1}, s{sSW}, {so*128*1024}
        buffer_load_dwordx4 v{vDW}, s[{SW}:{SW+3}], s{sT+1} offen lds
        buffer_load_dwordx4 v{vDW2}, s[{SW}:{SW+3}], s{sT+1} offen offset:1024 lds
        """)
    issue(0); issue(1); issue(2)
    A(f"""
    s_lshl_b32 s{sT}, s{sQR}, 13
    s_lshl_b32 s{sT+1}, s{sKG}, 10
    s_add_u32 s{sT}, s{sT}, s{sT+1}
    v_add_u32 v{vRX}, s{sT}, v{vL16}
    v_lshrrev_b32 v6, 5, v0                       ; g>>1
    v_lshlrev_b32 v6, 9, v6                       ; *4 rows*128
    v_bfe_u32 v7, v0, 2, 2                        ; r
    v_lshlrev_b32 v8, 7, v7
    v_add_u32 v6, v6, v8
    v_bfe_u32 v8, v0, 3, 1                        ; r>>1
    v_lshlrev_b32 v8, 6, v8
    v_add_u32 v6, v6, v8
    v_bfe_u32 v8, v0, 4, 1
    v_lshlrev_b32 v8, 5, v8
    v_add_u32 v6, v6, v8
    v_and_b32 v8, 3, v0
    v_lshlrev_b32 v8, 3, v8
    v_add_u32 v6, v6, v8
    s_lshl_b32 s{sT}, s{sQC}, 6
    v_xor_b32 v6, s{sT}, v6
    s_lshl_b32 s{sT}, s{sKG}, 11
    s_add_u32 s{sT}, s{sT}, 65536
    v_add_u32 v{vRW}, s{sT}, v6
    """)
    AS, AF = 64, 80
    FR = 16
    def reads(n):
        st, j = n >> 2, n & 3
        b = (st & 3) * 16384
        fr = FR + (n & 3) * 8
        return [f"ds_read_b64_tr_b16 {v(fr,2)}, v{vRW} offset:{b + j*4096}",
                f"ds_read_b64_tr_b16 {v(fr+2,2)}, v{vRW} offset:{b + j*4096 + 1024}",
                f"ds_read_b128 {v(fr+4,4)}, v{vRX} offset:{b + j*2048}"]
    stamp(A, 1)
    A("s_waitcnt vmcnt(4)")
    A("s_barrier")
    stamp(A, 2)
    NT = NS * 4
    for n in range(2):
        for r in reads(n): A(r)
    for st in range(NS):
        if st > 0:
            n_out = 4 if st < NS - 2 else (0 if st == NS - 2 else None)
            if n_out is not None:
                A(f"s_waitcnt vmcnt({n_out})")
                A("s_barrier")
        if st + 3 < NS:
            issue(st + 3)
        for j in range(4):
            n = st*4 + j
            if n + 2 < NT:
                for r in reads(n + 2): A(r)
                A("s_waitcnt lgkmcnt(6)")
            else:
                A(f"s_waitcnt lgkmcnt({3*(NT-1-n)})")
            fr = FR + (n & 3) * 8
            d = AS if st < NS_S else AF
            first = (n == 0) or (n == NS_S*4)
            mfma(A, d, fr, fr + 4, None if first else d)
    stamp(A, 3)
    A(f"""
    s_nop 7
    s_nop 7
    s_barrier
    s_lshl_b32 s{sT}, s{sW}, 12
    v_add_u32 v6, s{sT}, v{vL16}
    s_xor_b32 s{sT}, s{sT}, 16384
    v_add_u32 v7, s{sT}, v{vL16}
    """)
    l1 = A.newlabel("k3g1"); ld = A.newlabel("k3gd")
    A(f"""
    v_and_b32 v8, 31, v0
    v_lshlrev_b32 v8, 10, v8
    v_lshrrev_b32 v9, 5, v0
    v_lshlrev_b32 v9, 3, v9
    v_add_u32 v8, v8, v9
    s_lshl_b32 s{sT}, s{sRT}, 16
    s_lshl_b32 s{sT+1}, s{sQR}, 15
    s_add_u32 s{sT}, s{sT}, s{sT+1}
    s_lshl_b32 s{sT+1}, s{sCT}, 7
    s_add_u32 s{sT}, s{sT}, s{sT+1}
    s_lshl_b32 s{sT+1}, s{sQC}, 6
    s_add_u32 s{sT}, s{sT}, s{sT+1}
    s_lshl_b32 s{sT+1}, s{sKG}, 5
    s_add_u32 s{sT}, s{sT}, s{sT+1}
    buffer_load_dwordx2 v[10:11], v8, s[{S_X}:{S_X+3}], s{sT} offen
    buffer_load_dwordx2 v[12:13], v8, s[{S_X}:{S_X+3}], s{sT} offen offset:16
    s_cmp_eq_u32 s{sKG}, 0
    s_cbranch_scc0 {l1}
    """)
    for kg in range(2):
        if kg == 1: A.label(l1)
        keep = 8*kg; give = 8 - keep
        A(f"ds_write_b128 v6, {v(AS+give,4)}")
        A(f"ds_write_b128 v6, {v(AS+give+4,4)} offset:1024")
        A(f"ds_write_b128 v6, {v(AF+give,4)} offset:2048")
        A(f"ds_write_b128 v6, {v(AF+give+4,4)} offset:3072")
        A("s_waitcnt lgkmcnt(0)")
        A("s_barrier")
        for i in range(4):
            A(f"ds_read_b128 {v(16+4*i,4)}, v7 offset:{i*1024}")
        A("s_waitcnt lgkmcnt(0)")
        for r in range(8):
            A(f"v_add_f32 v{32+r}, v{AS+keep+r}, v{16+r}")
            A(f"v_add_f32 v{40+r}, v{AF+keep+r}, v{24+r}")
        if kg == 0: A(f"s_branch {ld}")
    A.label(ld)
    A(f"s_mov_b32 s{sT+2}, {f32hex(-LOG2E)}")
    for r in range(8):
        round_bf16(A, 32+r)
        round_bf16(A, 40+r)
        A(f"v_mul_f32 v{48+r}, s{sT+2}, v{40+r}")
        A(f"v_exp_f32 v{48+r}, v{48+r}")
    for r in range(8):
        A(f"v_add_f32 v{48+r}, 1.0, v{48+r}")
        A(f"v_rcp_f32 v{48+r}, v{48+r}")
    for r in range(8):
        A(f"v_mul_f32 v{40+r}, v{40+r}, v{48+r}")
        round_bf16(A, 40+r)
        A(f"v_mul_f32 v{32+r}, v{32+r}, v{40+r}")
        round_bf16(A, 32+r)
    A("s_waitcnt vmcnt(0)")
    for i in range(4):
        A(f"v_lshlrev_b32 v{48}, 16, v{10+i}")
        A(f"v_and_b32 v{49}, 0xffff0000, v{10+i}")
        A(f"v_add_f32 v{32+2*i}, v{32+2*i}, v48")
        A(f"v_add_f32 v{33+2*i}, v{33+2*i}, v49")
        A(f"v_cvt_pk_bf16_f32 v{52+i}, v{32+2*i}, v{33+2*i}")
    A(f"buffer_store_dwordx2 v[52:53], v8, s[{S_OUT}:{S_OUT+3}], s{sT} offen")
    A(f"buffer_store_dwordx2 v[54:55], v8, s[{S_OUT}:{S_OUT+3}], s{sT} offen offset:16")
    if gen.STAMPS:
        A("s_waitcnt vmcnt(0)")
        stamp(A, 4); stamp(A, 6, True)
        stamp_flush(A, 7, 4, 5, sW, 2)
    A.label(done)
    A("s_endpgm")
    A.end_kernel(name, 96, 102)
    A.add_launch(name, 256, 512, 131072)
```

```python
import sys
import gen
from asmlib import *
from gen import *
import gen_k2, gen_k3
A = Asm()
if "stamps" in sys.argv: gen.STAMPS = True
gen.gen_k1(A)
gen_k2.gen_k2(A)
gen_k3.gen_k3(A)
open(sys.argv[1], "w").write(A.text(HEADER))
```

```python
import sys
from asmlib import *

HEADER = open("recurrent_scan__compressed_kv_cla__geglu_ffn__prompt.s.ref").read().split("; Override launch")[0]

WS_XN  = 0x0000000
WS_KF  = 0x1000000
WS_VF  = 0x2000000
WS_H   = 0x3000000
WS_CTX = 0x4000000
WS_WF  = 0x7000000
WS_SIZE = 0x10000000

KA_X, KA_CKV, KA_WQ, KA_WUK, KA_WUV, KA_WO, KA_BX, KA_WG, KA_WU, KA_WD, KA_OUT, KA_DBG, KA_WS = [8*i for i in range(13)]

def srd(A, d, lo, hi, nbytes, add=0):
    if add:
        A(f"s_add_u32 s{d}, s{lo}, {add:#x}")
        A(f"s_addc_u32 s{d+1}, s{hi}, 0")
    else:
        A(f"s_mov_b32 s{d}, s{lo}")
        A(f"s_mov_b32 s{d+1}, s{hi}")
    A(f"s_mov_b32 s{d+2}, {nbytes:#x}")
    A(f"s_mov_b32 s{d+3}, 0x00020000")

def mfma(A, d, a_, b_, c=None):
    cs = "0" if c is None else v(c, 16)
    A(f"v_mfma_f32_32x32x16_bf16 {v(d,16)}, {v(a_,4)}, {v(b_,4)}, {cs}")

def wave_allreduce_add(A, x, t, s0):
    A(f"""
    s_nop 1
    v_add_f32_dpp v{x}, v{x}, v{x} quad_perm:[1,0,3,2] row_mask:0xf bank_mask:0xf
    s_nop 1
    v_add_f32_dpp v{x}, v{x}, v{x} quad_perm:[2,3,0,1] row_mask:0xf bank_mask:0xf
    s_nop 1
    v_add_f32_dpp v{x}, v{x}, v{x} row_half_mirror row_mask:0xf bank_mask:0xf
    s_nop 1
    v_add_f32_dpp v{x}, v{x}, v{x} row_mirror row_mask:0xf bank_mask:0xf
    s_nop 1
    v_readlane_b32 s{s0}, v{x}, 0
    v_readlane_b32 s{s0+1}, v{x}, 16
    v_readlane_b32 s{s0+2}, v{x}, 32
    v_readlane_b32 s{s0+3}, v{x}, 48
    s_nop 1
    v_mov_b32 v{x}, s{s0}
    v_add_f32 v{x}, s{s0+1}, v{x}
    v_add_f32 v{x}, s{s0+2}, v{x}
    v_add_f32 v{x}, s{s0+3}, v{x}
    """)

def round_bf16(A, x):
    A(f"v_cvt_pk_bf16_f32 v{x}, v{x}, v{x}")
    A(f"v_lshlrev_b32 v{x}, 16, v{x}")

STAMPS = False
PRETOUCH = True
WS_STAMP = 0x8000000
COARSE = True
def stamp(A, idx, real=False, force=False):
    if not STAMPS: return
    if not COARSE and not force and not real: return
    A(f"s_memrealtime s[{80+2*idx}:{81+2*idx}]" if real else f"s_memtime s[{80+2*idx}:{81+2*idx}]")
def stamp_flush(A, n, ws_lo, ws_hi, swave, slot=0):
    if not STAMPS: return
    A("s_waitcnt lgkmcnt(0)")
    srd(A, 76, ws_lo, ws_hi, 0x1000000, WS_STAMP + slot*0x100000)
    A(f"s_lshl_b32 s74, s2, 3")
    A(f"s_add_u32 s74, s74, s{swave}")
    A(f"s_lshl_b32 s74, s74, 6")
    A("v_mov_b32 v1, 0")
    for i in range(n):
        A(f"v_mov_b32 v2, s{80+2*i}")
        A(f"buffer_store_dword v2, v1, s[76:79], s74 offen offset:{4*i}")
        A("s_nop 1")

def gen_k1(A):
    name = "kv_kernel"
    A.begin_kernel(name)
    done = A.newlabel("k1_done")
    S_X, S_CKV, S_W, S_XN, S_OUT = 8, 12, 16, 20, 24
    sW, sH, sJ, sWM, sWN = 28, 29, 30, 31, 32
    sSX, sSW, sM0X, sM0W = 33, 34, 35, 36
    sT = 40
    A(f"""
    s_cmp_ge_u32 s2, 256
    s_cbranch_scc1 {done}
    s_load_dwordx4 s[44:47], s[0:1], {KA_X}      ; x, ckv
    s_load_dwordx4 s[48:51], s[0:1], {KA_WUK}
    s_load_dwordx2 s[52:53], s[0:1], {KA_WS}
    s_load_dwordx2 s[54:55], s[0:1], {KA_WQ}
    s_load_dwordx2 s[56:57], s[0:1], {KA_WO}
    s_load_dwordx4 s[60:63], s[0:1], {KA_WG}
    s_load_dwordx2 s[58:59], s[0:1], {KA_WD}
    v_lshrrev_b32 v1, 6, v0
    v_and_b32 v0, 63, v0                          ; lane
    v_readfirstlane_b32 s{sW}, v1
    s_and_b32 s{sH}, s2, 7
    s_lshl_b32 s{sH}, s{sH}, 2
    s_lshr_b32 s{sT}, s2, 3
    s_and_b32 s{sT}, s{sT}, 3
    s_add_u32 s{sH}, s{sH}, s{sT}                 ; head
    s_lshr_b32 s{sJ}, s2, 5
    s_lshr_b32 s{sWM}, s{sW}, 2
    s_and_b32 s{sWN}, s{sW}, 3
    s_waitcnt lgkmcnt(0)
    """)
    stamp(A, 0); stamp(A, 5, True)
    srd(A, S_X, 44, 45, 2048*1024)
    srd(A, S_CKV, 46, 47, 2048*1024)
    A(f"""
    s_cmp_lt_u32 s{sW}, 4
    s_cselect_b32 s{S_W}, s48, s50
    s_cselect_b32 s{S_W+1}, s49, s51
    s_mov_b32 s{S_W+2}, {512*8192:#x}
    s_mov_b32 s{S_W+3}, 0x00020000
    """)
    srd(A, S_XN, 52, 53, 2048*1024, WS_XN)
    A(f"""
    s_mov_b32 s{sT}, {WS_KF:#x}
    s_cmp_lt_u32 s{sWN}, 2
    s_cselect_b32 s{sT}, s{sT}, {WS_VF:#x}
    s_add_u32 s{S_OUT}, s52, s{sT}
    s_addc_u32 s{S_OUT+1}, s53, 0
    s_mov_b32 s{S_OUT+2}, {16*1024*1024:#x}
    s_mov_b32 s{S_OUT+3}, 0x00020000
    """)
    vLN = 200
    A(f"""
    s_lshl_b32 s{sT}, s2, 3
    s_add_u32 s{sT}, s{sT}, s{sW}                 ; row
    s_lshl_b32 s{sT+1}, s{sT}, 10                 ; row*1024
    v_lshlrev_b32 v1, 4, v0                       ; lane*16
    buffer_load_dwordx4 v[{vLN}:{vLN+3}], v1, s[{S_X}:{S_X+3}], s{sT+1} offen
    """)
    vDX, vDX2, vDW, vDW2 = 2, 3, 4, 5
    A(f"""
    v_lshrrev_b32 v6, 2, v0                       ; l>>2
    v_lshlrev_b32 v6, 10, v6                      ; *1024
    v_lshrrev_b32 v7, 4, v0                       ; l>>4
    v_and_b32 v8, 3, v0
    v_xor_b32 v8, v8, v7                          ; (l&3)^((l>>4)&3)
    v_lshlrev_b32 v8, 4, v8
    v_add_u32 v{vDX}, v6, v8
    v_add_u32 v{vDX2}, {16*1024-1024}, v{vDX}
    v_lshlrev_b32 v6, 13, v7                      ; (l>>4)*8192
    v_and_b32 v8, 15, v0
    v_lshlrev_b32 v9, 2, v7
    v_xor_b32 v8, v8, v9                          ; (l&15)^((l>>4)<<2)
    v_lshlrev_b32 v8, 4, v8
    v_add_u32 v{vDW}, v6, v8
    v_add_u32 v{vDW2}, {32768-1024}, v{vDW}
    """)
    A(f"""
    s_lshl_b32 s{sSX}, s{sJ}, 18                  ; j*256*1024
    s_lshl_b32 s{sT+2}, s{sW}, 15                 ; w*32*1024
    s_add_u32 s{sSX}, s{sSX}, s{sT+2}
    s_lshl_b32 s{sSW}, s{sWN}, 16                 ; (w&3)*8*8192
    s_lshl_b32 s{sT+2}, s{sH}, 8
    s_add_u32 s{sSW}, s{sSW}, s{sT+2}
    s_lshl_b32 s{sM0X}, s{sW}, 11                 ; w*2048
    s_add_u32 s{sM0W}, s{sM0X}, 0x10000
    """)
    def pieces(st):
        buf = st & 3
        return [
         [f"s_add_u32 m0, s{sM0X}, {buf*16384}", f"s_add_u32 s{sT+2}, s{sSX}, {st*64}",
          f"buffer_load_dwordx4 v{vDX}, s[{S_CKV}:{S_CKV+3}], s{sT+2} offen lds"],
         [f"buffer_load_dwordx4 v{vDX2}, s[{S_CKV}:{S_CKV+3}], s{sT+2} offen offset:1024 lds"],
         [f"s_add_u32 m0, s{sM0W}, {buf*16384}", f"s_add_u32 s{sT+3}, s{sSW}, {st*32*8192}",
          f"buffer_load_dwordx4 v{vDW}, s[{S_W}:{S_W+3}], s{sT+3} offen lds"],
         [f"buffer_load_dwordx4 v{vDW2}, s[{S_W}:{S_W+3}], s{sT+3} offen offset:1024 lds"]]
    def issue(st):
        for p in pieces(st):
            for l in p: A(l)
    issue(0); issue(1); issue(2)
    vRX = [10, 11]
    vRW = [12, 13]
    A(f"""
    v_and_b32 v6, 31, v0                          ; row
    v_lshrrev_b32 v7, 5, v0                       ; half
    v_lshrrev_b32 v8, 2, v6
    v_and_b32 v8, 3, v8                           ; (row>>2)&3
    v_xor_b32 v8, v8, v7                          ; half ^ f
    v_lshlrev_b32 v8, 4, v8
    v_lshlrev_b32 v6, 6, v6                       ; row*64
    v_add_u32 v6, v6, v8
    s_lshl_b32 s{sT+2}, s{sWM}, 13                ; wm*4*2048
    v_add_u32 v{vRX[0]}, s{sT+2}, v6
    v_xor_b32 v{vRX[1]}, 32, v{vRX[0]}            ; chunk ^ 2
    v_lshrrev_b32 v6, 5, v0                       ; g>>1
    v_lshlrev_b32 v6, 11, v6                      ; *8*256
    v_bfe_u32 v7, v0, 2, 2                        ; r
    v_lshlrev_b32 v8, 8, v7                       ; r*256
    v_add_u32 v6, v6, v8
    v_lshlrev_b32 v8, 6, v7                       ; r<<6
    v_add_u32 v6, v6, v8
    v_bfe_u32 v8, v0, 4, 1                        ; g&1
    v_lshlrev_b32 v8, 5, v8
    v_add_u32 v6, v6, v8
    v_and_b32 v8, 3, v0
    v_lshlrev_b32 v8, 3, v8
    v_add_u32 v6, v6, v8
    s_lshr_b32 s{sT+2}, s{sWN}, 1
    s_lshl_b32 s{sT+2}, s{sT+2}, 13
    s_add_u32 s{sT+2}, s{sT+2}, 0x10000
    v_add_u32 v6, s{sT+2}, v6
    s_and_b32 s{sT+2}, s{sWN}, 1
    s_lshl_b32 s{sT+2}, s{sT+2}, 7                ; (2*(wn&1))<<6
    v_xor_b32 v{vRW[0]}, s{sT+2}, v6
    v_xor_b32 v{vRW[1]}, 64, v{vRW[0]}
    """)
    A(f"""
    s_lshl_b32 s{sT+2}, s2, 3
    s_add_u32 s{sT+2}, s{sT+2}, s{sW}
    s_lshl_b32 s{sT+2}, s{sT+2}, 7
    v_lshlrev_b32 v14, 18, v0
    v_add_u32 v14, s{sT+2}, v14
    """)
    f = vLN + 4
    t = vLN + 12
    A("s_waitcnt vmcnt(12)")
    for i in range(4):
        A(f"v_lshlrev_b32 v{f+2*i}, 16, v{vLN+i}")
        A(f"v_and_b32 v{f+2*i+1}, 0xffff0000, v{vLN+i}")
    A(f"v_add_f32 v{t}, v{f}, v{f+1}")
    for i in range(2, 8):
        A(f"v_add_f32 v{t}, v{t}, v{f+i}")
    wave_allreduce_add(A, t, None, sT+4)
    A(f"v_mul_f32 v{t}, {1.0/512!r}, v{t}")
    A(f"v_sub_f32 v{t+1}, v{f}, v{t}")
    A(f"v_mul_f32 v{t+2}, v{t+1}, v{t+1}")
    for i in range(1, 8):
        A(f"v_sub_f32 v{t+1}, v{f+i}, v{t}")
        A(f"v_fmac_f32 v{t+2}, v{t+1}, v{t+1}")
    wave_allreduce_add(A, t+2, None, sT+4)
    A(f"v_mul_f32 v{t+2}, {1.0/512!r}, v{t+2}")
    round_bf16(A, t)
    round_bf16(A, t+2)
    A(f"v_add_f32 v{t+2}, 0x3727c5ac, v{t+2}")
    round_bf16(A, t+2)
    A(f"v_sqrt_f32 v{t+2}, v{t+2}")
    A("s_nop 0")
    round_bf16(A, t+2)
    A(f"v_rcp_f32 v{t+3}, v{t+2}")
    A("s_nop 0")
    for i in range(8):
        A(f"v_sub_f32 v{f+i}, v{f+i}, v{t}")
        round_bf16(A, f+i)
        A(f"v_mul_f32 v{t+4}, v{f+i}, v{t+3}")
        A(f"v_fma_f32 v{t+5}, -v{t+4}, v{t+2}, v{f+i}")
        A(f"v_fma_f32 v{f+i}, v{t+5}, v{t+3}, v{t+4}")
    for i in range(4):
        A(f"v_cvt_pk_bf16_f32 v{vLN+i}, v{f+2*i}, v{f+2*i+1}")
    A(f"""
    v_lshrrev_b32 v6, 1, v0
    v_lshlrev_b32 v6, 10, v6
    v_and_b32 v7, 1, v0
    v_lshlrev_b32 v7, 9, v7
    v_add_u32 v6, v6, v7
    s_lshr_b32 s{sT+2}, s{sT}, 5
    s_lshl_b32 s{sT+2}, s{sT+2}, 15
    s_and_b32 s{sT+3}, s{sT}, 31
    s_lshl_b32 s{sT+3}, s{sT+3}, 4
    s_add_u32 s{sT+2}, s{sT+2}, s{sT+3}
    buffer_store_dwordx4 v[{vLN}:{vLN+3}], v6, s[{S_XN}:{S_XN+3}], s{sT+2} offen
    """)
    ACC = 64
    FR = [16, 40]
    def reads(ks):
        st, kp = ks >> 1, ks & 1
        buf = st & 3
        fr = FR[ks & 1]
        L = []
        for nb in range(2):
            for tt in range(2):
                L.append(f"ds_read_b64_tr_b16 {v(fr+16+nb*4+tt*2,2)}, v{vRW[nb]} offset:{buf*16384 + kp*4096 + tt*1024}")
        for kb in range(4):
            L.append(f"ds_read_b128 {v(fr+kb*4,4)}, v{vRX[kp]} offset:{buf*16384 + kb*2048}")
        return L
    lblV = A.newlabel("k1_v"); lblE = A.newlabel("k1_epi")
    stamp(A, 1)
    A("s_waitcnt vmcnt(5)")
    A("s_barrier")
    stamp(A, 2)
    A(f"s_cmp_ge_u32 s{sWN}, 2")
    A(f"s_cbranch_scc1 {lblV}")
    for ver in range(2):
        if ver == 1:
            A.label(lblV)
        for r in reads(0): A(r)
        for st in range(16):
            if st > 0:
                n_out = 4 if st < 14 else (0 if st == 14 else None)
                if n_out is not None:
                    A(f"s_waitcnt vmcnt({n_out})")
                    A("s_barrier")
            pcs = pieces(st + 3) if st + 3 < 16 else []
            if PRETOUCH and st == 14:
                for lo, nb in [(54, 512*8192), (60, 512*3584), (62, 512*3584), (56, 4096*1024), (58, 1792*1024)]:
                    srd(A, 64, lo, lo + 1, nb)
                    A(f"buffer_load_dword v15, v14, s[64:67], 0 offen")
            for kp in range(2):
                ks = 2*st + kp
                fr = FR[ks & 1]
                nxt = reads(ks + 1) if ks + 1 < 32 else []
                idx = 0
                for kb in range(4):
                    for nb in range(2):
                        if nb == 0:
                            need_done = 4 + kb + 1
                            outstanding_after = (8 - need_done) + idx
                            A(f"s_waitcnt lgkmcnt({min(outstanding_after,15)})")
                        d = ACC + (kb*2+nb)*16
                        xa, wa = fr + kb*4, fr + 16 + nb*4
                        c = None if ks == 0 else d
                        if ver == 0: mfma(A, d, wa, xa, c)
                        else:        mfma(A, d, xa, wa, c)
                        if idx < len(nxt):
                            A(nxt[idx]); idx += 1
                        if pcs and (kb*2+nb) % 4 == 1:
                            for l in pcs.pop(0): A(l)
            assert not pcs
        if ver == 0:
            A(f"s_branch {lblE}")
    A.label(lblE)
    stamp(A, 3)
    A(f"""
    s_nop 7
    s_nop 7
    v_lshlrev_b32 v1, 4, v0
    s_lshl_b32 s{sT+2}, s{sH}, 19                 ; h*512KB
    s_lshl_b32 s{sT+3}, s{sJ}, 16                 ; j*8 keyblks*8192
    s_add_u32 s{sT+2}, s{sT+2}, s{sT+3}
    s_lshl_b32 s{sT+3}, s{sWM}, 15                ; wm*4*8192
    s_add_u32 s{sT+2}, s{sT+2}, s{sT+3}
    s_and_b32 s{sT+3}, s{sWN}, 1
    s_lshl_b32 s{sT+3}, s{sT+3}, 12
    s_add_u32 s{sT+2}, s{sT+2}, s{sT+3}
    """)
    for kb in range(4):
        for nb in range(2):
            d = ACC + (kb*2+nb)*16
            p = 16 + ((kb*2+nb) & 3) * 8
            for i in range(8):
                A(f"v_cvt_pk_bf16_f32 v{p+i}, v{d+2*i}, v{d+2*i+1}")
            A(f"buffer_store_dwordx4 {v(p,4)}, v1, s[{S_OUT}:{S_OUT+3}], s{sT+2} offen offset:{nb*2048}")
            A(f"buffer_store_dwordx4 {v(p+4,4)}, v1, s[{S_OUT}:{S_OUT+3}], s{sT+2} offen offset:{nb*2048+1024}")
        if kb < 3:
            A(f"s_add_u32 s{sT+2}, s{sT+2}, 8192")
    if STAMPS:
        A("s_waitcnt vmcnt(0)")
        stamp(A, 4); stamp(A, 6, True)
        stamp_flush(A, 7, 52, 53, sW)
    A.label(done)
    A("s_endpgm")
    A.end_kernel(name, 224, 100)
    A.add_launch(name, 256, 512, 131072)

if __name__ == "__main__":
    A = Asm()
    if "stamps" in sys.argv: STAMPS = True
    gen_k1(A)
    out = sys.argv[1] if len(sys.argv) > 1 else "k.s"
    open(out, "w").write(A.text(HEADER))
```

```python
from asmlib import *
import gen
from gen import *
import math, struct
from gen_k2 import f32hex, LOG2E, QSCALE, GC1, GC2, BIGL, NEGBIG, MFLOOR

FORCE_SLOW = False
SPIN_MAX = 1 << 18
KV_SIGNAL_STAGE = 0

def gen_fused(A):
    name = "main_kernel"
    A.begin_kernel(name)
    done = A.newlabel("f_done")
    S_XN, S_WG, S_WU, S_WQ, S_KF, S_VF, S_H, S_CTX = 8, 12, 16, 20, 24, 28, 32, 36
    S_CKV, S_W, S_X, S_KVO = 24, 28, 32, 32
    S_DBG = 76
    sW, sH, sI, sP, sC, sG, sWR = 40, 41, 42, 43, 44, 45, 46
    sSX, sSWF, sSWQ, sM0 = 47, 48, 49, 50
    sFT, sRBF, sRBO = 51, 52, 53
    sBLK, sIT, sNIT = 54, 55, 56
    sKN, sVN = 57, 58
    sM0K, sM0V = 59, 60
    sHB = 61
    sPASS = 62
    sKJ, sVJ = 63, 64
    sB0 = 65
    sT = 66
    sMK = 12
    sSX1, sSW1, sM0X, sM0W = 54, 55, 56, 57
    sWM, sWN = sG, sWR
    A(f"""
    s_cmp_ge_u32 s2, 256
    s_cbranch_scc1 {done}
    s_load_dwordx8 s[56:63], s[0:1], {KA_X}
    s_load_dwordx4 s[64:67], s[0:1], {KA_WUV}
    s_load_dwordx4 s[68:71], s[0:1], {KA_WG}
    s_load_dwordx2 s[100:101], s[0:1], {KA_WD}
    s_load_dwordx4 s[72:75], s[0:1], {KA_DBG}
    v_lshrrev_b32 v1, 6, v0
    v_and_b32 v0, 63, v0
    v_readfirstlane_b32 s{sW}, v1
    s_and_b32 s{sH}, s2, 7
    s_lshl_b32 s{sH}, s{sH}, 2
    s_lshr_b32 s{sI}, s2, 3
    s_and_b32 s{sI}, s{sI}, 3
    s_add_u32 s{sH}, s{sH}, s{sI}                ; head
    s_lshr_b32 s{sI}, s2, 5
    s_and_b32 s{sP}, s{sW}, 1
    s_lshr_b32 s{sC}, s{sW}, 1
    s_lshr_b32 s{sG}, s{sW}, 2
    s_and_b32 s{sWR}, s{sW}, 3
    v_lshlrev_b32 v1, 4, v0
    s_waitcnt lgkmcnt(0)
    s_mov_b32 s4, s74
    s_mov_b32 s5, s75
    s_mov_b32 s6, s66
    s_mov_b32 s7, s67
    """)
    vL16 = 1
    stamp(A, 0); stamp(A, 8, True)
    srd(A, S_X, 56, 57, 2048*1024)
    srd(A, S_CKV, 58, 59, 2048*1024)
    srd(A, S_WQ, 60, 61, 512*8192)
    A(f"""
    s_cmp_lt_u32 s{sW}, 4
    s_cselect_b32 s{S_W}, s62, s64
    s_cselect_b32 s{S_W+1}, s63, s65
    s_mov_b32 s{S_W+2}, {512*8192:#x}
    s_mov_b32 s{S_W+3}, 0x00020000
    """)
    srd(A, S_WG, 68, 69, 512*3584)
    srd(A, S_WU, 70, 71, 512*3584)
    srd(A, S_DBG, 72, 73, 256)
    sGRP, sXCC, sSLOW = 3, 74, 75
    srd(A, S_XN, 4, 5, 2048*1024, WS_XN)
    sROW = 58
    vLN = 200
    A(f"""
    s_and_b32 s{sGRP}, s2, 7
    s_sub_u32 s{sB0}, 15, s{sI}
    s_getreg_b32 s{sXCC}, hwreg(HW_REG_XCC_ID)
    s_and_b32 s{sXCC}, s{sXCC}, 7
    s_lshl_b32 s{sXCC}, s{sXCC}, 3
    s_cmp_lt_u32 s{sH}, 16
    s_cselect_b32 s{sROW}, s{sI}, s{sB0}
    s_lshl_b32 s{sROW}, s{sROW}, 7
    s_and_b32 s{sT}, s{sH}, 15
    s_lshl_b32 s{sT}, s{sT}, 3
    s_add_u32 s{sROW}, s{sROW}, s{sT}
    s_add_u32 s{sROW}, s{sROW}, s{sW}
    s_lshl_b32 s{sT+1}, s{sROW}, 10
    s_lshl_b32 s{sT}, s{sW}, 10
    s_add_u32 m0, s{sT}, 0x20000
    v_add_u32 v{vLN+4}, 0x20000, v{vL16}
    v_add_u32 v{vLN+4}, s{sT}, v{vLN+4}
    buffer_load_dwordx4 v{vL16}, s[{S_X}:{S_X+3}], s{sT+1} offen lds
    """)
    lsk = A.newlabel("f_nocen")
    A(f"""
    v_mov_b32 v14, 0
    v_mov_b32 v15, 1
    s_mov_b64 s[{sT+2}:{sT+3}], 1
    s_lshl_b64 s[{sT+2}:{sT+3}], s[{sT+2}:{sT+3}], s{sXCC}
    v_mov_b32 v8, s{sT+2}
    v_mov_b32 v9, s{sT+3}
    s_lshl_b32 s{sT}, s{sGRP}, 3
    s_cmp_lg_u32 s{sW}, 0
    s_cbranch_scc1 {lsk}
    s_mov_b64 exec, 1
    buffer_atomic_add_x2 v[8:9], v14, s[{S_DBG}:{S_DBG+3}], s{sT} offen sc1
    s_mov_b64 exec, -1
    """)
    A.label(lsk)
    A(f"""
    s_cmp_lt_u32 s{sH}, 14
    s_cselect_b32 s{sRBF}, s{sI}, s{sB0}
    s_cselect_b32 s{sRBO}, s{sB0}, s{sI}
    s_sub_u32 s{sFT}, s{sH}, 14
    s_cselect_b32 s{sFT}, s{sH}, s{sFT}
    s_cmp_ge_u32 s{sFT}, 14
    s_cselect_b32 s{sFT}, 0, s{sFT}
    """)
    vDX, vDX2, vDW, vDW2 = 2, 3, 4, 5
    A(f"""
    v_lshrrev_b32 v6, 2, v0
    v_lshlrev_b32 v6, 10, v6
    v_lshrrev_b32 v7, 4, v0
    v_and_b32 v8, 3, v0
    v_xor_b32 v8, v8, v7
    v_lshlrev_b32 v8, 4, v8
    v_add_u32 v{vDX}, v6, v8
    v_add_u32 v{vDX2}, {16*1024-1024}, v{vDX}
    v_lshlrev_b32 v6, 13, v7
    v_and_b32 v8, 15, v0
    v_lshlrev_b32 v9, 2, v7
    v_xor_b32 v8, v8, v9
    v_lshlrev_b32 v8, 4, v8
    v_add_u32 v{vDW}, v6, v8
    v_add_u32 v{vDW2}, {32768-1024}, v{vDW}
    s_lshl_b32 s{sSX1}, s{sI}, 18
    s_lshl_b32 s{sT+2}, s{sW}, 15
    s_add_u32 s{sSX1}, s{sSX1}, s{sT+2}
    s_lshl_b32 s{sSW1}, s{sWN}, 16
    s_lshl_b32 s{sT+2}, s{sH}, 8
    s_add_u32 s{sSW1}, s{sSW1}, s{sT+2}
    s_lshl_b32 s{sM0X}, s{sW}, 11
    s_add_u32 s{sM0W}, s{sM0X}, 0x10000
    """)
    def pieces(st):
        buf = st & 3
        return [
         [f"s_add_u32 m0, s{sM0X}, {buf*16384}", f"s_add_u32 s{sT+2}, s{sSX1}, {st*64}",
          f"buffer_load_dwordx4 v{vDX}, s[{S_CKV}:{S_CKV+3}], s{sT+2} offen lds"],
         [f"buffer_load_dwordx4 v{vDX2}, s[{S_CKV}:{S_CKV+3}], s{sT+2} offen offset:1024 lds"],
         [f"s_add_u32 m0, s{sM0W}, {buf*16384}", f"s_add_u32 s{sT+3}, s{sSW1}, {st*32*8192}",
          f"buffer_load_dwordx4 v{vDW}, s[{S_W}:{S_W+3}], s{sT+3} offen lds"],
         [f"buffer_load_dwordx4 v{vDW2}, s[{S_W}:{S_W+3}], s{sT+3} offen offset:1024 lds"]]
    for st in range(3):
        for p in pieces(st):
            for l in p: A(l)
    A(f"""
    s_mov_b32 s{sT}, {WS_KF:#x}
    s_cmp_lt_u32 s{sWN}, 2
    s_cselect_b32 s{sT}, s{sT}, {WS_VF:#x}
    s_add_u32 s{S_KVO}, s4, s{sT}
    s_addc_u32 s{S_KVO+1}, s5, 0
    s_mov_b32 s{S_KVO+2}, {16*1024*1024:#x}
    s_mov_b32 s{S_KVO+3}, 0x00020000
    """)
    vRX = [10, 11]; vRW = [12, 13]
    A(f"""
    v_and_b32 v6, 31, v0
    v_lshrrev_b32 v7, 5, v0
    v_lshrrev_b32 v8, 2, v6
    v_and_b32 v8, 3, v8
    v_xor_b32 v8, v8, v7
    v_lshlrev_b32 v8, 4, v8
    v_lshlrev_b32 v6, 6, v6
    v_add_u32 v6, v6, v8
    s_lshl_b32 s{sT+2}, s{sWM}, 13
    v_add_u32 v{vRX[0]}, s{sT+2}, v6
    v_xor_b32 v{vRX[1]}, 32, v{vRX[0]}
    v_lshrrev_b32 v6, 5, v0
    v_lshlrev_b32 v6, 11, v6
    v_bfe_u32 v7, v0, 2, 2
    v_lshlrev_b32 v8, 8, v7
    v_add_u32 v6, v6, v8
    v_lshlrev_b32 v8, 6, v7
    v_add_u32 v6, v6, v8
    v_bfe_u32 v8, v0, 4, 1
    v_lshlrev_b32 v8, 5, v8
    v_add_u32 v6, v6, v8
    v_and_b32 v8, 3, v0
    v_lshlrev_b32 v8, 3, v8
    v_add_u32 v198, v6, v8
    s_lshr_b32 s{sT+2}, s{sWN}, 1
    s_lshl_b32 s{sT+2}, s{sT+2}, 13
    s_add_u32 s{sT+2}, s{sT+2}, 0x10000
    v_add_u32 v6, s{sT+2}, v198
    s_and_b32 s{sT+2}, s{sWN}, 1
    s_lshl_b32 s{sT+2}, s{sT+2}, 7
    v_xor_b32 v{vRW[0]}, s{sT+2}, v6
    v_xor_b32 v{vRW[1]}, 64, v{vRW[0]}
    """)
    f = vLN + 4
    t = vLN + 12
    A("s_waitcnt vmcnt(12)")
    A(f"ds_read_b128 {v(vLN,4)}, v{vLN+4}")
    A("s_waitcnt lgkmcnt(0)")
    for i in range(4):
        A(f"v_lshlrev_b32 v{f+2*i}, 16, v{vLN+i}")
        A(f"v_and_b32 v{f+2*i+1}, 0xffff0000, v{vLN+i}")
    A(f"v_add_f32 v{t}, v{f}, v{f+1}")
    for i in range(2, 8):
        A(f"v_add_f32 v{t}, v{t}, v{f+i}")
    wave_allreduce_add(A, t, None, sT+4)
    A(f"v_mul_f32 v{t}, {1.0/512!r}, v{t}")
    A(f"v_sub_f32 v{t+1}, v{f}, v{t}")
    A(f"v_mul_f32 v{t+2}, v{t+1}, v{t+1}")
    for i in range(1, 8):
        A(f"v_sub_f32 v{t+1}, v{f+i}, v{t}")
        A(f"v_fmac_f32 v{t+2}, v{t+1}, v{t+1}")
    wave_allreduce_add(A, t+2, None, sT+4)
    A(f"v_mul_f32 v{t+2}, {1.0/512!r}, v{t+2}")
    round_bf16(A, t)
    round_bf16(A, t+2)
    A(f"v_add_f32 v{t+2}, 0x3727c5ac, v{t+2}")
    round_bf16(A, t+2)
    A(f"v_sqrt_f32 v{t+2}, v{t+2}")
    A("s_nop 0")
    round_bf16(A, t+2)
    A(f"v_rcp_f32 v{t+3}, v{t+2}")
    A("s_nop 0")
    for i in range(8):
        A(f"v_sub_f32 v{f+i}, v{f+i}, v{t}")
        round_bf16(A, f+i)
        A(f"v_mul_f32 v{t+4}, v{f+i}, v{t+3}")
        A(f"v_fma_f32 v{t+5}, -v{t+4}, v{t+2}, v{f+i}")
        A(f"v_fma_f32 v{f+i}, v{t+5}, v{t+3}, v{t+4}")
    for i in range(4):
        A(f"v_cvt_pk_bf16_f32 v{vLN+i}, v{f+2*i}, v{f+2*i+1}")
    A(f"""
    v_lshrrev_b32 v6, 1, v0
    v_lshlrev_b32 v6, 10, v6
    v_and_b32 v7, 1, v0
    v_lshlrev_b32 v7, 9, v7
    v_add_u32 v6, v6, v7
    s_lshr_b32 s{sT+2}, s{sROW}, 5
    s_lshl_b32 s{sT+2}, s{sT+2}, 15
    s_and_b32 s{sT+3}, s{sROW}, 31
    s_lshl_b32 s{sT+3}, s{sT+3}, 4
    s_add_u32 s{sT+2}, s{sT+2}, s{sT+3}
    buffer_store_dwordx4 v[{vLN}:{vLN+3}], v6, s[{S_XN}:{S_XN+3}], s{sT+2} offen sc0 sc1
    """)
    vCEN = 232
    def census_load(zero):
        A(f"s_lshl_b32 s{sT+6}, s{sGRP}, 3")
        A(f"buffer_load_dwordx2 {v(vCEN,2)}, v{zero}, s[{S_DBG}:{S_DBG+3}], s{sT+6} offen sc1")
    def census_eval():
        A(f"""
        v_readfirstlane_b32 s{sT+6}, v{vCEN}
        v_readfirstlane_b32 s{sT+7}, v{vCEN+1}
        s_lshr_b64 s[{sT+6}:{sT+7}], s[{sT+6}:{sT+7}], s{sXCC}
        s_and_b32 s{sT+6}, s{sT+6}, 0xff
        s_cmp_lg_u32 s{sT+6}, 32
        s_cselect_b32 s{sSLOW}, 1, 0
        """)
        if FORCE_SLOW: A(f"s_mov_b32 s{sSLOW}, 1")
    def signal(one, zero, soff):
        A("s_mov_b64 exec, 1")
        A(f"buffer_atomic_add v{one}, v{zero}, s[{S_DBG}:{S_DBG+3}], s{soff} offen sc1")
        A("s_mov_b64 exec, -1")
    def flag_add(word_sgpr_expr_lines, sreg):
        for l in word_sgpr_expr_lines: A(l)
        A("s_mov_b64 exec, 1")
        A(f"buffer_atomic_add v15, v14, s[{S_DBG}:{S_DBG+3}], s{sreg} offen sc1")
        A("s_mov_b64 exec, -1")
    def flag_wait(vreg, soff, target):
        lok = A.newlabel("fl_ok"); lsp = A.newlabel("fl_spin")
        A(f"s_mov_b32 s{sT+7}, 0")
        A("s_nop 0")
        A.label(lsp)
        A(f"""
        v_readfirstlane_b32 s{sT+6}, v{vreg}
        s_cmp_ge_u32 s{sT+6}, {target}
        s_cbranch_scc1 {lok}
        s_add_u32 s{sT+7}, s{sT+7}, 1
        s_cmp_ge_u32 s{sT+7}, {SPIN_MAX}
        s_cbranch_scc1 {lok}
        s_sleep 8
        buffer_load_dword v{vreg}, v14, s[{S_DBG}:{S_DBG+3}], s{soff} offen sc1
        s_waitcnt vmcnt(0)
        s_branch {lsp}
        """)
        A.label(lok)

    sFLN, sFKV = 58, 59
    A(f"s_lshl_b32 s{sFLN}, s{sI}, 2")
    A(f"s_add_u32 s{sFLN}, s{sFLN}, 64")
    A(f"s_lshl_b32 s{sFKV}, s{sH}, 2")
    A(f"s_add_u32 s{sFKV}, s{sFKV}, 128")
    ACC = 64
    FR = [16, 40]
    def reads(ks):
        st, kp = ks >> 1, ks & 1
        buf = st & 3
        fr = FR[ks & 1]
        L = []
        for nb in range(2):
            for tt in range(2):
                L.append(f"ds_read_b64_tr_b16 {v(fr+16+nb*4+tt*2,2)}, v{vRW[nb]} offset:{buf*16384 + kp*4096 + tt*1024}")
        for kb in range(4):
            L.append(f"ds_read_b128 {v(fr+kb*4,4)}, v{vRX[kp]} offset:{buf*16384 + kb*2048}")
        return L
    lblV = A.newlabel("p1_v"); lblE = A.newlabel("p1_epi")
    stamp(A, 1)
    A("s_waitcnt vmcnt(0)")
    A("s_barrier")
    lsk = A.newlabel("p1_nf")
    A(f"s_cmp_lg_u32 s{sW}, 0")
    A(f"s_cbranch_scc1 {lsk}")
    signal(15, 14, sFLN)
    A.label(lsk)
    if gen.PRETOUCH:
        A(f"""
        s_lshl_b32 s{sT+2}, s2, 3
        s_add_u32 s{sT+2}, s{sT+2}, s{sW}
        s_lshl_b32 s{sT+2}, s{sT+2}, 7
        v_lshlrev_b32 v8, 18, v0
        v_add_u32 v8, s{sT+2}, v8
        buffer_load_dword v9, v8, s[{S_WQ}:{S_WQ+3}], 0 offen
        buffer_load_dword v9, v8, s[{S_WG}:{S_WG+3}], 0 offen
        buffer_load_dword v9, v8, s[{S_WU}:{S_WU+3}], 0 offen
        """)
    A(f"s_cmp_ge_u32 s{sWN}, 2")
    A(f"s_cbranch_scc1 {lblV}")
    vFL = 199
    for ver in range(2):
        if ver == 1: A.label(lblV)
        for r in reads(0): A(r)
        for st in range(16):
            if st > 0:
                n_out = 4 if st < 14 else (0 if st == 14 else None)
                if n_out is not None:
                    A(f"s_waitcnt vmcnt({n_out})")
                    A("s_barrier")
            pcs = pieces(st + 3) if st + 3 < 16 else []
            if st == 14:
                A(f"buffer_load_dword v{vFL}, v14, s[{S_DBG}:{S_DBG+3}], s{sFLN} offen sc1")
                census_load(14)
            for kp in range(2):
                ks = 2*st + kp
                fr = FR[ks & 1]
                nxt = reads(ks + 1) if ks + 1 < 32 else []
                idx = 0
                for kb in range(4):
                    for nb in range(2):
                        if nb == 0:
                            A(f"s_waitcnt lgkmcnt({min((8 - (4 + kb + 1)) + idx, 15)})")
                        d = ACC + (kb*2+nb)*16
                        xa, wa = fr + kb*4, fr + 16 + nb*4
                        c = None if ks == 0 else d
                        if ver == 0: mfma(A, d, wa, xa, c)
                        else:        mfma(A, d, xa, wa, c)
                        if idx < len(nxt):
                            A(nxt[idx]); idx += 1
                        if pcs and (kb*2+nb) % 4 == 1:
                            for l in pcs.pop(0): A(l)
        if ver == 0: A(f"s_branch {lblE}")
    A.label(lblE)
    stamp(A, 2)
    vDF, vDQ = 192, 193
    vRXl, vRXh, vRWl, vRWh = 194, 195, 196, 197
    STG = 40960
    A(f"""
    v_lshrrev_b32 v7, 4, v0
    v_and_b32 v8, 15, v0
    v_lshlrev_b32 v9, 2, v7
    v_xor_b32 v8, v8, v9
    v_lshlrev_b32 v8, 4, v8
    v_mul_u32_u24 v6, 3584, v7
    v_add_u32 v{vDF}, v6, v8
    v_lshlrev_b32 v6, 13, v7
    v_add_u32 v{vDQ}, v6, v8
    s_cmp_lt_u32 s{sW}, 4
    s_cselect_b32 s{sT}, s{sRBF}, s{sRBO}
    s_lshl_b32 s{sT}, s{sT}, 2
    s_add_u32 s{sT}, s{sT}, s{sWR}
    s_lshl_b32 s{sSX}, s{sT}, 15
    s_mul_i32 s{sSWF}, s{sW}, {4*3584}
    s_lshl_b32 s{sT}, s{sFT}, 8
    s_add_u32 s{sSWF}, s{sSWF}, s{sT}
    s_lshl_b32 s{sSWQ}, s{sW}, 15
    s_lshl_b32 s{sT}, s{sH}, 8
    s_add_u32 s{sSWQ}, s{sSWQ}, s{sT}
    s_lshl_b32 s{sM0}, s{sW}, 10
    s_lshl_b32 s{sNIT}, s{sW}, 11
    s_lshl_b32 s{sT}, s{sP}, 12
    v_add_u32 v{vRXl}, s{sT}, v{vL16}
    v_add_u32 v{vRXh}, {2*STG}, v{vRXl}
    s_lshl_b32 s{sT}, s{sC}, 6
    v_xor_b32 v6, s{sT}, v198
    v_add_u32 v{vRWl}, 16384, v6
    v_add_u32 v{vRWh}, {2*STG}, v{vRWl}
    s_waitcnt vmcnt(0)
    s_barrier
    """)
    census_eval()
    flag_wait(vFL, sFLN, 32)
    def gpieces(st):
        b = (st & 3) * STG
        return [
         [f"s_add_u32 m0, s{sNIT}, {b}", f"s_add_u32 s{sT+1}, s{sSX}, {st*2048}",
          f"buffer_load_dwordx4 v{vL16}, s[{S_XN}:{S_XN+3}], s{sT+1} offen sc1 lds"],
         [f"buffer_load_dwordx4 v{vL16}, s[{S_XN}:{S_XN+3}], s{sT+1} offen offset:1024 sc1 lds"],
         [f"s_add_u32 m0, s{sM0}, {b+16384}", f"s_add_u32 s{sT+2}, s{sSWF}, {st*32*3584}",
          f"buffer_load_dwordx4 v{vDF}, s[{S_WG}:{S_WG+3}], s{sT+2} offen lds"],
         [f"s_add_u32 m0, s{sM0}, {b+24576}", f"s_add_u32 s{sT+3}, s{sSWQ}, {st*32*8192}",
          f"buffer_load_dwordx4 v{vDF}, s[{S_WU}:{S_WU+3}], s{sT+2} offen lds"],
         [f"s_add_u32 m0, s{sM0}, {b+32768}", "s_nop 0",
          f"buffer_load_dwordx4 v{vDQ}, s[{S_WQ}:{S_WQ+3}], s{sT+3} offen lds"]]
    for st in range(3):
        for p in gpieces(st):
            for l in p: A(l)
    A(f"""
    s_lshl_b32 s{sT+4}, s{sH}, 19
    s_lshl_b32 s{sT+5}, s{sI}, 16
    s_add_u32 s{sT+4}, s{sT+4}, s{sT+5}
    s_lshl_b32 s{sT+5}, s{sWM}, 15
    s_add_u32 s{sT+4}, s{sT+4}, s{sT+5}
    s_and_b32 s{sT+5}, s{sWN}, 1
    s_lshl_b32 s{sT+5}, s{sT+5}, 12
    s_add_u32 s{sT+4}, s{sT+4}, s{sT+5}
    """)
    lwt = A.newlabel("p1e_wt"); lje = A.newlabel("p1e_join")
    A(f"s_cmp_lg_u32 s{sSLOW}, 0")
    A(f"s_cbranch_scc1 {lwt}")
    for wt in range(2):
        if wt: A.label(lwt)
        fl = " sc0 sc1" if wt else ""
        for kb in range(4):
            for nb in range(2):
                d = ACC + (kb*2+nb)*16
                p = 200 + ((kb*2+nb) & 3) * 8
                for i in range(8):
                    A(f"v_cvt_pk_bf16_f32 v{p+i}, v{d+2*i}, v{d+2*i+1}")
                A(f"buffer_store_dwordx4 {v(p,4)}, v{vL16}, s[{S_KVO}:{S_KVO+3}], s{sT+4} offen offset:{nb*2048}{fl}")
                A(f"buffer_store_dwordx4 {v(p+4,4)}, v{vL16}, s[{S_KVO}:{S_KVO+3}], s{sT+4} offen offset:{nb*2048+1024}{fl}")
            if kb < 3:
                A(f"s_add_u32 s{sT+4}, s{sT+4}, 8192")
        if not wt: A(f"s_branch {lje}")
    A.label(lje)
    stamp(A, 3)
    srd(A, S_KF, 4, 5, 16*1024*1024, WS_KF)
    srd(A, S_VF, 4, 5, 16*1024*1024, WS_VF)
    srd(A, S_H, 4, 5, 64*112*1024, WS_H)
    srd(A, S_CTX, 4, 5, 16*1024*1024, WS_CTX)
    FR = [8, 36]
    XOFF = [0, 2048, 8192, 10240]
    def greads(ks):
        st, kp = ks >> 1, ks & 1
        buf = st & 3
        fr = FR[ks & 1]
        rx = vRXl if buf < 2 else vRXh
        rw = vRWl if buf < 2 else vRWh
        bo = (buf & 1) * STG
        def wr(sub):
            return [f"ds_read_b64_tr_b16 {v(fr+sub*4+tt*2,2)}, v{rw} offset:{bo + sub*8192 + kp*4096 + tt*1024}" for tt in range(2)]
        def xr(i):
            return [f"ds_read_b128 {v(fr+12+i*4,4)}, v{rx} offset:{bo + XOFF[i] + kp*1024}"]
        return wr(0) + xr(0) + xr(1) + wr(1) + wr(2) + xr(2) + xr(3)
    MF = [(0, 0, 0, 3), (1, 0, 1, 4), (2, 1, 0, 6), (3, 1, 1, 6), (4, 2, 0, 8), (5, 2, 1, 8), (6, 2, 2, 9), (7, 2, 3, 10)]
    A(f"v_mov_b32 v4, 0")
    A(f"v_mov_b32 v5, 1")
    vFK = 199
    A("s_waitcnt vmcnt(0)")
    A("s_barrier")
    for r in greads(0): A(r)
    lsk = A.newlabel("p2_ns")
    A(f"s_cmp_lg_u32 s{sW}, 7")
    A(f"s_cbranch_scc1 {lsk}")
    signal(5, 4, sFKV)
    A.label(lsk)
    for st in range(16):
        if st > 0:
            n_out = 5 if st < 14 else (0 if st == 14 else None)
            if n_out is not None:
                A(f"s_waitcnt vmcnt({n_out})")
                A("s_barrier")
        pcs = gpieces(st + 3) if st + 3 < 16 else []
        if st == 14:
            A(f"buffer_load_dword v{vFK}, v4, s[{S_DBG}:{S_DBG+3}], s{sFKV} offen sc1")
        for kp in range(2):
            ks = 2*st + kp
            fr = FR[ks & 1]
            nxt = greads(ks + 1) if ks + 1 < 32 else []
            idx = 0
            prev_need = 0
            for (acc, sub, xi, need) in MF:
                if need > prev_need:
                    A(f"s_waitcnt lgkmcnt({min((10 - need) + idx, 15)})")
                    prev_need = need
                d = ACC + acc*16
                mfma(A, d, fr + sub*4, fr + 12 + xi*4, None if ks == 0 else d)
                for _ in range(2 if acc in (0, 1) else 1):
                    if idx < len(nxt):
                        A(nxt[idx]); idx += 1
                if pcs and (kp*8 + acc) % 3 == 1:
                    for l in pcs.pop(0): A(l)
        assert not pcs
    stamp(A, 4)
    A(f"""
    s_waitcnt vmcnt(0)
    s_barrier
    v_mov_b32 v14, 0
    s_mov_b32 s{sPASS}, s{sFKV}
    """)
    sFKV = sPASS
    A(f"""
    s_lshl_b32 s{sHB}, s{sH}, 19
    s_lshl_b32 s{sT}, s{sW}, 12
    s_add_u32 s{sHB}, s{sHB}, s{sT}
    s_lshl_b32 s{sM0}, s{sW}, 12
    s_mov_b32 s{sKJ}, 0
    s_mov_b32 s{sVJ}, 0
    s_mov_b32 s{sKN}, s{sHB}
    s_mov_b32 s{sVN}, s{sHB}
    s_mov_b32 s{sM0K}, s{sM0}
    s_add_u32 s{sM0V}, s{sM0}, 65536
    """)
    sDS = 72
    def kv_issue(isV, defer=False):
        sJ = sVJ if isV else sKJ
        sN = sVN if isV else sKN
        sMM = sM0V if isV else sM0K
        S = S_VF if isV else S_KF
        sD = sDS + (1 if isV else 0)
        A(f"""
        s_mov_b32 m0, s{sMM}
        s_mov_b32 s{sD}, s{sN}
        s_xor_b32 s{sMM}, s{sMM}, 32768
        s_add_u32 s{sN}, s{sN}, 32768
        s_cmp_eq_u32 s{sJ}, s{sB0}
        s_cselect_b32 s{sN}, s{sHB}, s{sN}
        s_add_u32 s{sJ}, s{sJ}, 1
        """)
        L = [f"buffer_load_dwordx4 v{vL16}, s[{S}:{S+3}], s{sD} offen offset:{q*1024} lds" for q in range(4)]
        if defer: return L
        for l in L: A(l)
    flag_wait(vFK, sFKV, 8)
    kv_issue(False)
    kv_issue(True)
    kv_issue(False)
    T = 200
    A(f"s_mov_b32 s{sT+2}, {f32hex(QSCALE)}")
    A(f"""
    s_lshl_b32 s{sT}, s{sP}, 14                   ; 2p*8192
    s_lshl_b32 s{sT+1}, s{sC}, 11                 ; 2c*1024
    s_add_u32 s{sT}, s{sT}, s{sT+1}
    s_add_u32 s{sT}, s{sT}, {96*1024}
    v_add_u32 v6, s{sT}, v{vL16}
    """)
    for qi in range(4):
        d = ACC + (4+qi)*16
        for r in range(16):
            A(f"v_mul_f32 v{d+r}, s{sT+2}, v{d+r}")
        p = T + (qi & 1)*8
        for i in range(8):
            A(f"v_cvt_pk_bf16_f32 v{p+i}, v{d+2*i}, v{d+2*i+1}")
        xb_off = [0, 8192, 32768, 40960][qi]
        A(f"ds_write_b128 v6, {v(p,4)} offset:{xb_off}")
        A(f"ds_write_b128 v6, {v(p+4,4)} offset:{xb_off+1024}")
    NTOUCH = 0
    if gen.PRETOUCH:
        NTOUCH = 2
        A(f"""
        s_lshl_b32 s{sT+2}, s2, 3
        s_add_u32 s{sT+2}, s{sT+2}, s{sW}
        s_lshl_b32 s{sT+2}, s{sT+2}, 7
        v_lshlrev_b32 v14, 18, v0
        v_add_u32 v14, s{sT+2}, v14
        """)
        srd(A, 68, 6, 7, 4096*1024)
        A("buffer_load_dword v5, v14, s[68:71], 0 offen")
        srd(A, 68, 100, 101, 1792*1024)
        A("buffer_load_dword v5, v14, s[68:71], 0 offen")
    A(f"s_mov_b32 s{sT+2}, {f32hex(GC1)}")
    A(f"s_mov_b32 s{sT+3}, {f32hex(GC2)}")
    A(f"v_mov_b32 v{T+16}, s{sT+2}")
    A(f"""
    s_lshl_b32 s{sT}, s{sRBF}, 2
    s_lshl_b32 s{sT+1}, s{sP}, 1
    s_add_u32 s{sT}, s{sT}, s{sT+1}
    s_mul_i32 s{sT}, s{sT}, {112*1024}
    s_lshl_b32 s{sT+1}, s{sFT}, 13
    s_add_u32 s{sT}, s{sT}, s{sT+1}
    s_lshl_b32 s{sT+1}, s{sC}, 11
    s_add_u32 s{sT}, s{sT}, s{sT+1}
    s_cmp_lt_u32 s{sH}, 28
    s_cselect_b32 s{sT}, s{sT}, 0x7ff00000
    """)
    for j in range(2):
        g0 = ACC + j*16
        u0 = ACC + (2+j)*16
        for r in range(16):
            x = g0 + r
            t = T + 18 + (r & 3)
            A(f"v_mul_f32 v{t}, v{x}, v{x}")
            A(f"v_fma_f32 v{t}, v{t}, s{sT+3}, v{T+16}")
            A(f"v_mul_f32 v{t}, v{t}, v{x}")
            A(f"v_exp_f32 v{t}, v{t}")
            A(f"v_mul_f32 v{x}, v{x}, v{u0+r}")
            A(f"v_add_f32 v{t}, 1.0, v{t}")
            A(f"v_rcp_f32 v{t}, v{t}")
            A("s_nop 0")
            A(f"v_mul_f32 v{x}, v{x}, v{t}")
        p = T + j*8
        for i in range(8):
            A(f"v_cvt_pk_bf16_f32 v{p+i}, v{g0+2*i}, v{g0+2*i+1}")
        A(f"buffer_store_dwordx4 {v(p,4)}, v{vL16}, s[{S_H}:{S_H+3}], s{sT} offen")
        A(f"buffer_store_dwordx4 {v(p+4,4)}, v{vL16}, s[{S_H}:{S_H+3}], s{sT} offen offset:1024")
        if j == 0:
            A(f"s_add_u32 s{sT}, s{sT}, {112*1024}")
    stamp(A, 5)
    vKA, vVA, vL, vM, vTMP, vD = 2, 3, 4, 5, 6, 7
    F = 8; Q = 40; Q2 = 72; S = 104; NM = 136; P = 152; O = 168; T = 232
    A(f"""
    s_waitcnt lgkmcnt(0)
    s_barrier
    s_cmp_eq_u32 s{sRBF}, s{sB0}
    s_cselect_b32 s{sT}, 0, 32768
    s_cselect_b32 s{sT+1}, 32768, 0
    s_lshl_b32 s{sT+2}, s{sWR}, 13
    s_add_u32 s{sT+2}, s{sT+2}, {96*1024}
    s_add_u32 s{sT}, s{sT}, s{sT+2}
    s_add_u32 s{sT+1}, s{sT+1}, s{sT+2}
    v_add_u32 v{vTMP}, s{sT}, v{vL16}
    v_add_u32 v{vD}, s{sT+1}, v{vL16}
    """)
    for ks in range(8):
        A(f"ds_read_b128 {v(Q+4*ks,4)}, v{vTMP} offset:{ks*1024}")
    for ks in range(8):
        A(f"ds_read_b128 {v(Q2+4*ks,4)}, v{vD} offset:{ks*1024}")
    A(f"""
    s_waitcnt lgkmcnt(0)
    v_and_b32 v{vD}, 31, v0
    v_lshrrev_b32 v{vTMP}, 5, v0
    v_lshlrev_b32 v{vTMP}, 2, v{vTMP}
    v_sub_u32 v{vD}, v{vD}, v{vTMP}
    s_lshl_b32 s{sT}, s{sWR}, 5
    s_lshl_b32 s{sT+1}, s{sG}, 6
    s_sub_u32 s{sT}, s{sT}, s{sT+1}
    v_add_u32 v{vD}, s{sT}, v{vD}
    s_mov_b32 s{sPASS}, 0
    s_mov_b32 s{sBLK}, s{sB0}
    s_lshl_b32 s{sT}, s{sG}, 14
    v_add_u32 v{vKA}, s{sT}, v{vL16}              ; K(0) slot 0
    s_add_u32 s{sT}, s{sT}, {65536+32768}
    v_add_u32 v{vVA}, s{sT}, v{vL16}
    """)
    A("s_waitcnt vmcnt(8)")
    A("s_barrier")

    def mask_ops(kb):
        L = []
        for r0 in range(0, 16, 4):
            for j in range(4):
                r = r0 + j
                c = 32*kb + 8*(r >> 2) + (r & 3)
                L.append(f"v_cmp_gt_i32 s[{sMK+2*j}:{sMK+2*j+1}], {c}, v{vD}")
            for j in range(4):
                r = r0 + j
                L.append(f"v_cndmask_b32 v{S+16*kb+r}, v{S+16*kb+r}, v{T+15}, s[{sMK+2*j}:{sMK+2*j+1}]")
        return L
    def max_ops(kb, dst):
        x = S + 16*kb
        L = [f"v_max3_f32 v{dst}, v{x}, v{x+1}, v{x+2}"]
        for r in range(3, 15, 2):
            L.append(f"v_max3_f32 v{dst}, v{dst}, v{x+r}, v{x+r+1}")
        L.append(f"v_max_f32 v{dst}, v{dst}, v{x+15}")
        L.append(f"v_mov_b32 v{dst+1}, v{dst}")
        L.append("s_nop 1")
        L.append(f"v_permlane32_swap_b32 v{dst}, v{dst+1}")
        L.append("s_nop 1")
        L.append(f"v_max_f32 v{dst}, v{dst}, v{dst+1}")
        return L
    LS = [T+12, vL]
    def sm_ops(kb):
        x = S + 16*kb
        src, dst, t1 = LS[1-kb], LS[kb], T+kb
        L = []
        for r in range(0, 16, 2):
            L.append(f"v_exp_f32 v{x+r}, v{x+r}")
            L.append(f"v_exp_f32 v{x+r+1}, v{x+r+1}")
            if r >= 2:
                q = r - 2
                if q == 0:
                    L.append(f"v_add_f32 v{dst}, v{src}, v{x}")
                    L.append(f"v_cvt_pk_bf16_f32 v{P+8*kb}, v{x}, v{x+1}")
                elif q == 2:
                    L.append(f"v_add_f32 v{dst}, v{dst}, v{x+q}")
                    L.append(f"v_add_f32 v{t1}, v{x+1}, v{x+q+1}")
                    L.append(f"v_cvt_pk_bf16_f32 v{P+8*kb+q//2}, v{x+q}, v{x+q+1}")
                else:
                    L.append(f"v_add_f32 v{dst}, v{dst}, v{x+q}")
                    L.append(f"v_add_f32 v{t1}, v{t1}, v{x+q+1}")
                    L.append(f"v_cvt_pk_bf16_f32 v{P+8*kb+q//2}, v{x+q}, v{x+q+1}")
        L.append(f"v_add_f32 v{dst}, v{dst}, v{x+14}")
        L.append(f"v_add_f32 v{t1}, v{t1}, v{x+15}")
        L.append(f"v_cvt_pk_bf16_f32 v{P+8*kb+7}, v{x+14}, v{x+15}")
        L.append(f"v_add_f32 v{dst}, v{dst}, v{t1}")
        return L
    rescues = []
    def check(kb, masked, it_back):
        lr = A.newlabel("resc"); lb = A.newlabel("back")
        A(f"v_cmp_nle_f32 vcc, v{LS[kb]}, v{T+14}")
        A(f"s_cbranch_vccnz {lr}")
        A.label(lb)
        rescues.append((lr, lb, kb, masked, it_back))
    def emit_rescue(lr, lb, kb, masked, it_back):
        A.label(lr)
        A("s_nop 15")
        A("s_nop 15")
        A(f"""
        s_sub_u32 s{sT}, s{sIT}, {it_back}
        s_lshl_b32 s{sT}, s{sT}, 1
        s_add_u32 s{sT}, s{sT}, s{sG}
        s_lshl_b32 s{sT}, s{sT}, 14
        s_lshl_b32 s{sT+1}, s{sH}, 19
        s_add_u32 s{sT}, s{sT}, s{sT+1}
        s_add_u32 s{sT}, s{sT}, {kb*8192}
        s_add_u32 s{sT+1}, s{sT}, 4096
        """)
        for ks in range(8):
            so = sT if ks < 4 else sT+1
            A(f"buffer_load_dwordx4 {v(T+4,4)}, v{vL16}, s[{S_KF}:{S_KF+3}], s{so} offen offset:{(ks&3)*1024}")
            A("s_waitcnt vmcnt(0)")
            mfma(A, S+16*kb, T+4, Q+4*ks, NM if ks == 0 else S+16*kb)
            A("s_nop 7")
        A("s_nop 15")
        if masked:
            for op in mask_ops(kb): A(op)
        for op in max_ops(kb, T+2): A(op)
        A(f"v_max_f32 v{T+2}, 0, v{T+2}")
        A(f"v_sub_f32 v{T+3}, 0, v{T+2}")
        A(f"v_exp_f32 v{T+3}, v{T+3}")
        for r in range(16):
            A(f"v_sub_f32 v{NM+r}, v{NM+r}, v{T+2}")
        for r in range(32):
            A(f"v_sub_f32 v{S+r}, v{S+r}, v{T+2}")
        for r in range(64):
            A(f"v_mul_f32 v{O+r}, v{O+r}, v{T+3}")
        A(f"v_mul_f32 v{LS[1-kb]}, v{LS[1-kb]}, v{T+3}")
        for op in sm_ops(kb): A(op)
        A("s_nop 1")
        A(f"s_branch {lb}")

    def ph_items(ph):
        L = []
        for i in range(8):
            if ph in ("A", "C"):
                kb = 0 if ph == "A" else 1
                rd = (vKA, kb*8192 + i*1024)
                d = S + 16*kb
                mf = (d, Q + 4*i, NM if i == 0 else d)
            else:
                kk = (2 if ph == "B" else 0) + (i >> 2); db = i & 3
                rd = (vVA, (kk >> 1)*8192 + db*2048 + (kk & 1)*1024)
                d = O + 16*db
                mf = (d, P + 4*kk, d)
            L.append((rd, mf))
        return L
    def rd_line(rd, slot):
        return f"ds_read_b128 {v(F+4*slot,4)}, v{rd[0]} offset:{rd[1]}"

    def stream(phases, nxt_phase, pre, fills, extras, post):
        items = []
        for ph in phases: items += [(ph, i, it) for i, it in enumerate(ph_items(ph))]
        tail_items = ph_items(nxt_phase)[:4] if nxt_phase else []
        allrd = [it[2][0] for it in items] + [t[0] for t in tail_items]
        n = len(items)
        fq = {}
        for ph in phases:
            st, lines = fills.get(ph, (0, []))
            slots = 8 - st
            per = [len(lines)//slots + (1 if k < len(lines) % slots else 0) for k in range(slots)]
            k = 0
            for i in range(st, 8):
                fq[(ph, i)] = lines[k:k+per[i-st]]; k += per[i-st]
        for idx, (ph, i, (rd, mf)) in enumerate(items):
            if i == 0:
                for l in pre.get(ph, []):
                    if callable(l): l()
                    else: A(l)
            if idx % 4 == 0:
                A("s_waitcnt lgkmcnt(0)")
            d, b_, c = mf
            A(f"v_mfma_f32_32x32x16_bf16 {v(d,16)}, {v(F+4*(idx&7),4)}, {v(b_,4)}, {v(c,16)}")
            if idx % 4 < 2:
                base = (idx & ~3) + 4 + (idx % 4)*2
                for j in (base, base+1):
                    if j < len(allrd): A(rd_line(allrd[j], j & 7))
            for l in extras.get(ph, {}).get(i, []): A(l)
            for l in fq.get((ph, i), []): A(l)
            if i == 7 and ph in post: post[ph]()

    def split_fill(L, n1, n2):
        k = (len(L) * n1) // (n1 + n2)
        return L[:k], L[k:]

    SM1_A, SM1_D = None, None
    def sm1_parts(first, last):
        L = []
        if first:
            L += [f"v_sub_f32 v{NM+r}, 0, v{T+2}" for r in range(16)]
            L += [f"v_sub_f32 v{S+16+r}, v{S+16+r}, v{T+2}" for r in range(16)]
        if last: L += mask_ops(1)
        pre = len(L)
        sm = sm_ops(1)
        k = 18
        return L + sm[:k], sm[k:]

    def iteration(first, last):
        dm = {}
        def barY():
            A("s_waitcnt vmcnt(4)")
            A("s_barrier")
            dm["V"] = kv_issue(True, defer=True)
            A(f"v_xor_b32 v{vVA}, 0x8000, v{vVA}")
        def barX():
            A("s_waitcnt vmcnt(4)")
            A("s_barrier")
            dm["K"] = kv_issue(False, defer=True) if not last else []
            A(f"v_xor_b32 v{vKA}, 0x8000, v{vKA}")
        sm0 = []
        if last: sm0 += mask_ops(0)
        if first:
            sm0 += max_ops(0, T+2)
            sm0 += [f"v_max_f32 v{T+2}, v{T+13}, v{T+2}"]
            sm0 += [f"v_sub_f32 v{S+r}, v{S+r}, v{T+2}" for r in range(16)]
        sm0 += sm_ops(0)
        d_part, _ = sm1_parts(first, last)
        _, a_part = sm1_parts(False, False)
        class Lazy(dict):
            pass
        def dma(kind, q):
            return lambda: (A(dm[kind][q]) if dm.get(kind) else None)
        phases = ["A", "C", "D"] if first else ["A", "B", "C", "D"]
        fills = {}
        if first:
            fills["C"] = (2, sm0)
        else:
            b_part, c_part = split_fill(sm0, 6, 8)
            fills["A"] = (0, a_part)
            fills["B"] = (2, b_part)
            fills["C"] = (0, c_part)
        fills["D"] = (2, d_part)
        pre = {"C": [barY], "D": [barX]}
        post = {"C": lambda: check(0, last, 0)}
        if not first:
            post["A"] = lambda: check(1, False, 1)
        return phases, pre, fills, post, dm

    def emit_iteration(first, last):
        phases, pre, fills, post, dm = iteration(first, last)
        class Ex(dict):
            def get(self, ph, default=None):
                if ph == "C" and "V" in dm: return {1: [dm["V"][0]], 3: [dm["V"][1]], 5: [dm["V"][2]], 7: [dm["V"][3]]}
                if ph == "D" and dm.get("K"): return {1: [dm["K"][0]], 3: [dm["K"][1]], 5: [dm["K"][2]], 7: [dm["K"][3]]}
                return {}
        stream(phases, "B" if last else "A", pre, fills, Ex(), post)
        if last:
            _, a_part = sm1_parts(False, False)
            for l in a_part: A(l)
            check(1, True, 0)
            A("s_nop 0")
            stream(["B"], None, {}, {}, {}, {})

    blk_top = A.newlabel("blk_top")
    A.label(blk_top)
    for r in range(64): A(f"v_mov_b32 v{O+r}, 0")
    for r in range(16): A(f"v_mov_b32 v{NM+r}, 0")
    A(f"""
    v_mov_b32 v{vL}, 0
    v_mov_b32 v{T+13}, {f32hex(MFLOOR)}
    v_mov_b32 v{T+14}, {f32hex(BIGL)}
    v_mov_b32 v{T+15}, {f32hex(NEGBIG)}
    s_mov_b32 s{sIT}, 0
    """)
    for i in range(4): A(rd_line(ph_items("A")[i][0], i))
    l_only = A.newlabel("only"); l_mid = A.newlabel("mid"); l_last = A.newlabel("last"); l_merge = A.newlabel("merge")
    A(f"s_cmp_eq_u32 s{sBLK}, 0")
    A(f"s_cbranch_scc1 {l_only}")
    emit_iteration(True, False)
    A(f"s_mov_b32 s{sIT}, 1")
    A(f"s_cmp_ge_u32 s{sIT}, s{sBLK}")
    A(f"s_cbranch_scc1 {l_last}")
    A.label(l_mid)
    emit_iteration(False, False)
    A(f"s_add_u32 s{sIT}, s{sIT}, 1")
    A(f"s_cmp_lt_u32 s{sIT}, s{sBLK}")
    A(f"s_cbranch_scc1 {l_mid}")
    A.label(l_last)
    emit_iteration(False, True)
    A(f"s_branch {l_merge}")
    A.label(l_only)
    emit_iteration(True, True)
    A.label(l_merge)
    A(f"""
    v_mov_b32 v{T}, v{vL}
    s_nop 1
    v_permlane32_swap_b32 v{vL}, v{T}
    s_nop 1
    v_add_f32 v{vL}, v{vL}, v{T}
    s_barrier
    s_and_b32 s{sT}, s{sM0K}, 32768
    s_xor_b32 s{sT+1}, s{sM0V}, 32768
    s_and_b32 s{sT+1}, s{sT+1}, {65536+32768}
    s_xor_b32 s{sT+1}, s{sT+1}, 32768
    s_cmp_eq_u32 s{sG}, 0
    s_cselect_b32 s{sT+2}, s{sT}, s{sT+1}
    s_cselect_b32 s{sT+3}, s{sT+1}, s{sT}
    s_lshl_b32 s{sT}, s{sWR}, 13
    s_add_u32 s{sT+2}, s{sT+2}, s{sT}
    s_add_u32 s{sT+3}, s{sT+3}, s{sT}
    v_add_u32 v{T+2}, s{sT+2}, v{vL16}
    v_add_u32 v{T+3}, s{sT+3}, v{vL16}
    v_lshlrev_b32 v{T+4}, 3, v0                  ; lane*8
    s_lshl_b32 s{sT}, s{sW}, 9
    s_add_u32 s{sT}, s{sT}, 131072
    v_add_u32 v{T+5}, s{sT}, v{T+4}
    s_xor_b32 s{sT}, s{sT}, 2048
    v_add_u32 v{T+4}, s{sT}, v{T+4}
    v_mov_b32 v{T+6}, v{NM}
    v_mov_b32 v{T+7}, v{vL}
    ds_write_b64 v{T+5}, {v(T+6,2)}
    """)
    lg1 = A.newlabel("mg1"); lgd = A.newlabel("mgd")
    A(f"s_cmp_eq_u32 s{sG}, 0")
    A(f"s_cbranch_scc0 {lg1}")
    for gsel in range(2):
        if gsel == 1: A.label(lg1)
        give = O + (32 if gsel == 0 else 0)
        keep = O + (0 if gsel == 0 else 32)
        for i in range(8):
            A(f"ds_write_b128 v{T+2}, {v(give+4*i,4)} offset:{i*1024}")
        A("s_waitcnt lgkmcnt(0)")
        A("s_barrier")
        A(f"ds_read_b64 {v(T+8,2)}, v{T+4}")
        for i in range(8):
            A(f"ds_read_b128 {v(give+4*i,4)}, v{T+3} offset:{i*1024}")
        A(f"""
        s_waitcnt lgkmcnt(8)
        v_min_f32 v{T+10}, v{NM}, v{T+8}          ; -M
        v_sub_f32 v{T+11}, v{T+10}, v{NM}         ; m_self - M
        v_sub_f32 v{T+12}, v{T+10}, v{T+8}        ; m_part - M
        v_exp_f32 v{T+11}, v{T+11}
        v_exp_f32 v{T+12}, v{T+12}
        s_nop 0
        v_mul_f32 v{T+10}, v{vL}, v{T+11}
        v_fmac_f32 v{T+10}, v{T+9}, v{T+12}       ; l_total
        v_rcp_f32 v{T+10}, v{T+10}
        s_nop 0
        v_mul_f32 v{T+11}, v{T+11}, v{T+10}
        v_mul_f32 v{T+12}, v{T+12}, v{T+10}
        s_waitcnt lgkmcnt(0)
        """)
        for r in range(32):
            A(f"v_mul_f32 v{keep+r}, v{keep+r}, v{T+11}")
            A(f"v_fmac_f32 v{keep+r}, v{give+r}, v{T+12}")
        for i in range(16):
            A(f"v_cvt_pk_bf16_f32 v{S+i}, v{keep+2*i}, v{keep+2*i+1}")
        if gsel == 0: A(f"s_branch {lgd}")
    A.label(lgd)
    A("s_barrier")
    kv_issue(False)
    A(f"""
    s_lshl_b32 s{sT}, s{sBLK}, 2
    s_add_u32 s{sT}, s{sT}, s{sWR}
    s_lshl_b32 s{sT}, s{sT}, 18                  ; *256*1024
    s_lshl_b32 s{sT+1}, s{sH}, 13
    s_add_u32 s{sT}, s{sT}, s{sT+1}
    s_lshl_b32 s{sT+1}, s{sG}, 12
    s_add_u32 s{sT}, s{sT}, s{sT+1}
    """)
    for i in range(4):
        A(f"buffer_store_dwordx4 {v(S+4*i,4)}, v{vL16}, s[{S_CTX}:{S_CTX+3}], s{sT} offen offset:{i*1024}")
    stamp(A, 6)
    fin = A.newlabel("k2_fin")
    A(f"s_cmp_eq_u32 s{sPASS}, 1")
    A(f"s_cbranch_scc1 {fin}")
    A(f"s_mov_b32 s{sPASS}, 1")
    A(f"s_mov_b32 s{sBLK}, s{sI}")
    for r in range(32): A(f"v_mov_b32 v{Q+r}, v{Q2+r}")
    A(f"s_branch {blk_top}")
    for rr in rescues:
        emit_rescue(*rr)
    A.label(fin)
    if gen.STAMPS:
        A("s_waitcnt vmcnt(0)")
        stamp(A, 7); stamp(A, 9, True)
        stamp_flush(A, 10, 4, 5, sW, 0)
    A.label(done)
    A("s_endpgm")
    A.end_kernel(name, 248, 102)
    A.add_launch(name, 256, 512, 163840)
```

```python
from asmlib import *
import gen
from gen import *
import math, struct

def f32hex(x):
    return "0x%08x" % struct.unpack("<I", struct.pack("<f", x))[0]

LOG2E = 1.4426950408889634
QSCALE = LOG2E / math.sqrt(128.0)
GC1 = -2.0 * 0.7978845608028654 * LOG2E
GC2 = GC1 * 0.044715
BIGL = 2.0 ** 30
NEGBIG = -1.0e30
MFLOOR = -1.0e20
STAGGER = True
FINE = False

def gen_k2(A):
    name = "attn_kernel"
    A.begin_kernel(name)
    done = A.newlabel("k2_done")
    S_XN, S_WG, S_WU, S_WQ, S_KF, S_VF, S_H, S_CTX = 8, 12, 16, 20, 24, 28, 32, 36
    sW, sH, sI, sP, sC, sG, sWR = 40, 41, 42, 43, 44, 45, 46
    sSX, sSWF, sSWQ, sM0 = 47, 48, 49, 50
    sFT, sRBF, sRBO = 51, 52, 53
    sBLK, sIT, sNIT = 54, 55, 56
    sKN, sVN = 57, 58
    sM0K, sM0V = 59, 60
    sHB = 61
    sPASS = 62
    sKJ, sVJ = 63, 64
    sB0 = 65
    sT = 66
    sMK = 12
    A(f"""
    s_cmp_ge_u32 s2, 256
    s_cbranch_scc1 {done}
    s_load_dwordx2 s[66:67], s[0:1], {KA_WQ}
    s_load_dwordx4 s[68:71], s[0:1], {KA_WG}
    s_load_dwordx2 s[4:5], s[0:1], {KA_WS}
    v_lshrrev_b32 v1, 6, v0
    v_and_b32 v0, 63, v0
    v_readfirstlane_b32 s{sW}, v1
    s_and_b32 s{sH}, s2, 7
    s_lshl_b32 s{sH}, s{sH}, 2
    s_lshr_b32 s{sI}, s2, 3
    s_and_b32 s{sI}, s{sI}, 3
    s_add_u32 s{sH}, s{sH}, s{sI}                ; head
    s_lshr_b32 s{sI}, s2, 5
    s_and_b32 s{sP}, s{sW}, 1
    s_lshr_b32 s{sC}, s{sW}, 1
    s_lshr_b32 s{sG}, s{sW}, 2                   ; group
    s_and_b32 s{sWR}, s{sW}, 3
    s_sub_u32 s{sB0}, 15, s{sI}
    ; ffn tile: h<14: rows i ; 14<=h<28: rows 15-i ; ft = h%14 (h>=28: dummy tile, not stored)
    s_cmp_lt_u32 s{sH}, 14
    s_cselect_b32 s{sRBF}, s{sI}, s{sB0}
    s_cselect_b32 s{sRBO}, s{sB0}, s{sI}
    s_sub_u32 s{sFT}, s{sH}, 14
    s_cselect_b32 s{sFT}, s{sH}, s{sFT}
    s_cmp_ge_u32 s{sFT}, 14
    s_cselect_b32 s{sFT}, 0, s{sFT}
    s_waitcnt lgkmcnt(0)
    """)
    stamp(A, 0); stamp(A, 8, True)
    srd(A, S_WQ, 66, 67, 512*8192)
    srd(A, S_WG, 68, 69, 512*3584)
    srd(A, S_WU, 70, 71, 512*3584)
    srd(A, S_XN, 4, 5, 2048*1024, WS_XN)
    srd(A, S_KF, 4, 5, 16*1024*1024, WS_KF)
    srd(A, S_VF, 4, 5, 16*1024*1024, WS_VF)
    srd(A, S_H, 4, 5, 64*112*1024, WS_H)
    srd(A, S_CTX, 4, 5, 16*1024*1024, WS_CTX)
    vL16 = 1
    vDF, vDQ = 192, 193
    vRXl, vRXh, vRWl, vRWh = 194, 195, 196, 197
    A(f"""
    v_lshlrev_b32 v{vL16}, 4, v0
    v_lshrrev_b32 v7, 4, v0                       ; l>>4
    v_and_b32 v8, 15, v0
    v_lshlrev_b32 v9, 2, v7
    v_xor_b32 v8, v8, v9
    v_lshlrev_b32 v8, 4, v8
    v_mul_u32_u24 v6, 3584, v7
    v_add_u32 v{vDF}, v6, v8
    v_lshlrev_b32 v6, 13, v7
    v_add_u32 v{vDQ}, v6, v8
    s_cmp_lt_u32 s{sW}, 4
    s_cselect_b32 s{sT}, s{sRBF}, s{sRBO}
    s_lshl_b32 s{sT}, s{sT}, 2
    s_add_u32 s{sT}, s{sT}, s{sWR}
    s_lshl_b32 s{sSX}, s{sT}, 15
    s_mul_i32 s{sSWF}, s{sW}, {4*3584}
    s_lshl_b32 s{sT}, s{sFT}, 8
    s_add_u32 s{sSWF}, s{sSWF}, s{sT}
    s_lshl_b32 s{sSWQ}, s{sW}, 15                 ; 4*w*8192
    s_lshl_b32 s{sT}, s{sH}, 8
    s_add_u32 s{sSWQ}, s{sSWQ}, s{sT}
    s_lshl_b32 s{sM0}, s{sW}, 10                  ; w*1024
    """)
    STG = 40960
    def gpieces(st):
        b = (st & 3) * STG
        return [
         [f"s_lshl_b32 s{sT}, s{sM0}, 1", f"s_add_u32 m0, s{sT}, {b}", f"s_add_u32 s{sT+1}, s{sSX}, {st*2048}",
          f"buffer_load_dwordx4 v{vL16}, s[{S_XN}:{S_XN+3}], s{sT+1} offen lds"],
         [f"buffer_load_dwordx4 v{vL16}, s[{S_XN}:{S_XN+3}], s{sT+1} offen offset:1024 lds"],
         [f"s_add_u32 m0, s{sM0}, {b+16384}", f"s_add_u32 s{sT+2}, s{sSWF}, {st*32*3584}",
          f"buffer_load_dwordx4 v{vDF}, s[{S_WG}:{S_WG+3}], s{sT+2} offen lds"],
         [f"s_add_u32 m0, s{sM0}, {b+24576}", f"s_add_u32 s{sT+3}, s{sSWQ}, {st*32*8192}",
          f"buffer_load_dwordx4 v{vDF}, s[{S_WU}:{S_WU+3}], s{sT+2} offen lds"],
         [f"s_add_u32 m0, s{sM0}, {b+32768}", "s_nop 0",
          f"buffer_load_dwordx4 v{vDQ}, s[{S_WQ}:{S_WQ+3}], s{sT+3} offen lds"]]
    def gissue(st):
        for p in gpieces(st):
            for l in p: A(l)
    gissue(0); gissue(1); gissue(2)
    A(f"""
    s_lshl_b32 s{sT}, s{sP}, 12                   ; p*4096
    v_add_u32 v{vRXl}, s{sT}, v{vL16}
    v_add_u32 v{vRXh}, {2*STG}, v{vRXl}
    v_lshrrev_b32 v6, 5, v0
    v_lshlrev_b32 v6, 11, v6                      ; (g>>1)*8*256
    v_bfe_u32 v7, v0, 2, 2                        ; r
    v_lshlrev_b32 v8, 8, v7
    v_add_u32 v6, v6, v8
    v_lshlrev_b32 v8, 6, v7
    v_add_u32 v6, v6, v8
    v_bfe_u32 v8, v0, 4, 1
    v_lshlrev_b32 v8, 5, v8
    v_add_u32 v6, v6, v8
    v_and_b32 v8, 3, v0
    v_lshlrev_b32 v8, 3, v8
    v_add_u32 v6, v6, v8
    s_lshl_b32 s{sT}, s{sC}, 6
    v_xor_b32 v6, s{sT}, v6
    v_add_u32 v{vRWl}, 16384, v6
    v_add_u32 v{vRWh}, {2*STG}, v{vRWl}
    """)
    ACC = 64
    FR = [8, 36]
    XOFF = [0, 2048, 8192, 10240]
    def greads(ks):
        st, kp = ks >> 1, ks & 1
        buf = st & 3
        fr = FR[ks & 1]
        rx = vRXl if buf < 2 else vRXh
        rw = vRWl if buf < 2 else vRWh
        bo = (buf & 1) * STG
        L = []
        def wr(sub):
            return [f"ds_read_b64_tr_b16 {v(fr+sub*4+tt*2,2)}, v{rw} offset:{bo + sub*8192 + kp*4096 + tt*1024}" for tt in range(2)]
        def xr(i):
            return [f"ds_read_b128 {v(fr+12+i*4,4)}, v{rx} offset:{bo + XOFF[i] + kp*1024}"]
        L = wr(0) + xr(0) + xr(1) + wr(1) + wr(2) + xr(2) + xr(3)
        return L
    MF = [(0, 0, 0, 3), (1, 0, 1, 4), (2, 1, 0, 6), (3, 1, 1, 6), (4, 2, 0, 8), (5, 2, 1, 8), (6, 2, 2, 9), (7, 2, 3, 10)]
    stamp(A, 1)
    A("s_waitcnt vmcnt(5)")
    A("s_barrier")
    for r in greads(0): A(r)
    for st in range(16):
        if st > 0:
            n_out = 5 if st < 14 else (0 if st == 14 else None)
            if n_out is not None:
                A(f"s_waitcnt vmcnt({n_out})")
                A("s_barrier")
        pcs = gpieces(st + 3) if st + 3 < 16 else []
        for kp in range(2):
            ks = 2*st + kp
            fr = FR[ks & 1]
            nxt = greads(ks + 1) if ks + 1 < 32 else []
            idx = 0
            prev_need = 0
            for (acc, sub, xi, need) in MF:
                if need > prev_need:
                    A(f"s_waitcnt lgkmcnt({min((10 - need) + idx, 15)})")
                    prev_need = need
                d = ACC + acc*16
                mfma(A, d, fr + sub*4, fr + 12 + xi*4, None if ks == 0 else d)
                for _ in range(2 if acc in (0, 1) else 1):
                    if idx < len(nxt):
                        A(nxt[idx]); idx += 1
                if pcs and (kp*8 + acc) % 3 == 1:
                    for l in pcs.pop(0): A(l)
        assert not pcs
    stamp(A, 2)
    A(f"""
    s_barrier
    s_lshl_b32 s{sHB}, s{sH}, 19
    s_lshl_b32 s{sT}, s{sW}, 12
    s_add_u32 s{sHB}, s{sHB}, s{sT}               ; head*512K + w*4096
    s_lshl_b32 s{sM0}, s{sW}, 12                  ; w*4096
    s_mov_b32 s{sKJ}, 0
    s_mov_b32 s{sVJ}, 0
    s_mov_b32 s{sKN}, s{sHB}
    s_mov_b32 s{sVN}, s{sHB}
    s_mov_b32 s{sM0K}, s{sM0}
    s_add_u32 s{sM0V}, s{sM0}, 65536
    """)
    sDS = 74
    def kv_issue(isV, defer=False):
        sJ = sVJ if isV else sKJ
        sN = sVN if isV else sKN
        sMM = sM0V if isV else sM0K
        S = S_VF if isV else S_KF
        sD = sDS + (1 if isV else 0)
        A(f"""
        s_mov_b32 m0, s{sMM}
        s_mov_b32 s{sD}, s{sN}
        s_xor_b32 s{sMM}, s{sMM}, 32768
        s_add_u32 s{sN}, s{sN}, 32768
        s_cmp_eq_u32 s{sJ}, s{sB0}
        s_cselect_b32 s{sN}, s{sHB}, s{sN}
        s_add_u32 s{sJ}, s{sJ}, 1
        """)
        L = [f"buffer_load_dwordx4 v{vL16}, s[{S}:{S+3}], s{sD} offen offset:{q*1024} lds" for q in range(4)]
        if defer: return L
        for l in L: A(l)
    kv_issue(False)
    kv_issue(True)
    kv_issue(False)
    T = 200
    A(f"s_mov_b32 s{sT+2}, {f32hex(QSCALE)}")
    A(f"""
    s_lshl_b32 s{sT}, s{sP}, 14                   ; 2p*8192
    s_lshl_b32 s{sT+1}, s{sC}, 11                 ; 2c*1024
    s_add_u32 s{sT}, s{sT}, s{sT+1}
    s_add_u32 s{sT}, s{sT}, {96*1024}
    v_add_u32 v6, s{sT}, v{vL16}
    """)
    for qi in range(4):
        d = ACC + (4+qi)*16
        for r in range(16):
            A(f"v_mul_f32 v{d+r}, s{sT+2}, v{d+r}")
        p = T + (qi & 1)*8
        for i in range(8):
            A(f"v_cvt_pk_bf16_f32 v{p+i}, v{d+2*i}, v{d+2*i+1}")
        xb_off = [0, 8192, 32768, 40960][qi]
        A(f"ds_write_b128 v6, {v(p,4)} offset:{xb_off}")
        A(f"ds_write_b128 v6, {v(p+4,4)} offset:{xb_off+1024}")
    A(f"s_mov_b32 s{sT+2}, {f32hex(GC1)}")
    A(f"s_mov_b32 s{sT+3}, {f32hex(GC2)}")
    A(f"v_mov_b32 v{T+16}, s{sT+2}")
    A(f"""
    s_lshl_b32 s{sT}, s{sRBF}, 2
    s_lshl_b32 s{sT+1}, s{sP}, 1
    s_add_u32 s{sT}, s{sT}, s{sT+1}
    s_mul_i32 s{sT}, s{sT}, {112*1024}
    s_lshl_b32 s{sT+1}, s{sFT}, 13
    s_add_u32 s{sT}, s{sT}, s{sT+1}
    s_lshl_b32 s{sT+1}, s{sC}, 11
    s_add_u32 s{sT}, s{sT}, s{sT+1}
    s_cmp_lt_u32 s{sH}, 28
    s_cselect_b32 s{sT}, s{sT}, 0x7ff00000
    """)
    for j in range(2):
        g0 = ACC + j*16
        u0 = ACC + (2+j)*16
        for r in range(16):
            x = g0 + r
            t = T + 18 + (r & 3)
            A(f"v_mul_f32 v{t}, v{x}, v{x}")
            A(f"v_fma_f32 v{t}, v{t}, s{sT+3}, v{T+16}")
            A(f"v_mul_f32 v{t}, v{t}, v{x}")
            A(f"v_exp_f32 v{t}, v{t}")
            A(f"v_mul_f32 v{x}, v{x}, v{u0+r}")
            A(f"v_add_f32 v{t}, 1.0, v{t}")
            A(f"v_rcp_f32 v{t}, v{t}")
            A("s_nop 0")
            A(f"v_mul_f32 v{x}, v{x}, v{t}")
        p = T + j*8
        for i in range(8):
            A(f"v_cvt_pk_bf16_f32 v{p+i}, v{g0+2*i}, v{g0+2*i+1}")
        A(f"buffer_store_dwordx4 {v(p,4)}, v{vL16}, s[{S_H}:{S_H+3}], s{sT} offen")
        A(f"buffer_store_dwordx4 {v(p+4,4)}, v{vL16}, s[{S_H}:{S_H+3}], s{sT} offen offset:1024")
        if j == 0:
            A(f"s_add_u32 s{sT}, s{sT}, {112*1024}")
    stamp(A, 3)
    vKA, vVA, vL, vM, vTMP, vD = 2, 3, 4, 5, 6, 7
    F = 8; Q = 40; Q2 = 72; S = 104; NM = 136; P = 152; O = 168; T = 232
    A(f"""
    s_waitcnt lgkmcnt(0)
    s_barrier
    s_cmp_eq_u32 s{sRBF}, s{sB0}
    s_cselect_b32 s{sT}, 0, 32768
    s_cselect_b32 s{sT+1}, 32768, 0
    s_lshl_b32 s{sT+2}, s{sWR}, 13
    s_add_u32 s{sT+2}, s{sT+2}, {96*1024}
    s_add_u32 s{sT}, s{sT}, s{sT+2}
    s_add_u32 s{sT+1}, s{sT+1}, s{sT+2}
    v_add_u32 v{vTMP}, s{sT}, v{vL16}
    v_add_u32 v{vD}, s{sT+1}, v{vL16}
    """)
    for ks in range(8):
        A(f"ds_read_b128 {v(Q+4*ks,4)}, v{vTMP} offset:{ks*1024}")
    for ks in range(8):
        A(f"ds_read_b128 {v(Q2+4*ks,4)}, v{vD} offset:{ks*1024}")
    A(f"""
    s_waitcnt lgkmcnt(0)
    v_and_b32 v{vD}, 31, v0
    v_lshrrev_b32 v{vTMP}, 5, v0
    v_lshlrev_b32 v{vTMP}, 2, v{vTMP}
    v_sub_u32 v{vD}, v{vD}, v{vTMP}
    s_lshl_b32 s{sT}, s{sWR}, 5
    s_lshl_b32 s{sT+1}, s{sG}, 6
    s_sub_u32 s{sT}, s{sT}, s{sT+1}
    v_add_u32 v{vD}, s{sT}, v{vD}
    s_mov_b32 s{sPASS}, 0
    s_mov_b32 s{sBLK}, s{sB0}
    s_lshl_b32 s{sT}, s{sG}, 14
    v_add_u32 v{vKA}, s{sT}, v{vL16}              ; K(0) slot 0
    s_add_u32 s{sT}, s{sT}, {65536+32768}
    v_add_u32 v{vVA}, s{sT}, v{vL16}
    """)
    A("s_waitcnt vmcnt(12)")
    A("s_barrier")

    def mask_ops(kb):
        L = []
        for r0 in range(0, 16, 4):
            for j in range(4):
                r = r0 + j
                c = 32*kb + 8*(r >> 2) + (r & 3)
                L.append(f"v_cmp_gt_i32 s[{sMK+2*j}:{sMK+2*j+1}], {c}, v{vD}")
            for j in range(4):
                r = r0 + j
                L.append(f"v_cndmask_b32 v{S+16*kb+r}, v{S+16*kb+r}, v{T+15}, s[{sMK+2*j}:{sMK+2*j+1}]")
        return L
    def max_ops(kb, dst):
        x = S + 16*kb
        L = [f"v_max3_f32 v{dst}, v{x}, v{x+1}, v{x+2}"]
        for r in range(3, 15, 2):
            L.append(f"v_max3_f32 v{dst}, v{dst}, v{x+r}, v{x+r+1}")
        L.append(f"v_max_f32 v{dst}, v{dst}, v{x+15}")
        L.append(f"v_mov_b32 v{dst+1}, v{dst}")
        L.append("s_nop 1")
        L.append(f"v_permlane32_swap_b32 v{dst}, v{dst+1}")
        L.append("s_nop 1")
        L.append(f"v_max_f32 v{dst}, v{dst}, v{dst+1}")
        return L
    LS = [T+12, vL]
    def sm_ops(kb):
        x = S + 16*kb
        src, dst, t1 = LS[1-kb], LS[kb], T+kb
        L = []
        for r in range(0, 16, 2):
            L.append(f"v_exp_f32 v{x+r}, v{x+r}")
            L.append(f"v_exp_f32 v{x+r+1}, v{x+r+1}")
            if r >= 2:
                q = r - 2
                if q == 0:
                    L.append(f"v_add_f32 v{dst}, v{src}, v{x}")
                    L.append(f"v_cvt_pk_bf16_f32 v{P+8*kb}, v{x}, v{x+1}")
                elif q == 2:
                    L.append(f"v_add_f32 v{dst}, v{dst}, v{x+q}")
                    L.append(f"v_add_f32 v{t1}, v{x+1}, v{x+q+1}")
                    L.append(f"v_cvt_pk_bf16_f32 v{P+8*kb+q//2}, v{x+q}, v{x+q+1}")
                else:
                    L.append(f"v_add_f32 v{dst}, v{dst}, v{x+q}")
                    L.append(f"v_add_f32 v{t1}, v{t1}, v{x+q+1}")
                    L.append(f"v_cvt_pk_bf16_f32 v{P+8*kb+q//2}, v{x+q}, v{x+q+1}")
        L.append(f"v_add_f32 v{dst}, v{dst}, v{x+14}")
        L.append(f"v_add_f32 v{t1}, v{t1}, v{x+15}")
        L.append(f"v_cvt_pk_bf16_f32 v{P+8*kb+7}, v{x+14}, v{x+15}")
        L.append(f"v_add_f32 v{dst}, v{dst}, v{t1}")
        return L
    rescues = []
    def check(kb, masked, it_back):
        lr = A.newlabel("resc"); lb = A.newlabel("back")
        A(f"v_cmp_nle_f32 vcc, v{LS[kb]}, v{T+14}")
        A(f"s_cbranch_vccnz {lr}")
        A.label(lb)
        rescues.append((lr, lb, kb, masked, it_back))
    def emit_rescue(lr, lb, kb, masked, it_back):
        A.label(lr)
        A("s_nop 15")
        A("s_nop 15")
        A(f"""
        s_sub_u32 s{sT}, s{sIT}, {it_back}
        s_lshl_b32 s{sT}, s{sT}, 1
        s_add_u32 s{sT}, s{sT}, s{sG}
        s_lshl_b32 s{sT}, s{sT}, 14
        s_lshl_b32 s{sT+1}, s{sH}, 19
        s_add_u32 s{sT}, s{sT}, s{sT+1}
        s_add_u32 s{sT}, s{sT}, {kb*8192}
        s_add_u32 s{sT+1}, s{sT}, 4096
        """)
        for ks in range(8):
            so = sT if ks < 4 else sT+1
            A(f"buffer_load_dwordx4 {v(T+4,4)}, v{vL16}, s[{S_KF}:{S_KF+3}], s{so} offen offset:{(ks&3)*1024}")
            A("s_waitcnt vmcnt(0)")
            mfma(A, S+16*kb, T+4, Q+4*ks, NM if ks == 0 else S+16*kb)
            A("s_nop 7")
        A("s_nop 15")
        if masked:
            for op in mask_ops(kb): A(op)
        for op in max_ops(kb, T+2): A(op)
        A(f"v_max_f32 v{T+2}, 0, v{T+2}")
        A(f"v_sub_f32 v{T+3}, 0, v{T+2}")
        A(f"v_exp_f32 v{T+3}, v{T+3}")
        for r in range(16):
            A(f"v_sub_f32 v{NM+r}, v{NM+r}, v{T+2}")
        for r in range(32):
            A(f"v_sub_f32 v{S+r}, v{S+r}, v{T+2}")
        for r in range(64):
            A(f"v_mul_f32 v{O+r}, v{O+r}, v{T+3}")
        A(f"v_mul_f32 v{LS[1-kb]}, v{LS[1-kb]}, v{T+3}")
        for op in sm_ops(kb): A(op)
        A("s_nop 1")
        A(f"s_branch {lb}")

    def ph_items(ph):
        L = []
        for i in range(8):
            if ph in ("A", "C"):
                kb = 0 if ph == "A" else 1
                rd = (vKA, kb*8192 + i*1024)
                d = S + 16*kb
                mf = (d, Q + 4*i, NM if i == 0 else d)
            else:
                kk = (2 if ph == "B" else 0) + (i >> 2); db = i & 3
                rd = (vVA, (kk >> 1)*8192 + db*2048 + (kk & 1)*1024)
                d = O + 16*db
                mf = (d, P + 4*kk, d)
            L.append((rd, mf))
        return L
    def rd_line(rd, slot):
        return f"ds_read_b128 {v(F+4*slot,4)}, v{rd[0]} offset:{rd[1]}"

    def stream(phases, nxt_phase, pre, fills, extras, post):
        items = []
        for ph in phases: items += [(ph, i, it) for i, it in enumerate(ph_items(ph))]
        tail_items = ph_items(nxt_phase)[:4] if nxt_phase else []
        allrd = [it[2][0] for it in items] + [t[0] for t in tail_items]
        n = len(items)
        fq = {}
        for ph in phases:
            st, lines = fills.get(ph, (0, []))
            slots = 8 - st
            per = [len(lines)//slots + (1 if k < len(lines) % slots else 0) for k in range(slots)]
            k = 0
            for i in range(st, 8):
                fq[(ph, i)] = lines[k:k+per[i-st]]; k += per[i-st]
        for idx, (ph, i, (rd, mf)) in enumerate(items):
            if i == 0:
                for l in pre.get(ph, []):
                    if callable(l): l()
                    else: A(l)
            if idx % 4 == 0:
                A("s_waitcnt lgkmcnt(0)")
            d, b_, c = mf
            A(f"v_mfma_f32_32x32x16_bf16 {v(d,16)}, {v(F+4*(idx&7),4)}, {v(b_,4)}, {v(c,16)}")
            if idx % 4 < 2:
                base = (idx & ~3) + 4 + (idx % 4)*2
                for j in (base, base+1):
                    if j < len(allrd): A(rd_line(allrd[j], j & 7))
            for l in extras.get(ph, {}).get(i, []): A(l)
            for l in fq.get((ph, i), []): A(l)
            if i == 7 and ph in post: post[ph]()

    def split_fill(L, n1, n2):
        k = (len(L) * n1) // (n1 + n2)
        return L[:k], L[k:]

    SM1_A, SM1_D = None, None
    def sm1_parts(first, last):
        L = []
        if first:
            L += [f"v_sub_f32 v{NM+r}, 0, v{T+2}" for r in range(16)]
            L += [f"v_sub_f32 v{S+16+r}, v{S+16+r}, v{T+2}" for r in range(16)]
        if last: L += mask_ops(1)
        pre = len(L)
        sm = sm_ops(1)
        k = 18
        return L + sm[:k], sm[k:]

    def iteration(first, last):
        dm = {}
        def barY():
            A("s_waitcnt vmcnt(%d)" % (8 if first else 4))
            A("s_barrier")
            dm["V"] = kv_issue(True, defer=True)
            A(f"v_xor_b32 v{vVA}, 0x8000, v{vVA}")
        def barX():
            A("s_waitcnt vmcnt(4)")
            A("s_barrier")
            dm["K"] = kv_issue(False, defer=True) if not last else []
            A(f"v_xor_b32 v{vKA}, 0x8000, v{vKA}")
        sm0 = []
        if last: sm0 += mask_ops(0)
        if first:
            sm0 += max_ops(0, T+2)
            sm0 += [f"v_max_f32 v{T+2}, v{T+13}, v{T+2}"]
            sm0 += [f"v_sub_f32 v{S+r}, v{S+r}, v{T+2}" for r in range(16)]
        sm0 += sm_ops(0)
        d_part, _ = sm1_parts(first, last)
        _, a_part = sm1_parts(False, False)
        class Lazy(dict):
            pass
        def dma(kind, q):
            return lambda: (A(dm[kind][q]) if dm.get(kind) else None)
        phases = ["A", "C", "D"] if first else ["A", "B", "C", "D"]
        fills = {}
        if first:
            fills["C"] = (2, sm0)
        else:
            b_part, c_part = split_fill(sm0, 6, 8)
            fills["A"] = (0, a_part)
            fills["B"] = (2, b_part)
            fills["C"] = (0, c_part)
        fills["D"] = (2, d_part)
        pre = {"C": [barY], "D": [barX]}
        post = {"C": lambda: check(0, last, 0)}
        if not first:
            post["A"] = lambda: check(1, False, 1)
        return phases, pre, fills, post, dm

    def emit_iteration(first, last):
        phases, pre, fills, post, dm = iteration(first, last)
        class Ex(dict):
            def get(self, ph, default=None):
                if ph == "C" and "V" in dm: return {1: [dm["V"][0]], 3: [dm["V"][1]], 5: [dm["V"][2]], 7: [dm["V"][3]]}
                if ph == "D" and dm.get("K"): return {1: [dm["K"][0]], 3: [dm["K"][1]], 5: [dm["K"][2]], 7: [dm["K"][3]]}
                return {}
        stream(phases, "B" if last else "A", pre, fills, Ex(), post)
        if last:
            _, a_part = sm1_parts(False, False)
            for l in a_part: A(l)
            check(1, True, 0)
            A("s_nop 0")
            stream(["B"], None, {}, {}, {}, {})

    blk_top = A.newlabel("blk_top")
    A.label(blk_top)
    stamp(A, 4)
    for r in range(64): A(f"v_mov_b32 v{O+r}, 0")
    for r in range(16): A(f"v_mov_b32 v{NM+r}, 0")
    A(f"""
    v_mov_b32 v{vL}, 0
    v_mov_b32 v{T+13}, {f32hex(MFLOOR)}
    v_mov_b32 v{T+14}, {f32hex(BIGL)}
    v_mov_b32 v{T+15}, {f32hex(NEGBIG)}
    s_mov_b32 s{sIT}, 0
    """)
    for i in range(4): A(rd_line(ph_items("A")[i][0], i))
    l_only = A.newlabel("only"); l_mid = A.newlabel("mid"); l_last = A.newlabel("last"); l_merge = A.newlabel("merge")
    A(f"s_cmp_eq_u32 s{sBLK}, 0")
    A(f"s_cbranch_scc1 {l_only}")
    emit_iteration(True, False)
    A(f"s_mov_b32 s{sIT}, 1")
    A(f"s_cmp_ge_u32 s{sIT}, s{sBLK}")
    A(f"s_cbranch_scc1 {l_last}")
    A.label(l_mid)
    emit_iteration(False, False)
    A(f"s_add_u32 s{sIT}, s{sIT}, 1")
    A(f"s_cmp_lt_u32 s{sIT}, s{sBLK}")
    A(f"s_cbranch_scc1 {l_mid}")
    A.label(l_last)
    emit_iteration(False, True)
    A(f"s_branch {l_merge}")
    A.label(l_only)
    emit_iteration(True, True)
    A.label(l_merge)
    stamp(A, 5)
    A(f"""
    v_mov_b32 v{T}, v{vL}
    s_nop 1
    v_permlane32_swap_b32 v{vL}, v{T}
    s_nop 1
    v_add_f32 v{vL}, v{vL}, v{T}
    s_barrier
    s_and_b32 s{sT}, s{sM0K}, 32768
    s_xor_b32 s{sT+1}, s{sM0V}, 32768
    s_and_b32 s{sT+1}, s{sT+1}, {65536+32768}
    s_xor_b32 s{sT+1}, s{sT+1}, 32768
    s_cmp_eq_u32 s{sG}, 0
    s_cselect_b32 s{sT+2}, s{sT}, s{sT+1}
    s_cselect_b32 s{sT+3}, s{sT+1}, s{sT}
    s_lshl_b32 s{sT}, s{sWR}, 13
    s_add_u32 s{sT+2}, s{sT+2}, s{sT}
    s_add_u32 s{sT+3}, s{sT+3}, s{sT}
    v_add_u32 v{T+2}, s{sT+2}, v{vL16}
    v_add_u32 v{T+3}, s{sT+3}, v{vL16}
    v_lshlrev_b32 v{T+4}, 3, v0                  ; lane*8
    s_lshl_b32 s{sT}, s{sW}, 9
    s_add_u32 s{sT}, s{sT}, 131072
    v_add_u32 v{T+5}, s{sT}, v{T+4}
    s_xor_b32 s{sT}, s{sT}, 2048
    v_add_u32 v{T+4}, s{sT}, v{T+4}
    v_mov_b32 v{T+6}, v{NM}
    v_mov_b32 v{T+7}, v{vL}
    ds_write_b64 v{T+5}, {v(T+6,2)}
    """)
    lg1 = A.newlabel("mg1"); lgd = A.newlabel("mgd")
    A(f"s_cmp_eq_u32 s{sG}, 0")
    A(f"s_cbranch_scc0 {lg1}")
    for gsel in range(2):
        if gsel == 1: A.label(lg1)
        give = O + (32 if gsel == 0 else 0)
        keep = O + (0 if gsel == 0 else 32)
        for i in range(8):
            A(f"ds_write_b128 v{T+2}, {v(give+4*i,4)} offset:{i*1024}")
        A("s_waitcnt lgkmcnt(0)")
        A("s_barrier")
        A(f"ds_read_b64 {v(T+8,2)}, v{T+4}")
        for i in range(8):
            A(f"ds_read_b128 {v(give+4*i,4)}, v{T+3} offset:{i*1024}")
        A(f"""
        s_waitcnt lgkmcnt(8)
        v_min_f32 v{T+10}, v{NM}, v{T+8}          ; -M
        v_sub_f32 v{T+11}, v{T+10}, v{NM}         ; m_self - M
        v_sub_f32 v{T+12}, v{T+10}, v{T+8}        ; m_part - M
        v_exp_f32 v{T+11}, v{T+11}
        v_exp_f32 v{T+12}, v{T+12}
        s_nop 0
        v_mul_f32 v{T+10}, v{vL}, v{T+11}
        v_fmac_f32 v{T+10}, v{T+9}, v{T+12}       ; l_total
        v_rcp_f32 v{T+10}, v{T+10}
        s_nop 0
        v_mul_f32 v{T+11}, v{T+11}, v{T+10}
        v_mul_f32 v{T+12}, v{T+12}, v{T+10}
        s_waitcnt lgkmcnt(0)
        """)
        for r in range(32):
            A(f"v_mul_f32 v{keep+r}, v{keep+r}, v{T+11}")
            A(f"v_fmac_f32 v{keep+r}, v{give+r}, v{T+12}")
        for i in range(16):
            A(f"v_cvt_pk_bf16_f32 v{S+i}, v{keep+2*i}, v{keep+2*i+1}")
        if gsel == 0: A(f"s_branch {lgd}")
    A.label(lgd)
    A("s_barrier")
    kv_issue(False)
    A(f"""
    s_lshl_b32 s{sT}, s{sBLK}, 2
    s_add_u32 s{sT}, s{sT}, s{sWR}
    s_lshl_b32 s{sT}, s{sT}, 18                  ; *256*1024
    s_lshl_b32 s{sT+1}, s{sH}, 13
    s_add_u32 s{sT}, s{sT}, s{sT+1}
    s_lshl_b32 s{sT+1}, s{sG}, 12
    s_add_u32 s{sT}, s{sT}, s{sT+1}
    """)
    for i in range(4):
        A(f"buffer_store_dwordx4 {v(S+4*i,4)}, v{vL16}, s[{S_CTX}:{S_CTX+3}], s{sT} offen offset:{i*1024}")
    stamp(A, 6)
    fin = A.newlabel("k2_fin")
    A(f"s_cmp_eq_u32 s{sPASS}, 1")
    A(f"s_cbranch_scc1 {fin}")
    A(f"s_mov_b32 s{sPASS}, 1")
    A(f"s_mov_b32 s{sBLK}, s{sI}")
    for r in range(32): A(f"v_mov_b32 v{Q+r}, v{Q2+r}")
    A(f"s_branch {blk_top}")
    for rr in rescues:
        emit_rescue(*rr)
    A.label(fin)
    if gen.STAMPS:
        A("s_waitcnt vmcnt(0)")
        stamp(A, 7); stamp(A, 9, True)
        stamp_flush(A, 10, 4, 5, sW, 1)
    A.label(done)
    A("s_endpgm")
    A.end_kernel(name, 248, 102)
    A.add_launch(name, 256, 512, 163840)
```

```python
from asmlib import *
import gen
from gen import *
from gen_k2 import f32hex, LOG2E

HELPER = False
SLOT = 2
PF_DIST = 10

def gen_k3(A):
    name = "out_kernel"
    A.begin_kernel(name)
    done = A.newlabel("k3_done")
    S_CTX, S_H, S_WO, S_WD, S_X, S_OUT = 8, 12, 16, 20, 24, 28
    S_A, S_B = 32, 36
    sW, sRT, sCT, sQR, sQC, sKG = 40, 41, 42, 43, 44, 45
    sSX, sSH, sSW, sM0 = 46, 47, 48, 49
    sAO, sBO, sLI, sBUF, sST = 50, 51, 52, 53, 54
    sT = 56
    NB = 5
    NS_S, NS_F = 32, 14
    NS = NS_S + NS_F
    A(f"""
    s_cmp_ge_u32 s2, 256
    s_cbranch_scc1 {done}
    s_load_dwordx2 s[56:57], s[0:1], {KA_X}
    s_load_dwordx2 s[58:59], s[0:1], {KA_WO}
    s_load_dwordx4 s[60:63], s[0:1], {KA_WD}
    s_load_dwordx2 s[4:5], s[0:1], {KA_WS}
    v_lshrrev_b32 v1, 6, v0
    v_and_b32 v0, 63, v0
    v_readfirstlane_b32 s{sW}, v1
    s_and_b32 s{sRT}, s2, 7
    s_lshl_b32 s{sRT}, s{sRT}, 2
    s_lshr_b32 s{sCT}, s2, 6
    s_add_u32 s{sRT}, s{sRT}, s{sCT}
    s_lshr_b32 s{sCT}, s2, 3
    s_and_b32 s{sCT}, s{sCT}, 7
    s_and_b32 s{sQR}, s{sW}, 1
    s_lshr_b32 s{sQC}, s{sW}, 1
    s_and_b32 s{sQC}, s{sQC}, 1
    s_lshr_b32 s{sKG}, s{sW}, 2
    s_waitcnt lgkmcnt(0)
    """)
    stamp(A, 0); stamp(A, 5, True)
    srd(A, S_X, 56, 57, 2048*1024)
    srd(A, S_WO, 58, 59, 4096*1024)
    srd(A, S_WD, 60, 61, 1792*1024)
    srd(A, S_OUT, 62, 63, 2048*1024)
    srd(A, S_CTX, 4, 5, 16*1024*1024, WS_CTX)
    srd(A, S_H, 4, 5, 64*112*1024, WS_H)
    srd(A, S_A, 4, 5, 16*1024*1024, WS_CTX)
    srd(A, S_B, 58, 59, 4096*1024)
    vL16, vDW, vDW2 = 1, 2, 3
    vRX, vRW = 4, 5
    if HELPER:
        lmain = A.newlabel("k3_main")
        A(f"s_cmp_lt_u32 s{sW}, 8")
        A(f"s_cbranch_scc1 {lmain}")
        A(f"""
        v_and_b32 v2, 31, v0
        v_lshlrev_b32 v2, 10, v2                     ; row*1024
        s_and_b32 s{sT}, s{sRT}, 3
        s_lshl_b32 s{sT}, s{sT}, 15
        s_lshl_b32 s{sT+1}, s{sCT}, 7
        s_add_u32 s{sT}, s{sT}, s{sT+1}
        v_add_u32 v2, s{sT}, v2
        v_and_b32 v3, 15, v0
        v_lshlrev_b32 v3, 7, v3
        s_and_b32 s{sT}, s{sCT}, 3
        s_lshl_b32 s{sT}, s{sT}, 11
        v_add_u32 v3, s{sT}, v3
        s_lshl_b32 s{sT}, s{sRT}, 1
        s_lshr_b32 s{sT+1}, s{sCT}, 2
        s_add_u32 s{sT}, s{sT}, s{sT+1}              ; rowblk32
        s_lshl_b32 s{sSX}, s{sT}, 18
        s_mul_i32 s{sSH}, s{sT}, {112*1024}
        s_mov_b32 s{sST}, {NB-1}
        s_mov_b32 s{sLI}, 0
        """)
        ltouch = A.newlabel("k3_touch"); lf = A.newlabel("k3_tf"); lb = A.newlabel("k3_tb"); lnt = A.newlabel("k3_nt")
        A.label(ltouch)
        A(f"""
        s_cmp_ge_u32 s{sST}, {NS}
        s_cbranch_scc1 {lnt}
        s_cmp_ge_u32 s{sST}, {NS_S}
        s_cbranch_scc1 {lf}
        s_lshl_b32 s{sT}, s{sST}, 17
        s_lshl_b32 s{sT+1}, s{sST}, 13
        s_add_u32 s{sT+1}, s{sT+1}, s{sSX}
        buffer_load_dword v8, v2, s[{S_WO}:{S_WO+3}], s{sT} offen
        buffer_load_dword v9, v3, s[{S_CTX}:{S_CTX+3}], s{sT+1} offen
        s_branch {lb}
        """)
        A.label(lf)
        A(f"""
        s_sub_u32 s{sT+2}, s{sST}, {NS_S}
        s_lshl_b32 s{sT}, s{sT+2}, 17
        s_lshl_b32 s{sT+1}, s{sT+2}, 13
        s_add_u32 s{sT+1}, s{sT+1}, s{sSH}
        buffer_load_dword v8, v2, s[{S_WD}:{S_WD+3}], s{sT} offen
        buffer_load_dword v9, v3, s[{S_H}:{S_H+3}], s{sT+1} offen
        """)
        A.label(lb)
        A(f"""
        s_add_u32 s{sST}, s{sST}, 1
        s_sub_u32 s{sT}, s{sST}, s{sLI}
        s_cmp_lt_u32 s{sT}, {PF_DIST + NB}
        s_cbranch_scc1 {ltouch}
        s_waitcnt vmcnt(40)
        s_barrier
        s_add_u32 s{sLI}, s{sLI}, 1
        s_branch {ltouch}
        """)
        A.label(lnt)
        A("s_endpgm")
        A.label(lmain)
    A(f"""
    v_lshlrev_b32 v{vL16}, 4, v0
    v_lshrrev_b32 v6, 3, v0                       ; row = l>>3
    v_lshlrev_b32 v6, 10, v6
    v_and_b32 v7, 7, v0
    v_bfe_u32 v8, v0, 4, 1
    v_lshlrev_b32 v8, 2, v8
    v_xor_b32 v7, v7, v8
    v_lshlrev_b32 v7, 4, v7
    v_add_u32 v{vDW}, v6, v7
    v_add_u32 v{vDW2}, {8*1024-1024}, v{vDW}
    s_lshl_b32 s{sT}, s{sRT}, 1
    s_add_u32 s{sT}, s{sT}, s{sKG}                ; rowblk32
    s_and_b32 s{sT+1}, s{sW}, 3
    s_lshl_b32 s{sT+1}, s{sT+1}, 11
    s_lshl_b32 s{sAO}, s{sT}, 18
    s_add_u32 s{sAO}, s{sAO}, s{sT+1}
    s_mul_i32 s{sSH}, s{sT}, {112*1024}
    s_add_u32 s{sSH}, s{sSH}, s{sT+1}
    s_lshl_b32 s{sSW}, s{sW}, 14
    s_lshl_b32 s{sT}, s{sCT}, 7
    s_add_u32 s{sSW}, s{sSW}, s{sT}
    s_mov_b32 s{sBO}, s{sSW}
    s_lshl_b32 s{sM0}, s{sW}, 11
    s_mov_b32 s{sLI}, 0
    """)
    def pieces(buf):
        b = buf * 32768
        lsw = A.newlabel("k3_sw")
        return [
          [f"s_add_u32 m0, s{sM0}, {b}", "s_nop 0",
           f"buffer_load_dwordx4 v{vL16}, s[{S_A}:{S_A+3}], s{sAO} offen lds"],
          [f"buffer_load_dwordx4 v{vL16}, s[{S_A}:{S_A+3}], s{sAO} offen offset:1024 lds"],
          [f"s_add_u32 m0, s{sM0}, {b + 16384}", f"s_add_u32 s{sAO}, s{sAO}, 8192",
           f"buffer_load_dwordx4 v{vDW}, s[{S_B}:{S_B+3}], s{sBO} offen lds"],
          [f"buffer_load_dwordx4 v{vDW2}, s[{S_B}:{S_B+3}], s{sBO} offen offset:1024 lds",
           f"s_add_u32 s{sBO}, s{sBO}, {128*1024}",
           f"s_add_u32 s{sLI}, s{sLI}, 1",
           f"s_cmp_lg_u32 s{sLI}, {NS_S}",
           f"s_cbranch_scc1 {lsw}",
           f"s_mov_b32 s{S_A}, s{S_H}", f"s_mov_b32 s{S_A+1}, s{S_H+1}", f"s_mov_b32 s{S_A+2}, s{S_H+2}",
           f"s_mov_b32 s{S_B}, s{S_WD}", f"s_mov_b32 s{S_B+1}, s{S_WD+1}", f"s_mov_b32 s{S_B+2}, s{S_WD+2}",
           f"s_mov_b32 s{sAO}, s{sSH}", f"s_mov_b32 s{sBO}, s{sSW}",
           lsw + ":"]]
    def emit(lines):
        for l in lines:
            if l.endswith(":"): A.label(l[:-1])
            else: A(l)
    for st in range(NB - 1):
        for p in pieces(st): emit(p)
    A(f"""
    s_lshl_b32 s{sT}, s{sQR}, 13
    s_lshl_b32 s{sT+1}, s{sKG}, 10
    s_add_u32 s{sT}, s{sT}, s{sT+1}
    v_add_u32 v{vRX}, s{sT}, v{vL16}
    v_lshrrev_b32 v6, 5, v0                       ; g>>1
    v_lshlrev_b32 v6, 9, v6                       ; *4 rows*128
    v_bfe_u32 v7, v0, 2, 2                        ; r
    v_lshlrev_b32 v8, 7, v7
    v_add_u32 v6, v6, v8
    v_bfe_u32 v8, v0, 3, 1                        ; r>>1
    v_lshlrev_b32 v8, 6, v8
    v_add_u32 v6, v6, v8
    v_bfe_u32 v8, v0, 4, 1
    v_lshlrev_b32 v8, 5, v8
    v_add_u32 v6, v6, v8
    v_and_b32 v8, 3, v0
    v_lshlrev_b32 v8, 3, v8
    v_add_u32 v6, v6, v8
    s_lshl_b32 s{sT}, s{sQC}, 6
    v_xor_b32 v6, s{sT}, v6
    s_lshl_b32 s{sT}, s{sKG}, 11
    s_add_u32 s{sT}, s{sT}, 16384
    v_add_u32 v{vRW}, s{sT}, v6
    """)
    RX = [vRX, 10, 11]; RW = [vRW, 12, 13]
    for i in (1, 2):
        A(f"v_add_u32 v{RX[i]}, {65536*i}, v{vRX}")
        A(f"v_add_u32 v{RW[i]}, {65536*i}, v{vRW}")
    AS, AF = 64, 80
    for r in range(32): A(f"v_mov_b32 v{AS+r}, 0")
    FR = 16
    def reads(buf, j):
        b = (buf & 1) * 32768
        fr = FR + j * 8
        return [f"ds_read_b64_tr_b16 {v(fr,2)}, v{RW[buf>>1]} offset:{b + j*4096}",
                f"ds_read_b64_tr_b16 {v(fr+2,2)}, v{RW[buf>>1]} offset:{b + j*4096 + 1024}",
                f"ds_read_b128 {v(fr+4,4)}, v{RX[buf>>1]} offset:{b + j*2048}"]
    stamp(A, 1)
    A(f"s_waitcnt vmcnt({4*(NB-3)})")
    A("s_barrier")
    stamp(A, 2)
    for j in range(2): emit(reads(0, j))
    def stage(buf, acc, wait, do_issue, has_next):
        if wait is not None:
            A(f"s_waitcnt vmcnt({wait})")
            A("s_barrier")
        pcs = pieces((buf + NB - 1) % NB) if do_issue else []
        for j in range(4):
            if j < 2: emit(reads(buf, j + 2)); A("s_waitcnt lgkmcnt(6)")
            elif has_next: emit(reads((buf + 1) % NB, j - 2)); A("s_waitcnt lgkmcnt(6)")
            else: A(f"s_waitcnt lgkmcnt({3*(3-j)})")
            fr = FR + j * 8
            mfma(A, acc, fr, fr + 4, acc)
            if pcs: emit(pcs.pop(0))
    W = 4*(NB-3)
    stage(0, AS, None, True, True)
    A(f"s_mov_b32 s{sST}, 0")
    l1 = A.newlabel("k3_l1")
    A.label(l1)
    for k in range(5): stage((1 + k) % NB, AS, W, True, True)
    A(f"s_add_u32 s{sST}, s{sST}, 1")
    A(f"s_cmp_lt_u32 s{sST}, 6")
    A(f"s_cbranch_scc1 {l1}")
    stage(31 % NB, AS, W, True, True)
    A(f"s_mov_b32 s{sST}, 0")
    l2 = A.newlabel("k3_l2")
    A.label(l2)
    for k in range(5): stage((32 + k) % NB, AF, W, True, True)
    A(f"s_add_u32 s{sST}, s{sST}, 1")
    A(f"s_cmp_lt_u32 s{sST}, 2")
    A(f"s_cbranch_scc1 {l2}")
    for st in range(42, 46):
        rem = NS - 1 - (st + 1)
        stage(st % NB, AF, (4*rem if st < NS - 1 else None), False, st < NS - 1)
    stamp(A, 3)
    A(f"""
    s_nop 7
    s_nop 7
    s_barrier
    s_lshl_b32 s{sT}, s{sW}, 12
    v_add_u32 v6, s{sT}, v{vL16}
    s_xor_b32 s{sT}, s{sT}, 16384
    v_add_u32 v7, s{sT}, v{vL16}
    """)
    l1 = A.newlabel("k3g1"); ld = A.newlabel("k3gd")
    A(f"""
    v_and_b32 v8, 31, v0
    v_lshlrev_b32 v8, 10, v8
    v_lshrrev_b32 v9, 5, v0
    v_lshlrev_b32 v9, 3, v9
    v_add_u32 v8, v8, v9
    s_lshl_b32 s{sT}, s{sRT}, 16
    s_lshl_b32 s{sT+1}, s{sQR}, 15
    s_add_u32 s{sT}, s{sT}, s{sT+1}
    s_lshl_b32 s{sT+1}, s{sCT}, 7
    s_add_u32 s{sT}, s{sT}, s{sT+1}
    s_lshl_b32 s{sT+1}, s{sQC}, 6
    s_add_u32 s{sT}, s{sT}, s{sT+1}
    s_lshl_b32 s{sT+1}, s{sKG}, 5
    s_add_u32 s{sT}, s{sT}, s{sT+1}
    buffer_load_dwordx2 v[10:11], v8, s[{S_X}:{S_X+3}], s{sT} offen
    buffer_load_dwordx2 v[12:13], v8, s[{S_X}:{S_X+3}], s{sT} offen offset:16
    s_cmp_eq_u32 s{sKG}, 0
    s_cbranch_scc0 {l1}
    """)
    for kg in range(2):
        if kg == 1: A.label(l1)
        keep = 8*kg; give = 8 - keep
        A(f"ds_write_b128 v6, {v(AS+give,4)}")
        A(f"ds_write_b128 v6, {v(AS+give+4,4)} offset:1024")
        A(f"ds_write_b128 v6, {v(AF+give,4)} offset:2048")
        A(f"ds_write_b128 v6, {v(AF+give+4,4)} offset:3072")
        A("s_waitcnt lgkmcnt(0)")
        A("s_barrier")
        for i in range(4):
            A(f"ds_read_b128 {v(16+4*i,4)}, v7 offset:{i*1024}")
        A("s_waitcnt lgkmcnt(0)")
        for r in range(8):
            A(f"v_add_f32 v{32+r}, v{AS+keep+r}, v{16+r}")
            A(f"v_add_f32 v{40+r}, v{AF+keep+r}, v{24+r}")
        if kg == 0: A(f"s_branch {ld}")
    A.label(ld)
    A(f"s_mov_b32 s{sT+2}, {f32hex(-LOG2E)}")
    for r in range(8):
        round_bf16(A, 32+r)
        round_bf16(A, 40+r)
        A(f"v_mul_f32 v{48+r}, s{sT+2}, v{40+r}")
        A(f"v_exp_f32 v{48+r}, v{48+r}")
    for r in range(8):
        A(f"v_add_f32 v{48+r}, 1.0, v{48+r}")
        A(f"v_rcp_f32 v{48+r}, v{48+r}")
    for r in range(8):
        A(f"v_mul_f32 v{40+r}, v{40+r}, v{48+r}")
        round_bf16(A, 40+r)
        A(f"v_mul_f32 v{32+r}, v{32+r}, v{40+r}")
        round_bf16(A, 32+r)
    A("s_waitcnt vmcnt(0)")
    for i in range(4):
        A(f"v_lshlrev_b32 v{48}, 16, v{10+i}")
        A(f"v_and_b32 v{49}, 0xffff0000, v{10+i}")
        A(f"v_add_f32 v{32+2*i}, v{32+2*i}, v48")
        A(f"v_add_f32 v{33+2*i}, v{33+2*i}, v49")
        A(f"v_cvt_pk_bf16_f32 v{52+i}, v{32+2*i}, v{33+2*i}")
    A(f"buffer_store_dwordx2 v[52:53], v8, s[{S_OUT}:{S_OUT+3}], s{sT} offen")
    A(f"buffer_store_dwordx2 v[54:55], v8, s[{S_OUT}:{S_OUT+3}], s{sT} offen offset:16")
    if gen.STAMPS:
        A("s_waitcnt vmcnt(0)")
        stamp(A, 4); stamp(A, 6, True)
        stamp_flush(A, 7, 4, 5, sW, SLOT)
    A.label(done)
    A("s_endpgm")
    A.end_kernel(name, 96, 102)
    A.add_launch(name, 256, 576 if HELPER else 512, 163840)
```

```python
import sys
import gen
from asmlib import *
from gen import *
import gen_f, gen_k3
A = Asm()
if "stamps" in sys.argv: gen.STAMPS = True
if "nopretouch" in sys.argv: gen.PRETOUCH = False
if "slow" in sys.argv: gen_f.FORCE_SLOW = True
gen_f.gen_fused(A)
gen_k3.SLOT = 1
gen_k3.gen_k3(A)
open(sys.argv[1], "w").write(A.text(HEADER))
```

```python
from asmlib import *
import gen
from gen import *
from gen_k2 import f32hex, LOG2E

HELPER = False
SLOT = 2
PF_DIST = 10

def gen_k3(A):
    name = "out_kernel"
    A.begin_kernel(name)
    done = A.newlabel("k3_done")
    S_CTX, S_H, S_WO, S_WD, S_X, S_OUT = 8, 12, 16, 20, 24, 28
    S_A, S_B = 32, 36
    sW, sRT, sCT, sQR, sQC, sKG = 40, 41, 42, 43, 44, 45
    sSX, sSH, sSW, sM0 = 46, 47, 48, 49
    sAO, sBO, sLI, sBUF, sST = 50, 51, 52, 53, 54
    sT = 56
    NB = 5
    NS_S, NS_F = 32, 14
    NS = NS_S + NS_F
    A(f"""
    s_cmp_ge_u32 s2, 256
    s_cbranch_scc1 {done}
    s_load_dwordx2 s[56:57], s[0:1], {KA_X}
    s_load_dwordx2 s[58:59], s[0:1], {KA_WO}
    s_load_dwordx4 s[60:63], s[0:1], {KA_WD}
    s_load_dwordx2 s[4:5], s[0:1], {KA_WS}
    v_lshrrev_b32 v1, 6, v0
    v_and_b32 v0, 63, v0
    v_readfirstlane_b32 s{sW}, v1
    s_and_b32 s{sRT}, s2, 7
    s_lshl_b32 s{sRT}, s{sRT}, 2
    s_lshr_b32 s{sCT}, s2, 6
    s_add_u32 s{sRT}, s{sRT}, s{sCT}
    s_lshr_b32 s{sCT}, s2, 3
    s_and_b32 s{sCT}, s{sCT}, 7
    s_and_b32 s{sQR}, s{sW}, 1
    s_lshr_b32 s{sQC}, s{sW}, 1
    s_and_b32 s{sQC}, s{sQC}, 1
    s_lshr_b32 s{sKG}, s{sW}, 2
    s_waitcnt lgkmcnt(0)
    """)
    stamp(A, 0); stamp(A, 5, True)
    srd(A, S_X, 56, 57, 2048*1024)
    srd(A, S_WO, 4, 5, 5888*1024, WS_WF)
    srd(A, S_OUT, 62, 63, 2048*1024)
    srd(A, S_CTX, 4, 5, 16*1024*1024, WS_CTX)
    srd(A, S_H, 4, 5, 64*112*1024, WS_H)
    srd(A, S_A, 4, 5, 16*1024*1024, WS_CTX)
    srd(A, S_B, 4, 5, 5888*1024, WS_WF)
    vL16, vDW, vDW2 = 1, 2, 3
    vRX, vRW = 4, 5
    if HELPER:
        lmain = A.newlabel("k3_main")
        A(f"s_cmp_lt_u32 s{sW}, 8")
        A(f"s_cbranch_scc1 {lmain}")
        A(f"""
        v_and_b32 v2, 31, v0
        v_lshlrev_b32 v2, 10, v2                     ; row*1024
        s_and_b32 s{sT}, s{sRT}, 3
        s_lshl_b32 s{sT}, s{sT}, 15
        s_lshl_b32 s{sT+1}, s{sCT}, 7
        s_add_u32 s{sT}, s{sT}, s{sT+1}
        v_add_u32 v2, s{sT}, v2
        v_and_b32 v3, 15, v0
        v_lshlrev_b32 v3, 7, v3
        s_and_b32 s{sT}, s{sCT}, 3
        s_lshl_b32 s{sT}, s{sT}, 11
        v_add_u32 v3, s{sT}, v3
        s_lshl_b32 s{sT}, s{sRT}, 1
        s_lshr_b32 s{sT+1}, s{sCT}, 2
        s_add_u32 s{sT}, s{sT}, s{sT+1}              ; rowblk32
        s_lshl_b32 s{sSX}, s{sT}, 18
        s_mul_i32 s{sSH}, s{sT}, {112*1024}
        s_mov_b32 s{sST}, {NB-1}
        s_mov_b32 s{sLI}, 0
        """)
        ltouch = A.newlabel("k3_touch"); lf = A.newlabel("k3_tf"); lb = A.newlabel("k3_tb"); lnt = A.newlabel("k3_nt")
        A.label(ltouch)
        A(f"""
        s_cmp_ge_u32 s{sST}, {NS}
        s_cbranch_scc1 {lnt}
        s_cmp_ge_u32 s{sST}, {NS_S}
        s_cbranch_scc1 {lf}
        s_lshl_b32 s{sT}, s{sST}, 17
        s_lshl_b32 s{sT+1}, s{sST}, 13
        s_add_u32 s{sT+1}, s{sT+1}, s{sSX}
        buffer_load_dword v8, v2, s[{S_WO}:{S_WO+3}], s{sT} offen
        buffer_load_dword v9, v3, s[{S_CTX}:{S_CTX+3}], s{sT+1} offen
        s_branch {lb}
        """)
        A.label(lf)
        A(f"""
        s_sub_u32 s{sT+2}, s{sST}, {NS_S}
        s_lshl_b32 s{sT}, s{sT+2}, 17
        s_lshl_b32 s{sT+1}, s{sT+2}, 13
        s_add_u32 s{sT+1}, s{sT+1}, s{sSH}
        buffer_load_dword v8, v2, s[{S_WD}:{S_WD+3}], s{sT} offen
        buffer_load_dword v9, v3, s[{S_H}:{S_H+3}], s{sT+1} offen
        """)
        A.label(lb)
        A(f"""
        s_add_u32 s{sST}, s{sST}, 1
        s_sub_u32 s{sT}, s{sST}, s{sLI}
        s_cmp_lt_u32 s{sT}, {PF_DIST + NB}
        s_cbranch_scc1 {ltouch}
        s_waitcnt vmcnt(40)
        s_barrier
        s_add_u32 s{sLI}, s{sLI}, 1
        s_branch {ltouch}
        """)
        A.label(lnt)
        A("s_endpgm")
        A.label(lmain)
    A(f"""
    v_lshlrev_b32 v{vL16}, 4, v0
    v_lshrrev_b32 v6, 3, v0                       ; row = l>>3
    v_lshlrev_b32 v6, 10, v6
    v_and_b32 v7, 7, v0
    v_bfe_u32 v8, v0, 4, 1
    v_lshlrev_b32 v8, 2, v8
    v_xor_b32 v7, v7, v8
    v_lshlrev_b32 v7, 4, v7
    v_add_u32 v{vDW}, v6, v7
    v_add_u32 v{vDW2}, {8*1024-1024}, v{vDW}
    s_lshl_b32 s{sT}, s{sRT}, 1
    s_add_u32 s{sT}, s{sT}, s{sKG}                ; rowblk32
    s_and_b32 s{sT+1}, s{sW}, 3
    s_lshl_b32 s{sT+1}, s{sT+1}, 11
    s_lshl_b32 s{sAO}, s{sT}, 18
    s_add_u32 s{sAO}, s{sAO}, s{sT+1}
    s_mul_i32 s{sSH}, s{sT}, {112*1024}
    s_add_u32 s{sSH}, s{sSH}, s{sT+1}
    s_lshl_b32 s{sSW}, s{sW}, 14
    s_lshl_b32 s{sT}, s{sCT}, 11
    s_add_u32 s{sSW}, s{sSW}, s{sT}
    s_mov_b32 s{sBO}, s{sSW}
    s_lshl_b32 s{sM0}, s{sW}, 11
    s_mov_b32 s{sLI}, 0
    """)
    def pieces(buf):
        b = buf * 32768
        lsw = A.newlabel("k3_sw")
        return [
          [f"s_add_u32 m0, s{sM0}, {b}", "s_nop 0",
           f"buffer_load_dwordx4 v{vL16}, s[{S_A}:{S_A+3}], s{sAO} offen lds"],
          [f"buffer_load_dwordx4 v{vL16}, s[{S_A}:{S_A+3}], s{sAO} offen offset:1024 lds"],
          [f"s_add_u32 m0, s{sM0}, {b + 16384}", f"s_add_u32 s{sAO}, s{sAO}, 8192",
           f"buffer_load_dwordx4 v{vL16}, s[{S_B}:{S_B+3}], s{sBO} offen lds"],
          [f"buffer_load_dwordx4 v{vL16}, s[{S_B}:{S_B+3}], s{sBO} offen offset:1024 lds",
           f"s_add_u32 s{sBO}, s{sBO}, {128*1024}",
           f"s_add_u32 s{sLI}, s{sLI}, 1",
           f"s_cmp_lg_u32 s{sLI}, {NS_S}",
           f"s_cbranch_scc1 {lsw}",
           f"s_mov_b32 s{S_A}, s{S_H}", f"s_mov_b32 s{S_A+1}, s{S_H+1}", f"s_mov_b32 s{S_A+2}, s{S_H+2}",
           f"s_mov_b32 s{sAO}, s{sSH}",
           lsw + ":"]]
    def emit(lines):
        for l in lines:
            if l.endswith(":"): A.label(l[:-1])
            else: A(l)
    for st in range(NB - 1):
        for p in pieces(st): emit(p)
    A(f"""
    s_lshl_b32 s{sT}, s{sQR}, 13
    s_lshl_b32 s{sT+1}, s{sKG}, 10
    s_add_u32 s{sT}, s{sT}, s{sT+1}
    v_add_u32 v{vRX}, s{sT}, v{vL16}
    s_lshl_b32 s{sT}, s{sKG}, 11
    s_lshl_b32 s{sT+1}, s{sQC}, 10
    s_add_u32 s{sT}, s{sT}, s{sT+1}
    s_add_u32 s{sT}, s{sT}, 16384
    v_add_u32 v{vRW}, s{sT}, v{vL16}
    """)
    RX = [vRX, 10, 11]; RW = [vRW, 12, 13]
    for i in (1, 2):
        A(f"v_add_u32 v{RX[i]}, {65536*i}, v{vRX}")
        A(f"v_add_u32 v{RW[i]}, {65536*i}, v{vRW}")
    AS, AF = 64, 80
    for r in range(32): A(f"v_mov_b32 v{AS+r}, 0")
    FR = 16
    def reads(buf, j):
        b = (buf & 1) * 32768
        fr = FR + j * 8
        return [f"ds_read_b128 {v(fr,4)}, v{RW[buf>>1]} offset:{b + j*4096}",
                f"ds_read_b128 {v(fr+4,4)}, v{RX[buf>>1]} offset:{b + j*2048}"]
    stamp(A, 1)
    A(f"s_waitcnt vmcnt({4*(NB-3)})")
    A("s_barrier")
    stamp(A, 2)
    for j in range(2): emit(reads(0, j))
    def stage(buf, acc, wait, do_issue, has_next):
        if wait is not None:
            A(f"s_waitcnt vmcnt({wait})")
            A("s_barrier")
        pcs = pieces((buf + NB - 1) % NB) if do_issue else []
        for j in range(4):
            if j < 2: emit(reads(buf, j + 2)); A("s_waitcnt lgkmcnt(4)")
            elif has_next: emit(reads((buf + 1) % NB, j - 2)); A("s_waitcnt lgkmcnt(4)")
            else: A(f"s_waitcnt lgkmcnt({2*(3-j)})")
            fr = FR + j * 8
            mfma(A, acc, fr, fr + 4, acc)
            if pcs: emit(pcs.pop(0))
    W = 4*(NB-3)
    stage(0, AS, None, True, True)
    A(f"s_mov_b32 s{sST}, 0")
    l1 = A.newlabel("k3_l1")
    A.label(l1)
    for k in range(5): stage((1 + k) % NB, AS, W, True, True)
    A(f"s_add_u32 s{sST}, s{sST}, 1")
    A(f"s_cmp_lt_u32 s{sST}, 6")
    A(f"s_cbranch_scc1 {l1}")
    stage(31 % NB, AS, W, True, True)
    A(f"s_mov_b32 s{sST}, 0")
    l2 = A.newlabel("k3_l2")
    A.label(l2)
    for k in range(5): stage((32 + k) % NB, AF, W, True, True)
    A(f"s_add_u32 s{sST}, s{sST}, 1")
    A(f"s_cmp_lt_u32 s{sST}, 2")
    A(f"s_cbranch_scc1 {l2}")
    for st in range(42, 46):
        rem = NS - 1 - (st + 1)
        stage(st % NB, AF, (4*rem if st < NS - 1 else None), False, st < NS - 1)
    stamp(A, 3)
    A(f"""
    s_nop 7
    s_nop 7
    s_barrier
    s_lshl_b32 s{sT}, s{sW}, 12
    v_add_u32 v6, s{sT}, v{vL16}
    s_xor_b32 s{sT}, s{sT}, 16384
    v_add_u32 v7, s{sT}, v{vL16}
    """)
    l1 = A.newlabel("k3g1"); ld = A.newlabel("k3gd")
    A(f"""
    v_and_b32 v8, 31, v0
    v_lshlrev_b32 v8, 10, v8
    v_lshrrev_b32 v9, 5, v0
    v_lshlrev_b32 v9, 3, v9
    v_add_u32 v8, v8, v9
    s_lshl_b32 s{sT}, s{sRT}, 16
    s_lshl_b32 s{sT+1}, s{sQR}, 15
    s_add_u32 s{sT}, s{sT}, s{sT+1}
    s_lshl_b32 s{sT+1}, s{sCT}, 7
    s_add_u32 s{sT}, s{sT}, s{sT+1}
    s_lshl_b32 s{sT+1}, s{sQC}, 6
    s_add_u32 s{sT}, s{sT}, s{sT+1}
    s_lshl_b32 s{sT+1}, s{sKG}, 5
    s_add_u32 s{sT}, s{sT}, s{sT+1}
    buffer_load_dwordx2 v[10:11], v8, s[{S_X}:{S_X+3}], s{sT} offen
    buffer_load_dwordx2 v[12:13], v8, s[{S_X}:{S_X+3}], s{sT} offen offset:16
    s_cmp_eq_u32 s{sKG}, 0
    s_cbranch_scc0 {l1}
    """)
    for kg in range(2):
        if kg == 1: A.label(l1)
        keep = 8*kg; give = 8 - keep
        A(f"ds_write_b128 v6, {v(AS+give,4)}")
        A(f"ds_write_b128 v6, {v(AS+give+4,4)} offset:1024")
        A(f"ds_write_b128 v6, {v(AF+give,4)} offset:2048")
        A(f"ds_write_b128 v6, {v(AF+give+4,4)} offset:3072")
        A("s_waitcnt lgkmcnt(0)")
        A("s_barrier")
        for i in range(4):
            A(f"ds_read_b128 {v(16+4*i,4)}, v7 offset:{i*1024}")
        A("s_waitcnt lgkmcnt(0)")
        for r in range(8):
            A(f"v_add_f32 v{32+r}, v{AS+keep+r}, v{16+r}")
            A(f"v_add_f32 v{40+r}, v{AF+keep+r}, v{24+r}")
        if kg == 0: A(f"s_branch {ld}")
    A.label(ld)
    A(f"s_mov_b32 s{sT+2}, {f32hex(-LOG2E)}")
    for r in range(8):
        round_bf16(A, 32+r)
        round_bf16(A, 40+r)
        A(f"v_mul_f32 v{48+r}, s{sT+2}, v{40+r}")
        A(f"v_exp_f32 v{48+r}, v{48+r}")
    for r in range(8):
        A(f"v_add_f32 v{48+r}, 1.0, v{48+r}")
        A(f"v_rcp_f32 v{48+r}, v{48+r}")
    for r in range(8):
        A(f"v_mul_f32 v{40+r}, v{40+r}, v{48+r}")
        round_bf16(A, 40+r)
        A(f"v_mul_f32 v{32+r}, v{32+r}, v{40+r}")
        round_bf16(A, 32+r)
    A("s_waitcnt vmcnt(0)")
    for i in range(4):
        A(f"v_lshlrev_b32 v{48}, 16, v{10+i}")
        A(f"v_and_b32 v{49}, 0xffff0000, v{10+i}")
        A(f"v_add_f32 v{32+2*i}, v{32+2*i}, v48")
        A(f"v_add_f32 v{33+2*i}, v{33+2*i}, v49")
        A(f"v_cvt_pk_bf16_f32 v{52+i}, v{32+2*i}, v{33+2*i}")
    A(f"buffer_store_dwordx2 v[52:53], v8, s[{S_OUT}:{S_OUT+3}], s{sT} offen")
    A(f"buffer_store_dwordx2 v[54:55], v8, s[{S_OUT}:{S_OUT+3}], s{sT} offen offset:16")
    if gen.STAMPS:
        A("s_waitcnt vmcnt(0)")
        stamp(A, 4); stamp(A, 6, True)
        stamp_flush(A, 7, 4, 5, sW, SLOT)
    A.label(done)
    A("s_endpgm")
    A.end_kernel(name, 96, 102)
    A.add_launch(name, 256, 576 if HELPER else 512, 163840)
```

```python
from asmlib import *
import gen
from gen import *
import math, struct
from gen_k2 import f32hex, LOG2E, QSCALE, GC1, GC2, BIGL, NEGBIG, MFLOOR

FORCE_SLOW = False
BULK = 1
TOUCH_ST = 6
SPIN_MAX = 1 << 18
KV_SIGNAL_STAGE = 0

def gen_fused(A):
    name = "main_kernel"
    A.begin_kernel(name)
    done = A.newlabel("f_done")
    S_XN, S_WG, S_WU, S_WQ, S_KF, S_VF, S_H, S_CTX = 8, 12, 16, 20, 24, 28, 32, 36
    S_CKV, S_W, S_X, S_KVO = 24, 28, 32, 32
    S_DBG = 76
    sW, sH, sI, sP, sC, sG, sWR = 40, 41, 42, 43, 44, 45, 46
    sSX, sSWF, sSWQ, sM0 = 47, 48, 49, 50
    sFT, sRBF, sRBO = 51, 52, 53
    sBLK, sIT, sNIT = 54, 55, 56
    sKN, sVN = 57, 58
    sM0K, sM0V = 59, 60
    sHB = 61
    sPASS = 62
    sKJ, sVJ = 63, 64
    sB0 = 65
    sT = 66
    sMK = 12
    sSX1, sSW1, sM0X, sM0W = 54, 55, 56, 57
    sWM, sWN = sG, sWR
    A(f"""
    s_cmp_ge_u32 s2, 256
    s_cbranch_scc1 {done}
    s_load_dwordx8 s[56:63], s[0:1], {KA_X}
    s_load_dwordx4 s[64:67], s[0:1], {KA_WUV}
    s_load_dwordx4 s[68:71], s[0:1], {KA_WG}
    s_load_dwordx2 s[100:101], s[0:1], {KA_WD}
    s_load_dwordx4 s[72:75], s[0:1], {KA_DBG}
    s_getpc_b64 s[76:77]
code_here:
    v_lshlrev_b32 v247, 7, v0
    v_min_u32 v247, code_end - code_here - 4, v247
    global_load_dword v247, v247, s[76:77]
    v_lshrrev_b32 v1, 6, v0
    v_and_b32 v0, 63, v0
    v_readfirstlane_b32 s{sW}, v1
    s_and_b32 s{sH}, s2, 7
    s_lshl_b32 s{sH}, s{sH}, 2
    s_lshr_b32 s{sI}, s2, 3
    s_and_b32 s{sI}, s{sI}, 3
    s_add_u32 s{sH}, s{sH}, s{sI}                ; head
    s_lshr_b32 s{sI}, s2, 5
    s_and_b32 s{sP}, s{sW}, 1
    s_lshr_b32 s{sC}, s{sW}, 1
    s_lshr_b32 s{sG}, s{sW}, 2
    s_and_b32 s{sWR}, s{sW}, 3
    v_lshlrev_b32 v1, 4, v0
    s_waitcnt lgkmcnt(0)
    s_mov_b32 s4, s74
    s_mov_b32 s5, s75
    s_mov_b32 s6, s66
    s_mov_b32 s7, s67
    """)
    vL16 = 1
    stamp(A, 0); stamp(A, 8, True)
    srd(A, S_X, 56, 57, 2048*1024)
    srd(A, S_CKV, 58, 59, 2048*1024)
    srd(A, S_WQ, 60, 61, 512*8192)
    A(f"""
    s_cmp_lt_u32 s{sW}, 4
    s_cselect_b32 s{S_W}, s62, s64
    s_cselect_b32 s{S_W+1}, s63, s65
    s_mov_b32 s{S_W+2}, {512*8192:#x}
    s_mov_b32 s{S_W+3}, 0x00020000
    """)
    srd(A, 36, 62, 63, 512*8192)
    srd(A, 92, 64, 65, 512*8192)
    srd(A, S_WG, 68, 69, 512*3584)
    srd(A, S_WU, 70, 71, 512*3584)
    srd(A, S_DBG, 72, 73, 256)
    sGRP, sXCC, sSLOW = 3, 74, 75
    srd(A, S_XN, 4, 5, 2048*1024, WS_XN)
    sROW = 58
    vLN = 200
    A(f"""
    s_and_b32 s{sGRP}, s2, 7
    s_sub_u32 s{sB0}, 15, s{sI}
    s_getreg_b32 s{sXCC}, hwreg(HW_REG_XCC_ID)
    s_and_b32 s{sXCC}, s{sXCC}, 7
    s_lshl_b32 s{sXCC}, s{sXCC}, 3
    s_cmp_lt_u32 s{sH}, 16
    s_cselect_b32 s{sROW}, s{sI}, s{sB0}
    s_lshl_b32 s{sROW}, s{sROW}, 7
    s_and_b32 s{sT}, s{sH}, 15
    s_lshl_b32 s{sT}, s{sT}, 3
    s_add_u32 s{sROW}, s{sROW}, s{sT}
    s_add_u32 s{sROW}, s{sROW}, s{sW}
    s_lshl_b32 s{sT+1}, s{sROW}, 10
    s_lshl_b32 s{sT}, s{sW}, 10
    s_add_u32 m0, s{sT}, 0x20000
    v_add_u32 v{vLN+4}, 0x20000, v{vL16}
    v_add_u32 v{vLN+4}, s{sT}, v{vLN+4}
    buffer_load_dwordx4 v{vL16}, s[{S_X}:{S_X+3}], s{sT+1} offen lds
    """)
    lsk = A.newlabel("f_nocen")
    A(f"""
    v_mov_b32 v14, 0
    v_mov_b32 v15, 1
    s_mov_b64 s[{sT+2}:{sT+3}], 1
    s_lshl_b64 s[{sT+2}:{sT+3}], s[{sT+2}:{sT+3}], s{sXCC}
    v_mov_b32 v8, s{sT+2}
    v_mov_b32 v9, s{sT+3}
    s_lshl_b32 s{sT}, s{sGRP}, 3
    s_cmp_lg_u32 s{sW}, 0
    s_cbranch_scc1 {lsk}
    s_mov_b64 exec, 1
    buffer_atomic_add_x2 v[8:9], v14, s[{S_DBG}:{S_DBG+3}], s{sT} offen sc1
    s_mov_b64 exec, -1
    """)
    A.label(lsk)
    A(f"""
    s_cmp_lt_u32 s{sH}, 14
    s_cselect_b32 s{sRBF}, s{sI}, s{sB0}
    s_cselect_b32 s{sRBO}, s{sB0}, s{sI}
    s_sub_u32 s{sFT}, s{sH}, 14
    s_cselect_b32 s{sFT}, s{sH}, s{sFT}
    s_cmp_ge_u32 s{sFT}, 14
    s_cselect_b32 s{sFT}, 0, s{sFT}
    """)
    vDX, vDX2, vDW, vDW2 = 2, 3, 4, 5
    A(f"""
    v_lshrrev_b32 v6, 2, v0
    v_lshlrev_b32 v6, 10, v6
    v_lshrrev_b32 v7, 4, v0
    v_and_b32 v8, 3, v0
    v_xor_b32 v8, v8, v7
    v_lshlrev_b32 v8, 4, v8
    v_add_u32 v{vDX}, v6, v8
    v_add_u32 v{vDX2}, {16*1024-1024}, v{vDX}
    v_lshlrev_b32 v6, 13, v7
    v_and_b32 v8, 15, v0
    v_lshlrev_b32 v9, 2, v7
    v_xor_b32 v8, v8, v9
    v_lshlrev_b32 v8, 4, v8
    v_add_u32 v{vDW}, v6, v8
    v_add_u32 v{vDW2}, {32768-1024}, v{vDW}
    s_lshl_b32 s{sSX1}, s{sI}, 18
    s_lshl_b32 s{sT+2}, s{sW}, 15
    s_add_u32 s{sSX1}, s{sSX1}, s{sT+2}
    s_lshl_b32 s{sSW1}, s{sWN}, 16
    s_lshl_b32 s{sT+2}, s{sH}, 8
    s_add_u32 s{sSW1}, s{sSW1}, s{sT+2}
    s_lshl_b32 s{sM0X}, s{sW}, 11
    s_add_u32 s{sM0W}, s{sM0X}, 0x10000
    """)
    def pieces(st):
        buf = st & 3
        return [
         [f"s_add_u32 m0, s{sM0X}, {buf*16384}", f"s_add_u32 s{sT+2}, s{sSX1}, {st*64}",
          f"buffer_load_dwordx4 v{vDX}, s[{S_CKV}:{S_CKV+3}], s{sT+2} offen lds"],
         [f"buffer_load_dwordx4 v{vDX2}, s[{S_CKV}:{S_CKV+3}], s{sT+2} offen offset:1024 lds"],
         [f"s_add_u32 m0, s{sM0W}, {buf*16384}", f"s_add_u32 s{sT+3}, s{sSW1}, {st*32*8192}",
          f"buffer_load_dwordx4 v{vDW}, s[{S_W}:{S_W+3}], s{sT+3} offen lds"],
         [f"buffer_load_dwordx4 v{vDW2}, s[{S_W}:{S_W+3}], s{sT+3} offen offset:1024 lds"]]
    for st in range(3):
        for p in pieces(st):
            for l in p: A(l)
    if BULK == 2:
        A(f"""
        s_lshl_b32 s{sT}, s2, 3
        s_add_u32 s{sT}, s{sT}, s{sW}
        s_lshl_b32 s{sT+1}, s{sT}, 10
        s_lshl_b32 s{sT}, s{sT}, 11
        v_lshlrev_b32 v6, 7, v0
        s_mov_b64 exec, 0xff
        buffer_load_dword v9, v6, s[{S_CKV}:{S_CKV+3}], s{sT+1} offen
        s_mov_b64 exec, 0xffff
        buffer_load_dword v9, v6, s[36:39], s{sT} offen
        buffer_load_dword v9, v6, s[92:95], s{sT} offen
        s_mov_b64 exec, -1
        """)
    if BULK == 1:
        A(f"""
        s_lshr_b32 s{sT}, s2, 3
        s_lshl_b32 s{sT}, s{sT}, 3
        s_add_u32 s{sT}, s{sT}, s{sW}
        s_lshl_b32 s{sT+1}, s{sT}, 13
        v_lshlrev_b32 v6, 7, v0
        buffer_load_dword v9, v6, s[{S_CKV}:{S_CKV+3}], s{sT+1} offen
        v_and_b32 v6, 7, v0
        v_lshlrev_b32 v6, 7, v6
        v_bfe_u32 v7, v0, 3, 1
        v_lshlrev_b32 v7, 13, v7
        v_add_u32 v6, v6, v7
        s_lshl_b32 s{sT+1}, s{sT}, 14
        s_lshl_b32 s{sT}, s{sGRP}, 10
        s_add_u32 s{sT+1}, s{sT+1}, s{sT}
        s_mov_b64 exec, 0xffff
        buffer_load_dword v9, v6, s[36:39], s{sT+1} offen
        buffer_load_dword v9, v6, s[92:95], s{sT+1} offen
        s_mov_b64 exec, -1
        """)
    A(f"""
    s_mov_b32 s{sT}, {WS_KF:#x}
    s_cmp_lt_u32 s{sWN}, 2
    s_cselect_b32 s{sT}, s{sT}, {WS_VF:#x}
    s_add_u32 s{S_KVO}, s4, s{sT}
    s_addc_u32 s{S_KVO+1}, s5, 0
    s_mov_b32 s{S_KVO+2}, {16*1024*1024:#x}
    s_mov_b32 s{S_KVO+3}, 0x00020000
    """)
    vRX = [10, 11]; vRW = [12, 13]
    A(f"""
    v_and_b32 v6, 31, v0
    v_lshrrev_b32 v7, 5, v0
    v_lshrrev_b32 v8, 2, v6
    v_and_b32 v8, 3, v8
    v_xor_b32 v8, v8, v7
    v_lshlrev_b32 v8, 4, v8
    v_lshlrev_b32 v6, 6, v6
    v_add_u32 v6, v6, v8
    s_lshl_b32 s{sT+2}, s{sWM}, 13
    v_add_u32 v{vRX[0]}, s{sT+2}, v6
    v_xor_b32 v{vRX[1]}, 32, v{vRX[0]}
    v_lshrrev_b32 v6, 5, v0
    v_lshlrev_b32 v6, 11, v6
    v_bfe_u32 v7, v0, 2, 2
    v_lshlrev_b32 v8, 8, v7
    v_add_u32 v6, v6, v8
    v_lshlrev_b32 v8, 6, v7
    v_add_u32 v6, v6, v8
    v_bfe_u32 v8, v0, 4, 1
    v_lshlrev_b32 v8, 5, v8
    v_add_u32 v6, v6, v8
    v_and_b32 v8, 3, v0
    v_lshlrev_b32 v8, 3, v8
    v_add_u32 v198, v6, v8
    s_lshr_b32 s{sT+2}, s{sWN}, 1
    s_lshl_b32 s{sT+2}, s{sT+2}, 13
    s_add_u32 s{sT+2}, s{sT+2}, 0x10000
    v_add_u32 v6, s{sT+2}, v198
    s_and_b32 s{sT+2}, s{sWN}, 1
    s_lshl_b32 s{sT+2}, s{sT+2}, 7
    v_xor_b32 v{vRW[0]}, s{sT+2}, v6
    v_xor_b32 v{vRW[1]}, 64, v{vRW[0]}
    """)
    f = vLN + 4
    t = vLN + 12
    A("s_waitcnt vmcnt(%d)" % (15 if BULK else 12))
    A(f"ds_read_b128 {v(vLN,4)}, v{vLN+4}")
    A("s_waitcnt lgkmcnt(0)")
    for i in range(4):
        A(f"v_lshlrev_b32 v{f+2*i}, 16, v{vLN+i}")
        A(f"v_and_b32 v{f+2*i+1}, 0xffff0000, v{vLN+i}")
    A(f"v_add_f32 v{t}, v{f}, v{f+1}")
    for i in range(2, 8):
        A(f"v_add_f32 v{t}, v{t}, v{f+i}")
    wave_allreduce_add(A, t, None, sT+4)
    A(f"v_mul_f32 v{t}, {1.0/512!r}, v{t}")
    A(f"v_sub_f32 v{t+1}, v{f}, v{t}")
    A(f"v_mul_f32 v{t+2}, v{t+1}, v{t+1}")
    for i in range(1, 8):
        A(f"v_sub_f32 v{t+1}, v{f+i}, v{t}")
        A(f"v_fmac_f32 v{t+2}, v{t+1}, v{t+1}")
    wave_allreduce_add(A, t+2, None, sT+4)
    A(f"v_mul_f32 v{t+2}, {1.0/512!r}, v{t+2}")
    round_bf16(A, t)
    round_bf16(A, t+2)
    A(f"v_add_f32 v{t+2}, 0x3727c5ac, v{t+2}")
    round_bf16(A, t+2)
    A(f"v_sqrt_f32 v{t+2}, v{t+2}")
    A("s_nop 0")
    round_bf16(A, t+2)
    A(f"v_rcp_f32 v{t+3}, v{t+2}")
    A("s_nop 0")
    for i in range(8):
        A(f"v_sub_f32 v{f+i}, v{f+i}, v{t}")
        round_bf16(A, f+i)
        A(f"v_mul_f32 v{t+4}, v{f+i}, v{t+3}")
        A(f"v_fma_f32 v{t+5}, -v{t+4}, v{t+2}, v{f+i}")
        A(f"v_fma_f32 v{f+i}, v{t+5}, v{t+3}, v{t+4}")
    for i in range(4):
        A(f"v_cvt_pk_bf16_f32 v{vLN+i}, v{f+2*i}, v{f+2*i+1}")
    A(f"""
    v_lshrrev_b32 v6, 1, v0
    v_lshlrev_b32 v6, 10, v6
    v_and_b32 v7, 1, v0
    v_lshlrev_b32 v7, 9, v7
    v_add_u32 v6, v6, v7
    s_lshr_b32 s{sT+2}, s{sROW}, 5
    s_lshl_b32 s{sT+2}, s{sT+2}, 15
    s_and_b32 s{sT+3}, s{sROW}, 31
    s_lshl_b32 s{sT+3}, s{sT+3}, 4
    s_add_u32 s{sT+2}, s{sT+2}, s{sT+3}
    buffer_store_dwordx4 v[{vLN}:{vLN+3}], v6, s[{S_XN}:{S_XN+3}], s{sT+2} offen sc0 sc1
    """)
    vCEN = 232
    def census_load(zero):
        A(f"s_lshl_b32 s{sT+6}, s{sGRP}, 3")
        A(f"buffer_load_dwordx2 {v(vCEN,2)}, v{zero}, s[{S_DBG}:{S_DBG+3}], s{sT+6} offen sc1")
    def census_eval():
        A(f"""
        v_readfirstlane_b32 s{sT+6}, v{vCEN}
        v_readfirstlane_b32 s{sT+7}, v{vCEN+1}
        s_lshr_b64 s[{sT+6}:{sT+7}], s[{sT+6}:{sT+7}], s{sXCC}
        s_and_b32 s{sT+6}, s{sT+6}, 0xff
        s_cmp_lg_u32 s{sT+6}, 32
        s_cselect_b32 s{sSLOW}, 1, 0
        """)
        if FORCE_SLOW: A(f"s_mov_b32 s{sSLOW}, 1")
    def signal(one, zero, soff):
        A("s_mov_b64 exec, 1")
        A(f"buffer_atomic_add v{one}, v{zero}, s[{S_DBG}:{S_DBG+3}], s{soff} offen sc1")
        A("s_mov_b64 exec, -1")
    def flag_add(word_sgpr_expr_lines, sreg):
        for l in word_sgpr_expr_lines: A(l)
        A("s_mov_b64 exec, 1")
        A(f"buffer_atomic_add v15, v14, s[{S_DBG}:{S_DBG+3}], s{sreg} offen sc1")
        A("s_mov_b64 exec, -1")
    def flag_wait(vreg, soff, target):
        lok = A.newlabel("fl_ok"); lsp = A.newlabel("fl_spin")
        A(f"s_mov_b32 s{sT+7}, 0")
        A("s_nop 0")
        A.label(lsp)
        A(f"""
        v_readfirstlane_b32 s{sT+6}, v{vreg}
        s_cmp_ge_u32 s{sT+6}, {target}
        s_cbranch_scc1 {lok}
        s_add_u32 s{sT+7}, s{sT+7}, 1
        s_cmp_ge_u32 s{sT+7}, {SPIN_MAX}
        s_cbranch_scc1 {lok}
        s_sleep 8
        buffer_load_dword v{vreg}, v14, s[{S_DBG}:{S_DBG+3}], s{soff} offen sc1
        s_waitcnt vmcnt(0)
        s_branch {lsp}
        """)
        A.label(lok)

    sFLN, sFKV = 58, 59
    A(f"s_lshl_b32 s{sFLN}, s{sI}, 2")
    A(f"s_add_u32 s{sFLN}, s{sFLN}, 64")
    A(f"s_lshl_b32 s{sFKV}, s{sH}, 2")
    A(f"s_add_u32 s{sFKV}, s{sFKV}, 128")
    ACC = 64
    FR = [16, 40]
    def reads(ks):
        st, kp = ks >> 1, ks & 1
        buf = st & 3
        fr = FR[ks & 1]
        L = []
        for nb in range(2):
            for tt in range(2):
                L.append(f"ds_read_b64_tr_b16 {v(fr+16+nb*4+tt*2,2)}, v{vRW[nb]} offset:{buf*16384 + kp*4096 + tt*1024}")
        for kb in range(4):
            L.append(f"ds_read_b128 {v(fr+kb*4,4)}, v{vRX[kp]} offset:{buf*16384 + kb*2048}")
        return L
    lblV = A.newlabel("p1_v"); lblE = A.newlabel("p1_epi")
    stamp(A, 1)
    A("s_waitcnt vmcnt(%d)" % (4 if BULK else 1))
    A("s_barrier")
    A(f"""
    s_lshl_b32 s{sT+2}, s2, 3
    s_add_u32 s{sT+2}, s{sT+2}, s{sW}
    s_lshl_b32 s60, s{sT+2}, 11
    s_mul_i32 s61, s{sT+2}, 896
    v_lshlrev_b32 v8, 7, v0
    """)
    def touch2(S4, S175a, S175b, dst, va):
        A("s_mov_b64 exec, 0xffff")
        A(f"buffer_load_dword v{dst}, v{va}, s[{S4}:{S4+3}], s60 offen")
        A("s_mov_b64 exec, 0x7f")
        A(f"buffer_load_dword v{dst}, v{va}, s[{S175a}:{S175a+3}], s61 offen")
        if S175b: A(f"buffer_load_dword v{dst}, v{va}, s[{S175b}:{S175b+3}], s61 offen")
        A("s_mov_b64 exec, -1")
    A(f"s_cmp_ge_u32 s{sWN}, 2")
    A(f"s_cbranch_scc1 {lblV}")
    vFL = 199
    for ver in range(2):
        if ver == 1: A.label(lblV)
        for r in reads(0): A(r)
        for st in range(16):
            if st > 0:
                n_out = 4 if st < 14 else (0 if st == 14 else None)
                if n_out is not None:
                    A(f"s_waitcnt vmcnt({n_out})")
                    A("s_barrier")
            pcs = pieces(st + 3) if st + 3 < 16 else []
            if st == 1 and ver == 0:
                lsk = A.newlabel("p1_nf")
                A(f"s_cmp_lg_u32 s{sW}, 0")
                A(f"s_cbranch_scc1 {lsk}")
                signal(15, 14, sFLN)
                A.label(lsk)
            if st == TOUCH_ST and gen.PRETOUCH:
                touch2(S_WQ, S_WG, S_WU, 9, 8)
            if st == 14:
                A(f"buffer_load_dword v{vFL}, v14, s[{S_DBG}:{S_DBG+3}], s{sFLN} offen sc1")
                census_load(14)
            for kp in range(2):
                ks = 2*st + kp
                fr = FR[ks & 1]
                nxt = reads(ks + 1) if ks + 1 < 32 else []
                idx = 0
                for kb in range(4):
                    for nb in range(2):
                        if nb == 0:
                            A(f"s_waitcnt lgkmcnt({min((8 - (4 + kb + 1)) + idx, 15)})")
                        d = ACC + (kb*2+nb)*16
                        xa, wa = fr + kb*4, fr + 16 + nb*4
                        c = None if ks == 0 else d
                        if ver == 0: mfma(A, d, wa, xa, c)
                        else:        mfma(A, d, xa, wa, c)
                        if idx < len(nxt):
                            A(nxt[idx]); idx += 1
                        if pcs and (kb*2+nb) % 4 == 1:
                            for l in pcs.pop(0): A(l)
        if ver == 0: A(f"s_branch {lblE}")
    A.label(lblE)
    stamp(A, 2)
    vDF, vDQ = 192, 193
    vRXl, vRXh, vRWl, vRWh = 194, 195, 196, 197
    STG = 40960
    A(f"""
    v_lshrrev_b32 v7, 4, v0
    v_and_b32 v8, 15, v0
    v_lshlrev_b32 v9, 2, v7
    v_xor_b32 v8, v8, v9
    v_lshlrev_b32 v8, 4, v8
    v_mul_u32_u24 v6, 3584, v7
    v_add_u32 v{vDF}, v6, v8
    v_lshlrev_b32 v6, 13, v7
    v_add_u32 v{vDQ}, v6, v8
    s_cmp_lt_u32 s{sW}, 4
    s_cselect_b32 s{sT}, s{sRBF}, s{sRBO}
    s_lshl_b32 s{sT}, s{sT}, 2
    s_add_u32 s{sT}, s{sT}, s{sWR}
    s_lshl_b32 s{sSX}, s{sT}, 15
    s_mul_i32 s{sSWF}, s{sW}, {4*3584}
    s_lshl_b32 s{sT}, s{sFT}, 8
    s_add_u32 s{sSWF}, s{sSWF}, s{sT}
    s_lshl_b32 s{sSWQ}, s{sW}, 15
    s_lshl_b32 s{sT}, s{sH}, 8
    s_add_u32 s{sSWQ}, s{sSWQ}, s{sT}
    s_lshl_b32 s{sM0}, s{sW}, 10
    s_lshl_b32 s{sNIT}, s{sW}, 11
    s_lshl_b32 s{sT}, s{sP}, 12
    v_add_u32 v{vRXl}, s{sT}, v{vL16}
    v_add_u32 v{vRXh}, {2*STG}, v{vRXl}
    s_lshl_b32 s{sT}, s{sC}, 6
    v_xor_b32 v6, s{sT}, v198
    v_add_u32 v{vRWl}, 16384, v6
    v_add_u32 v{vRWh}, {2*STG}, v{vRWl}
    s_waitcnt vmcnt(0)
    s_barrier
    """)
    census_eval()
    flag_wait(vFL, sFLN, 32)
    def gpieces(st):
        b = (st & 3) * STG
        return [
         [f"s_add_u32 m0, s{sNIT}, {b}", f"s_add_u32 s{sT+1}, s{sSX}, {st*2048}",
          f"buffer_load_dwordx4 v{vL16}, s[{S_XN}:{S_XN+3}], s{sT+1} offen sc1 lds"],
         [f"buffer_load_dwordx4 v{vL16}, s[{S_XN}:{S_XN+3}], s{sT+1} offen offset:1024 sc1 lds"],
         [f"s_add_u32 m0, s{sM0}, {b+16384}", f"s_add_u32 s{sT+2}, s{sSWF}, {st*32*3584}",
          f"buffer_load_dwordx4 v{vDF}, s[{S_WG}:{S_WG+3}], s{sT+2} offen lds"],
         [f"s_add_u32 m0, s{sM0}, {b+24576}", f"s_add_u32 s{sT+3}, s{sSWQ}, {st*32*8192}",
          f"buffer_load_dwordx4 v{vDF}, s[{S_WU}:{S_WU+3}], s{sT+2} offen lds"],
         [f"s_add_u32 m0, s{sM0}, {b+32768}", "s_nop 0",
          f"buffer_load_dwordx4 v{vDQ}, s[{S_WQ}:{S_WQ+3}], s{sT+3} offen lds"]]
    for st in range(3):
        for p in gpieces(st):
            for l in p: A(l)
    A(f"""
    s_lshl_b32 s{sT+4}, s{sH}, 19
    s_lshl_b32 s{sT+5}, s{sI}, 16
    s_add_u32 s{sT+4}, s{sT+4}, s{sT+5}
    s_lshl_b32 s{sT+5}, s{sWM}, 15
    s_add_u32 s{sT+4}, s{sT+4}, s{sT+5}
    s_and_b32 s{sT+5}, s{sWN}, 1
    s_lshl_b32 s{sT+5}, s{sT+5}, 12
    s_add_u32 s{sT+4}, s{sT+4}, s{sT+5}
    """)
    lwt = A.newlabel("p1e_wt"); lje = A.newlabel("p1e_join")
    A(f"s_cmp_lg_u32 s{sSLOW}, 0")
    A(f"s_cbranch_scc1 {lwt}")
    for wt in range(2):
        if wt: A.label(lwt)
        fl = " sc0 sc1" if wt else ""
        for kb in range(4):
            for nb in range(2):
                d = ACC + (kb*2+nb)*16
                p = 200 + ((kb*2+nb) & 3) * 8
                for i in range(8):
                    A(f"v_cvt_pk_bf16_f32 v{p+i}, v{d+2*i}, v{d+2*i+1}")
                A(f"buffer_store_dwordx4 {v(p,4)}, v{vL16}, s[{S_KVO}:{S_KVO+3}], s{sT+4} offen offset:{nb*2048}{fl}")
                A(f"buffer_store_dwordx4 {v(p+4,4)}, v{vL16}, s[{S_KVO}:{S_KVO+3}], s{sT+4} offen offset:{nb*2048+1024}{fl}")
            if kb < 3:
                A(f"s_add_u32 s{sT+4}, s{sT+4}, 8192")
        if not wt: A(f"s_branch {lje}")
    A.label(lje)
    stamp(A, 3)
    srd(A, S_KF, 4, 5, 16*1024*1024, WS_KF)
    srd(A, S_VF, 4, 5, 16*1024*1024, WS_VF)
    srd(A, S_H, 4, 5, 64*112*1024, WS_H)
    srd(A, S_CTX, 4, 5, 16*1024*1024, WS_CTX)
    FR = [8, 36]
    XOFF = [0, 2048, 8192, 10240]
    def greads(ks):
        st, kp = ks >> 1, ks & 1
        buf = st & 3
        fr = FR[ks & 1]
        rx = vRXl if buf < 2 else vRXh
        rw = vRWl if buf < 2 else vRWh
        bo = (buf & 1) * STG
        def wr(sub):
            return [f"ds_read_b64_tr_b16 {v(fr+sub*4+tt*2,2)}, v{rw} offset:{bo + sub*8192 + kp*4096 + tt*1024}" for tt in range(2)]
        def xr(i):
            return [f"ds_read_b128 {v(fr+12+i*4,4)}, v{rx} offset:{bo + XOFF[i] + kp*1024}"]
        return wr(0) + xr(0) + xr(1) + wr(1) + wr(2) + xr(2) + xr(3)
    MF = [(0, 0, 0, 3), (1, 0, 1, 4), (2, 1, 0, 6), (3, 1, 1, 6), (4, 2, 0, 8), (5, 2, 1, 8), (6, 2, 2, 9), (7, 2, 3, 10)]
    def relayout_loads():
        srd(A, 24, 6, 7, 4096*1024)
        srd(A, 28, 100, 101, 1792*1024)
        A(f"""
        v_and_b32 v2, 31, v0
        v_lshlrev_b32 v2, 1, v2
        v_lshrrev_b32 v3, 5, v0
        v_lshlrev_b32 v3, 12, v3
        v_add_u32 v2, v2, v3
        v_add_u32 v3, 8192, v2                       ; +8 rows
        s_mul_i32 s{sT}, s2, 23
        s_mul_i32 s{sT+1}, s{sW}, 3
        s_add_u32 s{sBLK}, s{sT}, s{sT+1}
        """)
        for i in range(3):
            lwd = A.newlabel("rl_wd"); lj = A.newlabel("rl_j")
            R = 220 + 8*i
            A(f"""
            s_add_u32 s{sT}, s{sBLK}, {i}
            s_lshr_b32 s{sT+1}, s{sT}, 4
            s_and_b32 s{sT}, s{sT}, 15
            s_lshl_b32 s{sT}, s{sT}, 6
            s_cmp_ge_u32 s{sT+1}, 256
            s_cbranch_scc1 {lwd}
            s_lshl_b32 s{sT+1}, s{sT+1}, 14
            s_add_u32 s{sT}, s{sT}, s{sT+1}
            """)
            for S_ in (24, 28):
                if S_ == 28:
                    A.label(lwd)
                    A(f"s_sub_u32 s{sT+1}, s{sT+1}, 256")
                    A(f"s_lshl_b32 s{sT+1}, s{sT+1}, 14")
                    A(f"s_add_u32 s{sT}, s{sT}, s{sT+1}")
                for j in range(8):
                    va = 2 if j < 4 else 3
                    A(f"buffer_load_ushort v{R + j}, v{va}, s[{S_}:{S_+3}], s{sT} offen offset:{(j & 3)*1024}")
                if S_ == 24: A(f"s_branch {lj}")
            A.label(lj)

        srd(A, S_KF, 4, 5, 16*1024*1024, WS_KF)
        srd(A, S_VF, 4, 5, 16*1024*1024, WS_VF)
    A(f"v_mov_b32 v4, 0")
    A(f"v_mov_b32 v5, 1")
    vFK = 199
    A("s_waitcnt vmcnt(0)")
    A("s_barrier")
    for r in greads(0): A(r)
    lsk = A.newlabel("p2_ns")
    A(f"s_cmp_lg_u32 s{sW}, 7")
    A(f"s_cbranch_scc1 {lsk}")
    signal(5, 4, sFKV)
    A.label(lsk)
    for st in range(16):
        if st > 0:
            n_out = 5 if st < 14 else (0 if st == 14 else None)
            if n_out is not None:
                A(f"s_waitcnt vmcnt({n_out})")
                A("s_barrier")
        pcs = gpieces(st + 3) if st + 3 < 16 else []
        if st == 14:
            A(f"buffer_load_dword v{vFK}, v4, s[{S_DBG}:{S_DBG+3}], s{sFKV} offen sc1")
            relayout_loads()
        for kp in range(2):
            ks = 2*st + kp
            fr = FR[ks & 1]
            nxt = greads(ks + 1) if ks + 1 < 32 else []
            idx = 0
            prev_need = 0
            for (acc, sub, xi, need) in MF:
                if need > prev_need:
                    A(f"s_waitcnt lgkmcnt({min((10 - need) + idx, 15)})")
                    prev_need = need
                d = ACC + acc*16
                mfma(A, d, fr + sub*4, fr + 12 + xi*4, None if ks == 0 else d)
                for _ in range(2 if acc in (0, 1) else 1):
                    if idx < len(nxt):
                        A(nxt[idx]); idx += 1
                if pcs and (kp*8 + acc) % 3 == 1:
                    for l in pcs.pop(0): A(l)
        assert not pcs
    stamp(A, 4)
    A(f"""
    s_waitcnt vmcnt(24)
    s_barrier
    v_mov_b32 v14, 0
    s_mov_b32 s{sPASS}, s{sFKV}
    """)
    sFKV = sPASS
    A(f"""
    s_lshl_b32 s{sHB}, s{sH}, 19
    s_lshl_b32 s{sT}, s{sW}, 12
    s_add_u32 s{sHB}, s{sHB}, s{sT}
    s_lshl_b32 s{sM0}, s{sW}, 12
    s_mov_b32 s{sKJ}, 0
    s_mov_b32 s{sVJ}, 0
    s_mov_b32 s{sKN}, s{sHB}
    s_mov_b32 s{sVN}, s{sHB}
    s_mov_b32 s{sM0K}, s{sM0}
    s_add_u32 s{sM0V}, s{sM0}, 65536
    """)
    sDS = 72
    def kv_issue(isV, defer=False):
        sJ = sVJ if isV else sKJ
        sN = sVN if isV else sKN
        sMM = sM0V if isV else sM0K
        S = S_VF if isV else S_KF
        sD = sDS + (1 if isV else 0)
        A(f"""
        s_mov_b32 m0, s{sMM}
        s_mov_b32 s{sD}, s{sN}
        s_xor_b32 s{sMM}, s{sMM}, 32768
        s_add_u32 s{sN}, s{sN}, 32768
        s_cmp_eq_u32 s{sJ}, s{sB0}
        s_cselect_b32 s{sN}, s{sHB}, s{sN}
        s_add_u32 s{sJ}, s{sJ}, 1
        """)
        L = [f"buffer_load_dwordx4 v{vL16}, s[{S}:{S+3}], s{sD} offen offset:{q*1024} lds" for q in range(4)]
        if defer: return L
        for l in L: A(l)
    flag_wait(vFK, sFKV, 8)
    kv_issue(False)
    kv_issue(True)
    kv_issue(False)
    T = 200
    A(f"v_mov_b32 v{T+16}, {f32hex(QSCALE)}")
    A(f"""
    s_lshl_b32 s{sT}, s{sP}, 14                   ; 2p*8192
    s_lshl_b32 s{sT+1}, s{sC}, 11                 ; 2c*1024
    s_add_u32 s{sT}, s{sT}, s{sT+1}
    s_add_u32 s{sT}, s{sT}, {96*1024}
    v_add_u32 v6, s{sT}, v{vL16}
    """)
    for qi in range(4):
        d = ACC + (4+qi)*16
        for r in range(0, 16, 2):
            A(f"v_pk_mul_f32 {v(d+r,2)}, {v(d+r,2)}, {v(T+16,2)} op_sel_hi:[1,0]")
        p = T + (qi & 1)*8
        for i in range(8):
            A(f"v_cvt_pk_bf16_f32 v{p+i}, v{d+2*i}, v{d+2*i+1}")
        xb_off = [0, 8192, 32768, 40960][qi]
        A(f"ds_write_b128 v6, {v(p,4)} offset:{xb_off}")
        A(f"ds_write_b128 v6, {v(p+4,4)} offset:{xb_off+1024}")
    A("s_waitcnt lgkmcnt(0)")
    A(f"v_mov_b32 v{T+8}, {f32hex(GC1)}")
    A(f"v_mov_b32 v{T+9}, {f32hex(GC2)}")
    A(f"v_mov_b32 v{T+10}, 1.0")
    A(f"""
    s_lshl_b32 s{sT}, s{sRBF}, 2
    s_lshl_b32 s{sT+1}, s{sP}, 1
    s_add_u32 s{sT}, s{sT}, s{sT+1}
    s_mul_i32 s{sT}, s{sT}, {112*1024}
    s_lshl_b32 s{sT+1}, s{sFT}, 13
    s_add_u32 s{sT}, s{sT}, s{sT+1}
    s_lshl_b32 s{sT+1}, s{sC}, 11
    s_add_u32 s{sT}, s{sT}, s{sT+1}
    s_cmp_lt_u32 s{sH}, 28
    s_cselect_b32 s{sT}, s{sT}, 0x7ff00000
    """)
    for j in range(2):
        g0 = ACC + j*16
        u0 = ACC + (2+j)*16
        for r0 in range(0, 16, 8):
            prs = [(g0 + r, u0 + r, T + 12 + (r - r0)) for r in range(r0, r0 + 8, 2)]
            for x, u, t in prs: A(f"v_pk_mul_f32 {v(t,2)}, {v(x,2)}, {v(x,2)}")
            for x, u, t in prs: A(f"v_pk_fma_f32 {v(t,2)}, {v(t,2)}, {v(T+8,2)}, {v(T+8,2)} op_sel:[0,1,0] op_sel_hi:[1,1,0]")
            for x, u, t in prs: A(f"v_pk_mul_f32 {v(t,2)}, {v(t,2)}, {v(x,2)}")
            for x, u, t in prs:
                A(f"v_exp_f32 v{t}, v{t}"); A(f"v_exp_f32 v{t+1}, v{t+1}")
            for x, u, t in prs: A(f"v_pk_mul_f32 {v(x,2)}, {v(x,2)}, {v(u,2)}")
            for x, u, t in prs: A(f"v_pk_add_f32 {v(t,2)}, {v(t,2)}, {v(T+10,2)} op_sel_hi:[1,0]")
            for x, u, t in prs:
                A(f"v_rcp_f32 v{t}, v{t}"); A(f"v_rcp_f32 v{t+1}, v{t+1}")
            A("s_nop 0")
            for x, u, t in prs: A(f"v_pk_mul_f32 {v(x,2)}, {v(x,2)}, {v(t,2)}")
        p = T
        for i in range(8):
            A(f"v_cvt_pk_bf16_f32 v{p+i}, v{g0+2*i}, v{g0+2*i+1}")
        A(f"buffer_store_dwordx4 {v(p,4)}, v{vL16}, s[{S_H}:{S_H+3}], s{sT} offen")
        A(f"buffer_store_dwordx4 {v(p+4,4)}, v{vL16}, s[{S_H}:{S_H+3}], s{sT} offen offset:1024")
        if j == 0:
            A(f"s_add_u32 s{sT}, s{sT}, {112*1024}")
    stamp(A, 5)
    srd(A, 12, 4, 5, 5888*1024, WS_WF)
    A(f"""
    s_lshl_b32 s{sT}, s{sBLK}, 10
    s_add_u32 s{sT+1}, s{sT}, 2048
    s_cmp_eq_u32 s{sW}, 7
    s_cselect_b32 s{sT+1}, 0x7ff00000, s{sT+1}
    s_waitcnt vmcnt(16)
    """)
    for q in range(12):
        A(f"v_lshl_or_b32 v{32+q}, v{221+2*q}, 16, v{220+2*q}")
    A(f"""
    buffer_store_dwordx4 v[32:35], v{vL16}, s[12:15], s{sT} offen
    buffer_store_dwordx4 v[36:39], v{vL16}, s[12:15], s{sT} offen offset:1024
    buffer_store_dwordx4 v[40:43], v{vL16}, s[12:15], s{sT+1} offen
    """)
    srd(A, 12, 4, 5, 72*128, WS_SYNC)
    A(f"""
    v_mov_b32 v44, 0
    v_lshlrev_b32 v45, 2, v0
    s_lshl_b32 s{sT}, s2, 7
    s_cmp_eq_u32 s{sW}, 0
    s_cselect_b32 s{sT}, s{sT}, 0x7ff00000
    s_mov_b64 exec, 0xffffffff
    buffer_store_dword v44, v45, s[12:15], s{sT} offen
    s_mov_b64 exec, -1
    """)
    vKA, vVA, vL, vM, vTMP, vD = 2, 3, 4, 5, 6, 7
    F = 8; Q = 40; Q2 = 72; S = 104; NM = 136; P = 152; O = 168; T = 232
    A(f"""
    s_waitcnt lgkmcnt(0)
    s_barrier
    s_cmp_eq_u32 s{sRBF}, s{sB0}
    s_cselect_b32 s{sT}, 0, 32768
    s_cselect_b32 s{sT+1}, 32768, 0
    s_lshl_b32 s{sT+2}, s{sWR}, 13
    s_add_u32 s{sT+2}, s{sT+2}, {96*1024}
    s_add_u32 s{sT}, s{sT}, s{sT+2}
    s_add_u32 s{sT+1}, s{sT+1}, s{sT+2}
    v_add_u32 v{vTMP}, s{sT}, v{vL16}
    v_add_u32 v{vD}, s{sT+1}, v{vL16}
    """)
    for ks in range(8):
        A(f"ds_read_b128 {v(Q+4*ks,4)}, v{vTMP} offset:{ks*1024}")
    for ks in range(8):
        A(f"ds_read_b128 {v(Q2+4*ks,4)}, v{vD} offset:{ks*1024}")
    A(f"""
    s_waitcnt lgkmcnt(0)
    v_and_b32 v{vD}, 31, v0
    v_lshrrev_b32 v{vTMP}, 5, v0
    v_lshlrev_b32 v{vTMP}, 2, v{vTMP}
    v_sub_u32 v{vD}, v{vD}, v{vTMP}
    s_lshl_b32 s{sT}, s{sWR}, 5
    s_lshl_b32 s{sT+1}, s{sG}, 6
    s_sub_u32 s{sT}, s{sT}, s{sT+1}
    v_add_u32 v{vD}, s{sT}, v{vD}
    s_mov_b32 s{sPASS}, 0
    s_mov_b32 s{sBLK}, s{sB0}
    s_lshl_b32 s{sT}, s{sG}, 14
    v_add_u32 v{vKA}, s{sT}, v{vL16}              ; K(0) slot 0
    s_add_u32 s{sT}, s{sT}, {65536+32768}
    v_add_u32 v{vVA}, s{sT}, v{vL16}
    """)
    A("s_waitcnt vmcnt(8)")
    A("s_barrier")

    def mask_ops(kb):
        L = []
        for r0 in range(0, 16, 4):
            for j in range(4):
                r = r0 + j
                c = 32*kb + 8*(r >> 2) + (r & 3)
                L.append(f"v_cmp_gt_i32 s[{sMK+2*j}:{sMK+2*j+1}], {c}, v{vD}")
            for j in range(4):
                r = r0 + j
                L.append(f"v_cndmask_b32 v{S+16*kb+r}, v{S+16*kb+r}, v{T+15}, s[{sMK+2*j}:{sMK+2*j+1}]")
        return L
    def max_ops(kb, dst):
        x = S + 16*kb
        L = [f"v_max3_f32 v{dst}, v{x}, v{x+1}, v{x+2}"]
        for r in range(3, 15, 2):
            L.append(f"v_max3_f32 v{dst}, v{dst}, v{x+r}, v{x+r+1}")
        L.append(f"v_max_f32 v{dst}, v{dst}, v{x+15}")
        L.append(f"v_mov_b32 v{dst+1}, v{dst}")
        L.append("s_nop 1")
        L.append(f"v_permlane32_swap_b32 v{dst}, v{dst+1}")
        L.append("s_nop 1")
        L.append(f"v_max_f32 v{dst}, v{dst}, v{dst+1}")
        return L
    LS = [T+12, vL]
    def sm_ops(kb):
        x = S + 16*kb
        src, dst, t1 = LS[1-kb], LS[kb], T+kb
        L = []
        for r in range(0, 16, 2):
            L.append(f"v_exp_f32 v{x+r}, v{x+r}")
            L.append(f"v_exp_f32 v{x+r+1}, v{x+r+1}")
            if r >= 2:
                q = r - 2
                if q == 0:
                    L.append(f"v_add_f32 v{dst}, v{src}, v{x}")
                    L.append(f"v_cvt_pk_bf16_f32 v{P+8*kb}, v{x}, v{x+1}")
                elif q == 2:
                    L.append(f"v_add_f32 v{dst}, v{dst}, v{x+q}")
                    L.append(f"v_add_f32 v{t1}, v{x+1}, v{x+q+1}")
                    L.append(f"v_cvt_pk_bf16_f32 v{P+8*kb+q//2}, v{x+q}, v{x+q+1}")
                else:
                    L.append(f"v_add_f32 v{dst}, v{dst}, v{x+q}")
                    L.append(f"v_add_f32 v{t1}, v{t1}, v{x+q+1}")
                    L.append(f"v_cvt_pk_bf16_f32 v{P+8*kb+q//2}, v{x+q}, v{x+q+1}")
        L.append(f"v_add_f32 v{dst}, v{dst}, v{x+14}")
        L.append(f"v_add_f32 v{t1}, v{t1}, v{x+15}")
        L.append(f"v_cvt_pk_bf16_f32 v{P+8*kb+7}, v{x+14}, v{x+15}")
        L.append(f"v_add_f32 v{dst}, v{dst}, v{t1}")
        return L
    rescues = []
    def check(kb, masked, it_back):
        lr = A.newlabel("resc"); lb = A.newlabel("back")
        A(f"v_cmp_nle_f32 vcc, v{LS[kb]}, v{T+14}")
        A(f"s_cbranch_vccnz {lr}")
        A.label(lb)
        rescues.append((lr, lb, kb, masked, it_back))
    def emit_rescue(lr, lb, kb, masked, it_back):
        A.label(lr)
        A("s_nop 15")
        A("s_nop 15")
        A(f"""
        s_sub_u32 s{sT}, s{sIT}, {it_back}
        s_lshl_b32 s{sT}, s{sT}, 1
        s_add_u32 s{sT}, s{sT}, s{sG}
        s_lshl_b32 s{sT}, s{sT}, 14
        s_lshl_b32 s{sT+1}, s{sH}, 19
        s_add_u32 s{sT}, s{sT}, s{sT+1}
        s_add_u32 s{sT}, s{sT}, {kb*8192}
        s_add_u32 s{sT+1}, s{sT}, 4096
        """)
        for ks in range(8):
            so = sT if ks < 4 else sT+1
            A(f"buffer_load_dwordx4 {v(T+4,4)}, v{vL16}, s[{S_KF}:{S_KF+3}], s{so} offen offset:{(ks&3)*1024}")
            A("s_waitcnt vmcnt(0)")
            mfma(A, S+16*kb, T+4, Q+4*ks, NM if ks == 0 else S+16*kb)
            A("s_nop 7")
        A("s_nop 15")
        if masked:
            for op in mask_ops(kb): A(op)
        for op in max_ops(kb, T+2): A(op)
        A(f"v_max_f32 v{T+2}, 0, v{T+2}")
        A(f"v_sub_f32 v{T+3}, 0, v{T+2}")
        A(f"v_exp_f32 v{T+3}, v{T+3}")
        for r in range(16):
            A(f"v_sub_f32 v{NM+r}, v{NM+r}, v{T+2}")
        for r in range(32):
            A(f"v_sub_f32 v{S+r}, v{S+r}, v{T+2}")
        for r in range(64):
            A(f"v_mul_f32 v{O+r}, v{O+r}, v{T+3}")
        A(f"v_mul_f32 v{LS[1-kb]}, v{LS[1-kb]}, v{T+3}")
        for op in sm_ops(kb): A(op)
        A("s_nop 1")
        A(f"s_branch {lb}")

    def ph_items(ph):
        L = []
        for i in range(8):
            if ph in ("A", "C"):
                kb = 0 if ph == "A" else 1
                rd = (vKA, kb*8192 + i*1024)
                d = S + 16*kb
                mf = (d, Q + 4*i, NM if i == 0 else d)
            else:
                kk = (2 if ph == "B" else 0) + (i >> 2); db = i & 3
                rd = (vVA, (kk >> 1)*8192 + db*2048 + (kk & 1)*1024)
                d = O + 16*db
                mf = (d, P + 4*kk, d)
            L.append((rd, mf))
        return L
    def rd_line(rd, slot):
        return f"ds_read_b128 {v(F+4*slot,4)}, v{rd[0]} offset:{rd[1]}"

    def stream(phases, nxt_phase, pre, fills, extras, post):
        items = []
        for ph in phases: items += [(ph, i, it) for i, it in enumerate(ph_items(ph))]
        tail_items = ph_items(nxt_phase)[:4] if nxt_phase else []
        allrd = [it[2][0] for it in items] + [t[0] for t in tail_items]
        n = len(items)
        fq = {}
        for ph in phases:
            st, lines = fills.get(ph, (0, []))
            slots = 8 - st
            per = [len(lines)//slots + (1 if k < len(lines) % slots else 0) for k in range(slots)]
            k = 0
            for i in range(st, 8):
                fq[(ph, i)] = lines[k:k+per[i-st]]; k += per[i-st]
        for idx, (ph, i, (rd, mf)) in enumerate(items):
            if i == 0:
                for l in pre.get(ph, []):
                    if callable(l): l()
                    else: A(l)
            if idx % 4 == 0:
                A("s_waitcnt lgkmcnt(0)")
            d, b_, c = mf
            A(f"v_mfma_f32_32x32x16_bf16 {v(d,16)}, {v(F+4*(idx&7),4)}, {v(b_,4)}, {v(c,16)}")
            if idx % 4 < 2:
                base = (idx & ~3) + 4 + (idx % 4)*2
                for j in (base, base+1):
                    if j < len(allrd): A(rd_line(allrd[j], j & 7))
            for l in extras.get(ph, {}).get(i, []): A(l)
            for l in fq.get((ph, i), []): A(l)
            if i == 7 and ph in post: post[ph]()

    def split_fill(L, n1, n2):
        k = (len(L) * n1) // (n1 + n2)
        return L[:k], L[k:]

    SM1_A, SM1_D = None, None
    def sm1_parts(first, last):
        L = []
        if first:
            L += [f"v_sub_f32 v{NM+r}, 0, v{T+2}" for r in range(16)]
            L += [f"v_sub_f32 v{S+16+r}, v{S+16+r}, v{T+2}" for r in range(16)]
        if last: L += mask_ops(1)
        pre = len(L)
        sm = sm_ops(1)
        k = 18
        return L + sm[:k], sm[k:]

    def iteration(first, last):
        dm = {}
        def barY():
            A("s_waitcnt vmcnt(4)")
            A("s_barrier")
            dm["V"] = kv_issue(True, defer=True)
            A(f"v_xor_b32 v{vVA}, 0x8000, v{vVA}")
        def barX():
            A("s_waitcnt vmcnt(4)")
            A("s_barrier")
            dm["K"] = kv_issue(False, defer=True) if not last else []
            A(f"v_xor_b32 v{vKA}, 0x8000, v{vKA}")
        sm0 = []
        if last: sm0 += mask_ops(0)
        if first:
            sm0 += max_ops(0, T+2)
            sm0 += [f"v_max_f32 v{T+2}, v{T+13}, v{T+2}"]
            sm0 += [f"v_sub_f32 v{S+r}, v{S+r}, v{T+2}" for r in range(16)]
        sm0 += sm_ops(0)
        d_part, _ = sm1_parts(first, last)
        _, a_part = sm1_parts(False, False)
        class Lazy(dict):
            pass
        def dma(kind, q):
            return lambda: (A(dm[kind][q]) if dm.get(kind) else None)
        phases = ["A", "C", "D"] if first else ["A", "B", "C", "D"]
        fills = {}
        if first:
            fills["C"] = (2, sm0)
        else:
            b_part, c_part = split_fill(sm0, 6, 8)
            fills["A"] = (0, a_part)
            fills["B"] = (2, b_part)
            fills["C"] = (0, c_part)
        fills["D"] = (2, d_part)
        pre = {"C": [barY], "D": [barX]}
        post = {"C": lambda: check(0, last, 0)}
        if not first:
            post["A"] = lambda: check(1, False, 1)
        return phases, pre, fills, post, dm

    def emit_iteration(first, last):
        phases, pre, fills, post, dm = iteration(first, last)
        class Ex(dict):
            def get(self, ph, default=None):
                if ph == "C" and "V" in dm: return {1: [dm["V"][0]], 3: [dm["V"][1]], 5: [dm["V"][2]], 7: [dm["V"][3]]}
                if ph == "D" and dm.get("K"): return {1: [dm["K"][0]], 3: [dm["K"][1]], 5: [dm["K"][2]], 7: [dm["K"][3]]}
                return {}
        stream(phases, "B" if last else "A", pre, fills, Ex(), post)
        if last:
            _, a_part = sm1_parts(False, False)
            for l in a_part: A(l)
            check(1, True, 0)
            A("s_nop 0")
            stream(["B"], None, {}, {}, {}, {})

    blk_top = A.newlabel("blk_top")
    A.label(blk_top)
    for r in range(0, 64, 2): A(f"v_mov_b64 {v(O+r,2)}, 0")
    for r in range(0, 16, 2): A(f"v_mov_b64 {v(NM+r,2)}, 0")
    A(f"""
    v_mov_b32 v{vL}, 0
    v_mov_b32 v{T+13}, {f32hex(MFLOOR)}
    v_mov_b32 v{T+14}, {f32hex(BIGL)}
    v_mov_b32 v{T+15}, {f32hex(NEGBIG)}
    s_mov_b32 s{sIT}, 0
    """)
    for i in range(4): A(rd_line(ph_items("A")[i][0], i))
    l_only = A.newlabel("only"); l_mid = A.newlabel("mid"); l_last = A.newlabel("last"); l_merge = A.newlabel("merge")
    A(f"s_cmp_eq_u32 s{sBLK}, 0")
    A(f"s_cbranch_scc1 {l_only}")
    emit_iteration(True, False)
    A(f"s_mov_b32 s{sIT}, 1")
    A(f"s_cmp_ge_u32 s{sIT}, s{sBLK}")
    A(f"s_cbranch_scc1 {l_last}")
    A.label(l_mid)
    emit_iteration(False, False)
    A(f"s_add_u32 s{sIT}, s{sIT}, 1")
    A(f"s_cmp_lt_u32 s{sIT}, s{sBLK}")
    A(f"s_cbranch_scc1 {l_mid}")
    A.label(l_last)
    emit_iteration(False, True)
    A(f"s_branch {l_merge}")
    A.label(l_only)
    emit_iteration(True, True)
    A.label(l_merge)
    A(f"""
    v_mov_b32 v{T}, v{vL}
    s_nop 1
    v_permlane32_swap_b32 v{vL}, v{T}
    s_nop 1
    v_add_f32 v{vL}, v{vL}, v{T}
    s_barrier
    s_and_b32 s{sT}, s{sM0K}, 32768
    s_xor_b32 s{sT+1}, s{sM0V}, 32768
    s_and_b32 s{sT+1}, s{sT+1}, {65536+32768}
    s_xor_b32 s{sT+1}, s{sT+1}, 32768
    s_cmp_eq_u32 s{sG}, 0
    s_cselect_b32 s{sT+2}, s{sT}, s{sT+1}
    s_cselect_b32 s{sT+3}, s{sT+1}, s{sT}
    s_lshl_b32 s{sT}, s{sWR}, 13
    s_add_u32 s{sT+2}, s{sT+2}, s{sT}
    s_add_u32 s{sT+3}, s{sT+3}, s{sT}
    v_add_u32 v{T+2}, s{sT+2}, v{vL16}
    v_add_u32 v{T+3}, s{sT+3}, v{vL16}
    v_lshlrev_b32 v{T+4}, 3, v0                  ; lane*8
    s_lshl_b32 s{sT}, s{sW}, 9
    s_add_u32 s{sT}, s{sT}, 131072
    v_add_u32 v{T+5}, s{sT}, v{T+4}
    s_xor_b32 s{sT}, s{sT}, 2048
    v_add_u32 v{T+4}, s{sT}, v{T+4}
    v_mov_b32 v{T+6}, v{NM}
    v_mov_b32 v{T+7}, v{vL}
    ds_write_b64 v{T+5}, {v(T+6,2)}
    """)
    lg1 = A.newlabel("mg1"); lgd = A.newlabel("mgd")
    A(f"s_cmp_eq_u32 s{sG}, 0")
    A(f"s_cbranch_scc0 {lg1}")
    for gsel in range(2):
        if gsel == 1: A.label(lg1)
        give = O + (32 if gsel == 0 else 0)
        keep = O + (0 if gsel == 0 else 32)
        for i in range(8):
            A(f"ds_write_b128 v{T+2}, {v(give+4*i,4)} offset:{i*1024}")
        A("s_waitcnt lgkmcnt(0)")
        A("s_barrier")
        A(f"ds_read_b64 {v(T+8,2)}, v{T+4}")
        for i in range(8):
            A(f"ds_read_b128 {v(give+4*i,4)}, v{T+3} offset:{i*1024}")
        A(f"""
        s_waitcnt lgkmcnt(8)
        v_min_f32 v{T+10}, v{NM}, v{T+8}          ; -M
        v_sub_f32 v{T+11}, v{T+10}, v{NM}         ; m_self - M
        v_sub_f32 v{T+12}, v{T+10}, v{T+8}        ; m_part - M
        v_exp_f32 v{T+11}, v{T+11}
        v_exp_f32 v{T+12}, v{T+12}
        s_nop 0
        v_mul_f32 v{T+10}, v{vL}, v{T+11}
        v_fmac_f32 v{T+10}, v{T+9}, v{T+12}       ; l_total
        v_rcp_f32 v{T+10}, v{T+10}
        s_nop 0
        v_mul_f32 v{T+11}, v{T+11}, v{T+10}
        v_mul_f32 v{T+12}, v{T+12}, v{T+10}
        s_waitcnt lgkmcnt(0)
        """)
        for r in range(0, 32, 2):
            A(f"v_pk_mul_f32 {v(keep+r,2)}, {v(keep+r,2)}, {v(T+10,2)} op_sel:[0,1] op_sel_hi:[1,1]")
            A(f"v_pk_fma_f32 {v(keep+r,2)}, {v(give+r,2)}, {v(T+12,2)}, {v(keep+r,2)} op_sel_hi:[1,0,1]")
        for i in range(16):
            A(f"v_cvt_pk_bf16_f32 v{S+i}, v{keep+2*i}, v{keep+2*i+1}")
        if gsel == 0: A(f"s_branch {lgd}")
    A.label(lgd)
    A("s_barrier")
    kv_issue(False)
    A(f"""
    s_lshl_b32 s{sT}, s{sBLK}, 2
    s_add_u32 s{sT}, s{sT}, s{sWR}
    s_lshl_b32 s{sT}, s{sT}, 18                  ; *256*1024
    s_lshl_b32 s{sT+1}, s{sH}, 13
    s_add_u32 s{sT}, s{sT}, s{sT+1}
    s_lshl_b32 s{sT+1}, s{sG}, 12
    s_add_u32 s{sT}, s{sT}, s{sT+1}
    """)
    for i in range(4):
        A(f"buffer_store_dwordx4 {v(S+4*i,4)}, v{vL16}, s[{S_CTX}:{S_CTX+3}], s{sT} offen offset:{i*1024}")
    stamp(A, 6)
    fin = A.newlabel("k2_fin")
    A(f"s_cmp_eq_u32 s{sPASS}, 1")
    A(f"s_cbranch_scc1 {fin}")
    A(f"s_mov_b32 s{sPASS}, 1")
    A(f"s_mov_b32 s{sBLK}, s{sI}")
    for r in range(0, 32, 2): A(f"v_mov_b64 {v(Q+r,2)}, {v(Q2+r,2)}")
    A(f"s_branch {blk_top}")
    for rr in rescues:
        emit_rescue(*rr)
    A.label(fin)
    if gen.STAMPS:
        A("s_waitcnt vmcnt(0)")
        stamp(A, 7); stamp(A, 9, True)
        stamp_flush(A, 10, 4, 5, sW, 0)
    A.label(done)
    A("s_endpgm")
    A.end_kernel(name, 248, 102)
    A.add_launch(name, 256, 512, 163840)
```

```python
import sys
import gen
from asmlib import *
from gen import *
import gen_main, gen_k3c
A = Asm()
if "stamps" in sys.argv: gen.STAMPS = True
if "slow" in sys.argv: gen_main.FORCE_SLOW = True
for a_ in sys.argv:
    if "=" in a_:
        k_, v_ = a_.split("=")
        setattr(gen_main, k_, int(v_))
gen_main.gen_fused(A)
gen_k3c.SLOT = 1
gen_k3c.gen_k3(A)
A.label("code_end")
A("s_endpgm")
open(sys.argv[1], "w").write(A.text(HEADER))
```

```python
from asmlib import *
import gen
from gen import *
import math, struct
from gen_k2 import f32hex, LOG2E, QSCALE, GC1, GC2, BIGL, NEGBIG, MFLOOR

FORCE_SLOW = False
BULK = True
TOUCH_ST = 6
SPIN_MAX = 1 << 18
KV_SIGNAL_STAGE = 0

def gen_fused(A):
    name = "main_kernel"
    A.begin_kernel(name)
    done = A.newlabel("f_done")
    S_XN, S_WG, S_WU, S_WQ, S_KF, S_VF, S_H, S_CTX = 8, 12, 16, 20, 24, 28, 32, 36
    S_CKV, S_W, S_X, S_KVO = 24, 28, 32, 32
    S_DBG = 76
    sW, sH, sI, sP, sC, sG, sWR = 40, 41, 42, 43, 44, 45, 46
    sSX, sSWF, sSWQ, sM0 = 47, 48, 49, 50
    sFT, sRBF, sRBO = 51, 52, 53
    sBLK, sIT, sNIT = 54, 55, 56
    sKN, sVN = 57, 58
    sM0K, sM0V = 59, 60
    sHB = 61
    sPASS = 62
    sKJ, sVJ = 63, 64
    sB0 = 65
    sT = 66
    sMK = 12
    sSX1, sSW1, sM0X, sM0W = 54, 55, 56, 57
    sWM, sWN = sG, sWR
    A(f"""
    s_cmp_ge_u32 s2, 256
    s_cbranch_scc1 {done}
    s_load_dwordx8 s[56:63], s[0:1], {KA_X}
    s_load_dwordx4 s[64:67], s[0:1], {KA_WUV}
    s_load_dwordx4 s[68:71], s[0:1], {KA_WG}
    s_load_dwordx2 s[100:101], s[0:1], {KA_WD}
    s_load_dwordx4 s[72:75], s[0:1], {KA_DBG}
    v_lshrrev_b32 v1, 6, v0
    v_and_b32 v0, 63, v0
    v_readfirstlane_b32 s{sW}, v1
    s_and_b32 s{sH}, s2, 7
    s_lshl_b32 s{sH}, s{sH}, 2
    s_lshr_b32 s{sI}, s2, 3
    s_and_b32 s{sI}, s{sI}, 3
    s_add_u32 s{sH}, s{sH}, s{sI}                ; head
    s_lshr_b32 s{sI}, s2, 5
    s_and_b32 s{sP}, s{sW}, 1
    s_lshr_b32 s{sC}, s{sW}, 1
    s_lshr_b32 s{sG}, s{sW}, 2
    s_and_b32 s{sWR}, s{sW}, 3
    v_lshlrev_b32 v1, 4, v0
    s_waitcnt lgkmcnt(0)
    s_mov_b32 s4, s74
    s_mov_b32 s5, s75
    s_mov_b32 s6, s66
    s_mov_b32 s7, s67
    """)
    vL16 = 1
    stamp(A, 0); stamp(A, 8, True)
    srd(A, S_X, 56, 57, 2048*1024)
    srd(A, S_CKV, 58, 59, 2048*1024)
    srd(A, S_WQ, 60, 61, 512*8192)
    A(f"""
    s_cmp_lt_u32 s{sW}, 4
    s_cselect_b32 s{S_W}, s62, s64
    s_cselect_b32 s{S_W+1}, s63, s65
    s_mov_b32 s{S_W+2}, {512*8192:#x}
    s_mov_b32 s{S_W+3}, 0x00020000
    """)
    srd(A, 36, 62, 63, 512*8192)
    srd(A, 92, 64, 65, 512*8192)
    srd(A, S_WG, 68, 69, 512*3584)
    srd(A, S_WU, 70, 71, 512*3584)
    srd(A, S_DBG, 72, 73, 256)
    sGRP, sXCC, sSLOW = 3, 74, 75
    srd(A, S_XN, 4, 5, 2048*1024, WS_XN)
    sROW = 58
    vLN = 200
    A(f"""
    s_and_b32 s{sGRP}, s2, 7
    s_sub_u32 s{sB0}, 15, s{sI}
    s_getreg_b32 s{sXCC}, hwreg(HW_REG_XCC_ID)
    s_and_b32 s{sXCC}, s{sXCC}, 7
    s_lshl_b32 s{sXCC}, s{sXCC}, 3
    s_cmp_lt_u32 s{sH}, 16
    s_cselect_b32 s{sROW}, s{sI}, s{sB0}
    s_lshl_b32 s{sROW}, s{sROW}, 7
    s_and_b32 s{sT}, s{sH}, 15
    s_lshl_b32 s{sT}, s{sT}, 3
    s_add_u32 s{sROW}, s{sROW}, s{sT}
    s_add_u32 s{sROW}, s{sROW}, s{sW}
    s_lshl_b32 s{sT+1}, s{sROW}, 10
    s_lshl_b32 s{sT}, s{sW}, 10
    s_add_u32 m0, s{sT}, 0x20000
    v_add_u32 v{vLN+4}, 0x20000, v{vL16}
    v_add_u32 v{vLN+4}, s{sT}, v{vLN+4}
    buffer_load_dwordx4 v{vL16}, s[{S_X}:{S_X+3}], s{sT+1} offen lds
    """)
    lsk = A.newlabel("f_nocen")
    A(f"""
    v_mov_b32 v14, 0
    v_mov_b32 v15, 1
    s_mov_b64 s[{sT+2}:{sT+3}], 1
    s_lshl_b64 s[{sT+2}:{sT+3}], s[{sT+2}:{sT+3}], s{sXCC}
    v_mov_b32 v8, s{sT+2}
    v_mov_b32 v9, s{sT+3}
    s_lshl_b32 s{sT}, s{sGRP}, 3
    s_cmp_lg_u32 s{sW}, 0
    s_cbranch_scc1 {lsk}
    s_mov_b64 exec, 1
    buffer_atomic_add_x2 v[8:9], v14, s[{S_DBG}:{S_DBG+3}], s{sT} offen sc1
    s_mov_b64 exec, -1
    """)
    A.label(lsk)
    A(f"""
    s_cmp_lt_u32 s{sH}, 14
    s_cselect_b32 s{sRBF}, s{sI}, s{sB0}
    s_cselect_b32 s{sRBO}, s{sB0}, s{sI}
    s_sub_u32 s{sFT}, s{sH}, 14
    s_cselect_b32 s{sFT}, s{sH}, s{sFT}
    s_cmp_ge_u32 s{sFT}, 14
    s_cselect_b32 s{sFT}, 0, s{sFT}
    """)
    vDX, vDX2, vDW, vDW2 = 2, 3, 4, 5
    A(f"""
    v_lshrrev_b32 v6, 2, v0
    v_lshlrev_b32 v6, 10, v6
    v_lshrrev_b32 v7, 4, v0
    v_and_b32 v8, 3, v0
    v_xor_b32 v8, v8, v7
    v_lshlrev_b32 v8, 4, v8
    v_add_u32 v{vDX}, v6, v8
    v_add_u32 v{vDX2}, {16*1024-1024}, v{vDX}
    v_lshlrev_b32 v6, 13, v7
    v_and_b32 v8, 15, v0
    v_lshlrev_b32 v9, 2, v7
    v_xor_b32 v8, v8, v9
    v_lshlrev_b32 v8, 4, v8
    v_add_u32 v{vDW}, v6, v8
    v_add_u32 v{vDW2}, {32768-1024}, v{vDW}
    s_lshl_b32 s{sSX1}, s{sI}, 18
    s_lshl_b32 s{sT+2}, s{sW}, 15
    s_add_u32 s{sSX1}, s{sSX1}, s{sT+2}
    s_lshl_b32 s{sSW1}, s{sWN}, 16
    s_lshl_b32 s{sT+2}, s{sH}, 8
    s_add_u32 s{sSW1}, s{sSW1}, s{sT+2}
    s_lshl_b32 s{sM0X}, s{sW}, 11
    s_add_u32 s{sM0W}, s{sM0X}, 0x10000
    """)
    def pieces(st):
        buf = st & 3
        return [
         [f"s_add_u32 m0, s{sM0X}, {buf*16384}", f"s_add_u32 s{sT+2}, s{sSX1}, {st*64}",
          f"buffer_load_dwordx4 v{vDX}, s[{S_CKV}:{S_CKV+3}], s{sT+2} offen lds"],
         [f"buffer_load_dwordx4 v{vDX2}, s[{S_CKV}:{S_CKV+3}], s{sT+2} offen offset:1024 lds"],
         [f"s_add_u32 m0, s{sM0W}, {buf*16384}", f"s_add_u32 s{sT+3}, s{sSW1}, {st*32*8192}",
          f"buffer_load_dwordx4 v{vDW}, s[{S_W}:{S_W+3}], s{sT+3} offen lds"],
         [f"buffer_load_dwordx4 v{vDW2}, s[{S_W}:{S_W+3}], s{sT+3} offen offset:1024 lds"]]
    for st in range(3):
        for p in pieces(st):
            for l in p: A(l)
    if BULK:
        A(f"""
        s_lshr_b32 s{sT}, s2, 3
        s_lshl_b32 s{sT}, s{sT}, 3
        s_add_u32 s{sT}, s{sT}, s{sW}
        s_lshl_b32 s{sT+1}, s{sT}, 13
        v_lshlrev_b32 v6, 7, v0
        buffer_load_dword v9, v6, s[{S_CKV}:{S_CKV+3}], s{sT+1} offen
        v_and_b32 v6, 7, v0
        v_lshlrev_b32 v6, 7, v6
        v_bfe_u32 v7, v0, 3, 1
        v_lshlrev_b32 v7, 13, v7
        v_add_u32 v6, v6, v7
        s_lshl_b32 s{sT+1}, s{sT}, 14
        s_lshl_b32 s{sT}, s{sGRP}, 10
        s_add_u32 s{sT+1}, s{sT+1}, s{sT}
        s_mov_b64 exec, 0xffff
        buffer_load_dword v9, v6, s[36:39], s{sT+1} offen
        buffer_load_dword v9, v6, s[92:95], s{sT+1} offen
        s_mov_b64 exec, -1
        """)
    A(f"""
    s_mov_b32 s{sT}, {WS_KF:#x}
    s_cmp_lt_u32 s{sWN}, 2
    s_cselect_b32 s{sT}, s{sT}, {WS_VF:#x}
    s_add_u32 s{S_KVO}, s4, s{sT}
    s_addc_u32 s{S_KVO+1}, s5, 0
    s_mov_b32 s{S_KVO+2}, {16*1024*1024:#x}
    s_mov_b32 s{S_KVO+3}, 0x00020000
    """)
    vRX = [10, 11]; vRW = [12, 13]
    A(f"""
    v_and_b32 v6, 31, v0
    v_lshrrev_b32 v7, 5, v0
    v_lshrrev_b32 v8, 2, v6
    v_and_b32 v8, 3, v8
    v_xor_b32 v8, v8, v7
    v_lshlrev_b32 v8, 4, v8
    v_lshlrev_b32 v6, 6, v6
    v_add_u32 v6, v6, v8
    s_lshl_b32 s{sT+2}, s{sWM}, 13
    v_add_u32 v{vRX[0]}, s{sT+2}, v6
    v_xor_b32 v{vRX[1]}, 32, v{vRX[0]}
    v_lshrrev_b32 v6, 5, v0
    v_lshlrev_b32 v6, 11, v6
    v_bfe_u32 v7, v0, 2, 2
    v_lshlrev_b32 v8, 8, v7
    v_add_u32 v6, v6, v8
    v_lshlrev_b32 v8, 6, v7
    v_add_u32 v6, v6, v8
    v_bfe_u32 v8, v0, 4, 1
    v_lshlrev_b32 v8, 5, v8
    v_add_u32 v6, v6, v8
    v_and_b32 v8, 3, v0
    v_lshlrev_b32 v8, 3, v8
    v_add_u32 v198, v6, v8
    s_lshr_b32 s{sT+2}, s{sWN}, 1
    s_lshl_b32 s{sT+2}, s{sT+2}, 13
    s_add_u32 s{sT+2}, s{sT+2}, 0x10000
    v_add_u32 v6, s{sT+2}, v198
    s_and_b32 s{sT+2}, s{sWN}, 1
    s_lshl_b32 s{sT+2}, s{sT+2}, 7
    v_xor_b32 v{vRW[0]}, s{sT+2}, v6
    v_xor_b32 v{vRW[1]}, 64, v{vRW[0]}
    """)
    f = vLN + 4
    t = vLN + 12
    A("s_waitcnt vmcnt(%d)" % (15 if BULK else 12))
    A(f"ds_read_b128 {v(vLN,4)}, v{vLN+4}")
    A("s_waitcnt lgkmcnt(0)")
    for i in range(4):
        A(f"v_lshlrev_b32 v{f+2*i}, 16, v{vLN+i}")
        A(f"v_and_b32 v{f+2*i+1}, 0xffff0000, v{vLN+i}")
    A(f"v_add_f32 v{t}, v{f}, v{f+1}")
    for i in range(2, 8):
        A(f"v_add_f32 v{t}, v{t}, v{f+i}")
    wave_allreduce_add(A, t, None, sT+4)
    A(f"v_mul_f32 v{t}, {1.0/512!r}, v{t}")
    A(f"v_sub_f32 v{t+1}, v{f}, v{t}")
    A(f"v_mul_f32 v{t+2}, v{t+1}, v{t+1}")
    for i in range(1, 8):
        A(f"v_sub_f32 v{t+1}, v{f+i}, v{t}")
        A(f"v_fmac_f32 v{t+2}, v{t+1}, v{t+1}")
    wave_allreduce_add(A, t+2, None, sT+4)
    A(f"v_mul_f32 v{t+2}, {1.0/512!r}, v{t+2}")
    round_bf16(A, t)
    round_bf16(A, t+2)
    A(f"v_add_f32 v{t+2}, 0x3727c5ac, v{t+2}")
    round_bf16(A, t+2)
    A(f"v_sqrt_f32 v{t+2}, v{t+2}")
    A("s_nop 0")
    round_bf16(A, t+2)
    A(f"v_rcp_f32 v{t+3}, v{t+2}")
    A("s_nop 0")
    for i in range(8):
        A(f"v_sub_f32 v{f+i}, v{f+i}, v{t}")
        round_bf16(A, f+i)
        A(f"v_mul_f32 v{t+4}, v{f+i}, v{t+3}")
        A(f"v_fma_f32 v{t+5}, -v{t+4}, v{t+2}, v{f+i}")
        A(f"v_fma_f32 v{f+i}, v{t+5}, v{t+3}, v{t+4}")
    for i in range(4):
        A(f"v_cvt_pk_bf16_f32 v{vLN+i}, v{f+2*i}, v{f+2*i+1}")
    A(f"""
    v_lshrrev_b32 v6, 1, v0
    v_lshlrev_b32 v6, 10, v6
    v_and_b32 v7, 1, v0
    v_lshlrev_b32 v7, 9, v7
    v_add_u32 v6, v6, v7
    s_lshr_b32 s{sT+2}, s{sROW}, 5
    s_lshl_b32 s{sT+2}, s{sT+2}, 15
    s_and_b32 s{sT+3}, s{sROW}, 31
    s_lshl_b32 s{sT+3}, s{sT+3}, 4
    s_add_u32 s{sT+2}, s{sT+2}, s{sT+3}
    buffer_store_dwordx4 v[{vLN}:{vLN+3}], v6, s[{S_XN}:{S_XN+3}], s{sT+2} offen sc0 sc1
    """)
    vCEN = 232
    def census_load(zero):
        A(f"s_lshl_b32 s{sT+6}, s{sGRP}, 3")
        A(f"buffer_load_dwordx2 {v(vCEN,2)}, v{zero}, s[{S_DBG}:{S_DBG+3}], s{sT+6} offen sc1")
    def census_eval():
        A(f"""
        v_readfirstlane_b32 s{sT+6}, v{vCEN}
        v_readfirstlane_b32 s{sT+7}, v{vCEN+1}
        s_lshr_b64 s[{sT+6}:{sT+7}], s[{sT+6}:{sT+7}], s{sXCC}
        s_and_b32 s{sT+6}, s{sT+6}, 0xff
        s_cmp_lg_u32 s{sT+6}, 32
        s_cselect_b32 s{sSLOW}, 1, 0
        """)
        if FORCE_SLOW: A(f"s_mov_b32 s{sSLOW}, 1")
    def signal(one, zero, soff):
        A("s_mov_b64 exec, 1")
        A(f"buffer_atomic_add v{one}, v{zero}, s[{S_DBG}:{S_DBG+3}], s{soff} offen sc1")
        A("s_mov_b64 exec, -1")
    def flag_add(word_sgpr_expr_lines, sreg):
        for l in word_sgpr_expr_lines: A(l)
        A("s_mov_b64 exec, 1")
        A(f"buffer_atomic_add v15, v14, s[{S_DBG}:{S_DBG+3}], s{sreg} offen sc1")
        A("s_mov_b64 exec, -1")
    def flag_wait(vreg, soff, target):
        lok = A.newlabel("fl_ok"); lsp = A.newlabel("fl_spin")
        A(f"s_mov_b32 s{sT+7}, 0")
        A("s_nop 0")
        A.label(lsp)
        A(f"""
        v_readfirstlane_b32 s{sT+6}, v{vreg}
        s_cmp_ge_u32 s{sT+6}, {target}
        s_cbranch_scc1 {lok}
        s_add_u32 s{sT+7}, s{sT+7}, 1
        s_cmp_ge_u32 s{sT+7}, {SPIN_MAX}
        s_cbranch_scc1 {lok}
        s_sleep 8
        buffer_load_dword v{vreg}, v14, s[{S_DBG}:{S_DBG+3}], s{soff} offen sc1
        s_waitcnt vmcnt(0)
        s_branch {lsp}
        """)
        A.label(lok)

    sFLN, sFKV = 58, 59
    A(f"s_lshl_b32 s{sFLN}, s{sI}, 2")
    A(f"s_add_u32 s{sFLN}, s{sFLN}, 64")
    A(f"s_lshl_b32 s{sFKV}, s{sH}, 2")
    A(f"s_add_u32 s{sFKV}, s{sFKV}, 128")
    ACC = 64
    FR = [16, 40]
    def reads(ks):
        st, kp = ks >> 1, ks & 1
        buf = st & 3
        fr = FR[ks & 1]
        L = []
        for nb in range(2):
            for tt in range(2):
                L.append(f"ds_read_b64_tr_b16 {v(fr+16+nb*4+tt*2,2)}, v{vRW[nb]} offset:{buf*16384 + kp*4096 + tt*1024}")
        for kb in range(4):
            L.append(f"ds_read_b128 {v(fr+kb*4,4)}, v{vRX[kp]} offset:{buf*16384 + kb*2048}")
        return L
    lblV = A.newlabel("p1_v"); lblE = A.newlabel("p1_epi")
    stamp(A, 1)
    A("s_waitcnt vmcnt(%d)" % (4 if BULK else 1))
    A("s_barrier")
    A(f"""
    s_lshl_b32 s{sT+2}, s2, 3
    s_add_u32 s{sT+2}, s{sT+2}, s{sW}
    s_lshl_b32 s60, s{sT+2}, 11
    s_mul_i32 s61, s{sT+2}, 896
    v_lshlrev_b32 v8, 7, v0
    """)
    def touch2(S4, S175a, S175b, dst, va):
        A("s_mov_b64 exec, 0xffff")
        A(f"buffer_load_dword v{dst}, v{va}, s[{S4}:{S4+3}], s60 offen")
        A("s_mov_b64 exec, 0x7f")
        A(f"buffer_load_dword v{dst}, v{va}, s[{S175a}:{S175a+3}], s61 offen")
        if S175b: A(f"buffer_load_dword v{dst}, v{va}, s[{S175b}:{S175b+3}], s61 offen")
        A("s_mov_b64 exec, -1")
    A(f"s_cmp_ge_u32 s{sWN}, 2")
    A(f"s_cbranch_scc1 {lblV}")
    vFL = 199
    for ver in range(2):
        if ver == 1: A.label(lblV)
        for r in reads(0): A(r)
        for st in range(16):
            if st > 0:
                n_out = 4 if st < 14 else (0 if st == 14 else None)
                if n_out is not None:
                    A(f"s_waitcnt vmcnt({n_out})")
                    A("s_barrier")
            pcs = pieces(st + 3) if st + 3 < 16 else []
            if st == 1 and ver == 0:
                lsk = A.newlabel("p1_nf")
                A(f"s_cmp_lg_u32 s{sW}, 0")
                A(f"s_cbranch_scc1 {lsk}")
                signal(15, 14, sFLN)
                A.label(lsk)
            if st == TOUCH_ST and gen.PRETOUCH:
                touch2(S_WQ, S_WG, S_WU, 9, 8)
            if st == 14:
                A(f"buffer_load_dword v{vFL}, v14, s[{S_DBG}:{S_DBG+3}], s{sFLN} offen sc1")
                census_load(14)
            for kp in range(2):
                ks = 2*st + kp
                fr = FR[ks & 1]
                nxt = reads(ks + 1) if ks + 1 < 32 else []
                idx = 0
                for kb in range(4):
                    for nb in range(2):
                        if nb == 0:
                            A(f"s_waitcnt lgkmcnt({min((8 - (4 + kb + 1)) + idx, 15)})")
                        d = ACC + (kb*2+nb)*16
                        xa, wa = fr + kb*4, fr + 16 + nb*4
                        c = None if ks == 0 else d
                        if ver == 0: mfma(A, d, wa, xa, c)
                        else:        mfma(A, d, xa, wa, c)
                        if idx < len(nxt):
                            A(nxt[idx]); idx += 1
                        if pcs and (kb*2+nb) % 4 == 1:
                            for l in pcs.pop(0): A(l)
        if ver == 0: A(f"s_branch {lblE}")
    A.label(lblE)
    stamp(A, 2)
    vDF, vDQ = 192, 193
    vRXl, vRXh, vRWl, vRWh = 194, 195, 196, 197
    STG = 40960
    A(f"""
    v_lshrrev_b32 v7, 4, v0
    v_and_b32 v8, 15, v0
    v_lshlrev_b32 v9, 2, v7
    v_xor_b32 v8, v8, v9
    v_lshlrev_b32 v8, 4, v8
    v_mul_u32_u24 v6, 3584, v7
    v_add_u32 v{vDF}, v6, v8
    v_lshlrev_b32 v6, 13, v7
    v_add_u32 v{vDQ}, v6, v8
    s_cmp_lt_u32 s{sW}, 4
    s_cselect_b32 s{sT}, s{sRBF}, s{sRBO}
    s_lshl_b32 s{sT}, s{sT}, 2
    s_add_u32 s{sT}, s{sT}, s{sWR}
    s_lshl_b32 s{sSX}, s{sT}, 15
    s_mul_i32 s{sSWF}, s{sW}, {4*3584}
    s_lshl_b32 s{sT}, s{sFT}, 8
    s_add_u32 s{sSWF}, s{sSWF}, s{sT}
    s_lshl_b32 s{sSWQ}, s{sW}, 15
    s_lshl_b32 s{sT}, s{sH}, 8
    s_add_u32 s{sSWQ}, s{sSWQ}, s{sT}
    s_lshl_b32 s{sM0}, s{sW}, 10
    s_lshl_b32 s{sNIT}, s{sW}, 11
    s_lshl_b32 s{sT}, s{sP}, 12
    v_add_u32 v{vRXl}, s{sT}, v{vL16}
    v_add_u32 v{vRXh}, {2*STG}, v{vRXl}
    s_lshl_b32 s{sT}, s{sC}, 6
    v_xor_b32 v6, s{sT}, v198
    v_add_u32 v{vRWl}, 16384, v6
    v_add_u32 v{vRWh}, {2*STG}, v{vRWl}
    s_waitcnt vmcnt(0)
    s_barrier
    """)
    census_eval()
    flag_wait(vFL, sFLN, 32)
    def gpieces(st):
        b = (st & 3) * STG
        return [
         [f"s_add_u32 m0, s{sNIT}, {b}", f"s_add_u32 s{sT+1}, s{sSX}, {st*2048}",
          f"buffer_load_dwordx4 v{vL16}, s[{S_XN}:{S_XN+3}], s{sT+1} offen sc1 lds"],
         [f"buffer_load_dwordx4 v{vL16}, s[{S_XN}:{S_XN+3}], s{sT+1} offen offset:1024 sc1 lds"],
         [f"s_add_u32 m0, s{sM0}, {b+16384}", f"s_add_u32 s{sT+2}, s{sSWF}, {st*32*3584}",
          f"buffer_load_dwordx4 v{vDF}, s[{S_WG}:{S_WG+3}], s{sT+2} offen lds"],
         [f"s_add_u32 m0, s{sM0}, {b+24576}", f"s_add_u32 s{sT+3}, s{sSWQ}, {st*32*8192}",
          f"buffer_load_dwordx4 v{vDF}, s[{S_WU}:{S_WU+3}], s{sT+2} offen lds"],
         [f"s_add_u32 m0, s{sM0}, {b+32768}", "s_nop 0",
          f"buffer_load_dwordx4 v{vDQ}, s[{S_WQ}:{S_WQ+3}], s{sT+3} offen lds"]]
    for st in range(3):
        for p in gpieces(st):
            for l in p: A(l)
    A(f"""
    s_lshl_b32 s{sT+4}, s{sH}, 19
    s_lshl_b32 s{sT+5}, s{sI}, 16
    s_add_u32 s{sT+4}, s{sT+4}, s{sT+5}
    s_lshl_b32 s{sT+5}, s{sWM}, 15
    s_add_u32 s{sT+4}, s{sT+4}, s{sT+5}
    s_and_b32 s{sT+5}, s{sWN}, 1
    s_lshl_b32 s{sT+5}, s{sT+5}, 12
    s_add_u32 s{sT+4}, s{sT+4}, s{sT+5}
    """)
    lwt = A.newlabel("p1e_wt"); lje = A.newlabel("p1e_join")
    A(f"s_cmp_lg_u32 s{sSLOW}, 0")
    A(f"s_cbranch_scc1 {lwt}")
    for wt in range(2):
        if wt: A.label(lwt)
        fl = " sc0 sc1" if wt else ""
        for kb in range(4):
            for nb in range(2):
                d = ACC + (kb*2+nb)*16
                p = 200 + ((kb*2+nb) & 3) * 8
                for i in range(8):
                    A(f"v_cvt_pk_bf16_f32 v{p+i}, v{d+2*i}, v{d+2*i+1}")
                A(f"buffer_store_dwordx4 {v(p,4)}, v{vL16}, s[{S_KVO}:{S_KVO+3}], s{sT+4} offen offset:{nb*2048}{fl}")
                A(f"buffer_store_dwordx4 {v(p+4,4)}, v{vL16}, s[{S_KVO}:{S_KVO+3}], s{sT+4} offen offset:{nb*2048+1024}{fl}")
            if kb < 3:
                A(f"s_add_u32 s{sT+4}, s{sT+4}, 8192")
        if not wt: A(f"s_branch {lje}")
    A.label(lje)
    stamp(A, 3)
    srd(A, S_KF, 4, 5, 16*1024*1024, WS_KF)
    srd(A, S_VF, 4, 5, 16*1024*1024, WS_VF)
    srd(A, S_H, 4, 5, 64*112*1024, WS_H)
    srd(A, S_CTX, 4, 5, 16*1024*1024, WS_CTX)
    FR = [8, 36]
    XOFF = [0, 2048, 8192, 10240]
    def greads(ks):
        st, kp = ks >> 1, ks & 1
        buf = st & 3
        fr = FR[ks & 1]
        rx = vRXl if buf < 2 else vRXh
        rw = vRWl if buf < 2 else vRWh
        bo = (buf & 1) * STG
        def wr(sub):
            return [f"ds_read_b64_tr_b16 {v(fr+sub*4+tt*2,2)}, v{rw} offset:{bo + sub*8192 + kp*4096 + tt*1024}" for tt in range(2)]
        def xr(i):
            return [f"ds_read_b128 {v(fr+12+i*4,4)}, v{rx} offset:{bo + XOFF[i] + kp*1024}"]
        return wr(0) + xr(0) + xr(1) + wr(1) + wr(2) + xr(2) + xr(3)
    MF = [(0, 0, 0, 3), (1, 0, 1, 4), (2, 1, 0, 6), (3, 1, 1, 6), (4, 2, 0, 8), (5, 2, 1, 8), (6, 2, 2, 9), (7, 2, 3, 10)]
    A(f"v_mov_b32 v4, 0")
    A(f"v_mov_b32 v5, 1")
    vFK = 199
    A("s_waitcnt vmcnt(0)")
    A("s_barrier")
    for r in greads(0): A(r)
    lsk = A.newlabel("p2_ns")
    A(f"s_cmp_lg_u32 s{sW}, 7")
    A(f"s_cbranch_scc1 {lsk}")
    signal(5, 4, sFKV)
    A.label(lsk)
    for st in range(16):
        if st > 0:
            n_out = 5 if st < 14 else (0 if st == 14 else None)
            if n_out is not None:
                A(f"s_waitcnt vmcnt({n_out})")
                A("s_barrier")
        pcs = gpieces(st + 3) if st + 3 < 16 else []
        if st == 14:
            A(f"buffer_load_dword v{vFK}, v4, s[{S_DBG}:{S_DBG+3}], s{sFKV} offen sc1")
        for kp in range(2):
            ks = 2*st + kp
            fr = FR[ks & 1]
            nxt = greads(ks + 1) if ks + 1 < 32 else []
            idx = 0
            prev_need = 0
            for (acc, sub, xi, need) in MF:
                if need > prev_need:
                    A(f"s_waitcnt lgkmcnt({min((10 - need) + idx, 15)})")
                    prev_need = need
                d = ACC + acc*16
                mfma(A, d, fr + sub*4, fr + 12 + xi*4, None if ks == 0 else d)
                for _ in range(2 if acc in (0, 1) else 1):
                    if idx < len(nxt):
                        A(nxt[idx]); idx += 1
                if pcs and (kp*8 + acc) % 3 == 1:
                    for l in pcs.pop(0): A(l)
        assert not pcs
    stamp(A, 4)
    A(f"""
    s_waitcnt vmcnt(0)
    s_barrier
    v_mov_b32 v14, 0
    s_mov_b32 s{sPASS}, s{sFKV}
    """)
    sFKV = sPASS
    A(f"""
    s_lshl_b32 s{sHB}, s{sH}, 19
    s_lshl_b32 s{sT}, s{sW}, 12
    s_add_u32 s{sHB}, s{sHB}, s{sT}
    s_lshl_b32 s{sM0}, s{sW}, 12
    s_mov_b32 s{sKJ}, 0
    s_mov_b32 s{sVJ}, 0
    s_mov_b32 s{sKN}, s{sHB}
    s_mov_b32 s{sVN}, s{sHB}
    s_mov_b32 s{sM0K}, s{sM0}
    s_add_u32 s{sM0V}, s{sM0}, 65536
    """)
    sDS = 72
    def kv_issue(isV, defer=False):
        sJ = sVJ if isV else sKJ
        sN = sVN if isV else sKN
        sMM = sM0V if isV else sM0K
        S = S_VF if isV else S_KF
        sD = sDS + (1 if isV else 0)
        A(f"""
        s_mov_b32 m0, s{sMM}
        s_mov_b32 s{sD}, s{sN}
        s_xor_b32 s{sMM}, s{sMM}, 32768
        s_add_u32 s{sN}, s{sN}, 32768
        s_cmp_eq_u32 s{sJ}, s{sB0}
        s_cselect_b32 s{sN}, s{sHB}, s{sN}
        s_add_u32 s{sJ}, s{sJ}, 1
        """)
        L = [f"buffer_load_dwordx4 v{vL16}, s[{S}:{S+3}], s{sD} offen offset:{q*1024} lds" for q in range(4)]
        if defer: return L
        for l in L: A(l)
    flag_wait(vFK, sFKV, 8)
    kv_issue(False)
    kv_issue(True)
    kv_issue(False)
    T = 200
    A(f"s_mov_b32 s{sT+2}, {f32hex(QSCALE)}")
    A(f"""
    s_lshl_b32 s{sT}, s{sP}, 14                   ; 2p*8192
    s_lshl_b32 s{sT+1}, s{sC}, 11                 ; 2c*1024
    s_add_u32 s{sT}, s{sT}, s{sT+1}
    s_add_u32 s{sT}, s{sT}, {96*1024}
    v_add_u32 v6, s{sT}, v{vL16}
    """)
    for qi in range(4):
        d = ACC + (4+qi)*16
        for r in range(16):
            A(f"v_mul_f32 v{d+r}, s{sT+2}, v{d+r}")
        p = T + (qi & 1)*8
        for i in range(8):
            A(f"v_cvt_pk_bf16_f32 v{p+i}, v{d+2*i}, v{d+2*i+1}")
        xb_off = [0, 8192, 32768, 40960][qi]
        A(f"ds_write_b128 v6, {v(p,4)} offset:{xb_off}")
        A(f"ds_write_b128 v6, {v(p+4,4)} offset:{xb_off+1024}")
    srd(A, 12, 6, 7, 4096*1024)
    srd(A, 16, 100, 101, 1792*1024)
    A(f"""
    v_and_b32 v6, 31, v0
    v_lshlrev_b32 v6, 1, v6
    v_lshrrev_b32 v7, 5, v0
    v_lshlrev_b32 v7, 12, v7
    v_add_u32 v6, v6, v7
    v_add_u32 v7, 8192, v6                       ; +8 rows
    s_mul_i32 s{sT}, s2, 23
    s_mul_i32 s{sT+1}, s{sW}, 3
    s_add_u32 s{sNIT}, s{sT}, s{sT+1}
    """)
    for i in range(3):
        lwd = A.newlabel("rl_wd"); lj = A.newlabel("rl_j")
        R = 8 + 8*i
        A(f"""
        s_add_u32 s{sT}, s{sNIT}, {i}
        s_lshr_b32 s{sT+1}, s{sT}, 4
        s_and_b32 s{sT}, s{sT}, 15
        s_lshl_b32 s{sT}, s{sT}, 6
        s_cmp_ge_u32 s{sT+1}, 256
        s_cbranch_scc1 {lwd}
        s_lshl_b32 s{sT+1}, s{sT+1}, 14
        s_add_u32 s{sT}, s{sT}, s{sT+1}
        """)
        for S_ in (12, 16):
            if S_ == 16:
                A.label(lwd)
                A(f"s_sub_u32 s{sT+1}, s{sT+1}, 256")
                A(f"s_lshl_b32 s{sT+1}, s{sT+1}, 14")
                A(f"s_add_u32 s{sT}, s{sT}, s{sT+1}")
            for j in range(8):
                va = 6 if j < 4 else 7
                A(f"buffer_load_ushort v{R + j}, v{va}, s[{S_}:{S_+3}], s{sT} offen offset:{(j & 3)*1024}")
            if S_ == 12: A(f"s_branch {lj}")
        A.label(lj)
    A(f"s_mov_b32 s{sT+2}, {f32hex(GC1)}")
    A(f"s_mov_b32 s{sT+3}, {f32hex(GC2)}")
    A(f"v_mov_b32 v{T+16}, s{sT+2}")
    A(f"""
    s_lshl_b32 s{sT}, s{sRBF}, 2
    s_lshl_b32 s{sT+1}, s{sP}, 1
    s_add_u32 s{sT}, s{sT}, s{sT+1}
    s_mul_i32 s{sT}, s{sT}, {112*1024}
    s_lshl_b32 s{sT+1}, s{sFT}, 13
    s_add_u32 s{sT}, s{sT}, s{sT+1}
    s_lshl_b32 s{sT+1}, s{sC}, 11
    s_add_u32 s{sT}, s{sT}, s{sT+1}
    s_cmp_lt_u32 s{sH}, 28
    s_cselect_b32 s{sT}, s{sT}, 0x7ff00000
    """)
    for j in range(2):
        g0 = ACC + j*16
        u0 = ACC + (2+j)*16
        for r in range(16):
            x = g0 + r
            t = T + 18 + (r & 3)
            A(f"v_mul_f32 v{t}, v{x}, v{x}")
            A(f"v_fma_f32 v{t}, v{t}, s{sT+3}, v{T+16}")
            A(f"v_mul_f32 v{t}, v{t}, v{x}")
            A(f"v_exp_f32 v{t}, v{t}")
            A(f"v_mul_f32 v{x}, v{x}, v{u0+r}")
            A(f"v_add_f32 v{t}, 1.0, v{t}")
            A(f"v_rcp_f32 v{t}, v{t}")
            A("s_nop 0")
            A(f"v_mul_f32 v{x}, v{x}, v{t}")
        p = T + j*8
        for i in range(8):
            A(f"v_cvt_pk_bf16_f32 v{p+i}, v{g0+2*i}, v{g0+2*i+1}")
        A(f"buffer_store_dwordx4 {v(p,4)}, v{vL16}, s[{S_H}:{S_H+3}], s{sT} offen")
        A(f"buffer_store_dwordx4 {v(p+4,4)}, v{vL16}, s[{S_H}:{S_H+3}], s{sT} offen offset:1024")
        if j == 0:
            A(f"s_add_u32 s{sT}, s{sT}, {112*1024}")
    stamp(A, 5)
    srd(A, 12, 4, 5, 5888*1024, WS_WF)
    A(f"""
    s_lshl_b32 s{sT}, s{sNIT}, 10
    s_add_u32 s{sT+1}, s{sT}, 2048
    s_cmp_eq_u32 s{sW}, 7
    s_cselect_b32 s{sT+1}, 0x7ff00000, s{sT+1}
    s_waitcnt vmcnt(4)
    """)
    for q in range(12):
        A(f"v_lshl_or_b32 v{32+q}, v{9+2*q}, 16, v{8+2*q}")
    A(f"""
    buffer_store_dwordx4 v[32:35], v{vL16}, s[12:15], s{sT} offen
    buffer_store_dwordx4 v[36:39], v{vL16}, s[12:15], s{sT} offen offset:1024
    buffer_store_dwordx4 v[40:43], v{vL16}, s[12:15], s{sT+1} offen
    s_nop 1
    """)
    vKA, vVA, vL, vM, vTMP, vD = 2, 3, 4, 5, 6, 7
    F = 8; Q = 40; Q2 = 72; S = 104; NM = 136; P = 152; O = 168; T = 232
    A(f"""
    s_waitcnt lgkmcnt(0)
    s_barrier
    s_cmp_eq_u32 s{sRBF}, s{sB0}
    s_cselect_b32 s{sT}, 0, 32768
    s_cselect_b32 s{sT+1}, 32768, 0
    s_lshl_b32 s{sT+2}, s{sWR}, 13
    s_add_u32 s{sT+2}, s{sT+2}, {96*1024}
    s_add_u32 s{sT}, s{sT}, s{sT+2}
    s_add_u32 s{sT+1}, s{sT+1}, s{sT+2}
    v_add_u32 v{vTMP}, s{sT}, v{vL16}
    v_add_u32 v{vD}, s{sT+1}, v{vL16}
    """)
    for ks in range(8):
        A(f"ds_read_b128 {v(Q+4*ks,4)}, v{vTMP} offset:{ks*1024}")
    for ks in range(8):
        A(f"ds_read_b128 {v(Q2+4*ks,4)}, v{vD} offset:{ks*1024}")
    A(f"""
    s_waitcnt lgkmcnt(0)
    v_and_b32 v{vD}, 31, v0
    v_lshrrev_b32 v{vTMP}, 5, v0
    v_lshlrev_b32 v{vTMP}, 2, v{vTMP}
    v_sub_u32 v{vD}, v{vD}, v{vTMP}
    s_lshl_b32 s{sT}, s{sWR}, 5
    s_lshl_b32 s{sT+1}, s{sG}, 6
    s_sub_u32 s{sT}, s{sT}, s{sT+1}
    v_add_u32 v{vD}, s{sT}, v{vD}
    s_mov_b32 s{sPASS}, 0
    s_mov_b32 s{sBLK}, s{sB0}
    s_lshl_b32 s{sT}, s{sG}, 14
    v_add_u32 v{vKA}, s{sT}, v{vL16}              ; K(0) slot 0
    s_add_u32 s{sT}, s{sT}, {65536+32768}
    v_add_u32 v{vVA}, s{sT}, v{vL16}
    """)
    A("s_waitcnt vmcnt(8)")
    A("s_barrier")

    def mask_ops(kb):
        L = []
        for r0 in range(0, 16, 4):
            for j in range(4):
                r = r0 + j
                c = 32*kb + 8*(r >> 2) + (r & 3)
                L.append(f"v_cmp_gt_i32 s[{sMK+2*j}:{sMK+2*j+1}], {c}, v{vD}")
            for j in range(4):
                r = r0 + j
                L.append(f"v_cndmask_b32 v{S+16*kb+r}, v{S+16*kb+r}, v{T+15}, s[{sMK+2*j}:{sMK+2*j+1}]")
        return L
    def max_ops(kb, dst):
        x = S + 16*kb
        L = [f"v_max3_f32 v{dst}, v{x}, v{x+1}, v{x+2}"]
        for r in range(3, 15, 2):
            L.append(f"v_max3_f32 v{dst}, v{dst}, v{x+r}, v{x+r+1}")
        L.append(f"v_max_f32 v{dst}, v{dst}, v{x+15}")
        L.append(f"v_mov_b32 v{dst+1}, v{dst}")
        L.append("s_nop 1")
        L.append(f"v_permlane32_swap_b32 v{dst}, v{dst+1}")
        L.append("s_nop 1")
        L.append(f"v_max_f32 v{dst}, v{dst}, v{dst+1}")
        return L
    LS = [T+12, vL]
    def sm_ops(kb):
        x = S + 16*kb
        src, dst, t1 = LS[1-kb], LS[kb], T+kb
        L = []
        for r in range(0, 16, 2):
            L.append(f"v_exp_f32 v{x+r}, v{x+r}")
            L.append(f"v_exp_f32 v{x+r+1}, v{x+r+1}")
            if r >= 2:
                q = r - 2
                if q == 0:
                    L.append(f"v_add_f32 v{dst}, v{src}, v{x}")
                    L.append(f"v_cvt_pk_bf16_f32 v{P+8*kb}, v{x}, v{x+1}")
                elif q == 2:
                    L.append(f"v_add_f32 v{dst}, v{dst}, v{x+q}")
                    L.append(f"v_add_f32 v{t1}, v{x+1}, v{x+q+1}")
                    L.append(f"v_cvt_pk_bf16_f32 v{P+8*kb+q//2}, v{x+q}, v{x+q+1}")
                else:
                    L.append(f"v_add_f32 v{dst}, v{dst}, v{x+q}")
                    L.append(f"v_add_f32 v{t1}, v{t1}, v{x+q+1}")
                    L.append(f"v_cvt_pk_bf16_f32 v{P+8*kb+q//2}, v{x+q}, v{x+q+1}")
        L.append(f"v_add_f32 v{dst}, v{dst}, v{x+14}")
        L.append(f"v_add_f32 v{t1}, v{t1}, v{x+15}")
        L.append(f"v_cvt_pk_bf16_f32 v{P+8*kb+7}, v{x+14}, v{x+15}")
        L.append(f"v_add_f32 v{dst}, v{dst}, v{t1}")
        return L
    rescues = []
    def check(kb, masked, it_back):
        lr = A.newlabel("resc"); lb = A.newlabel("back")
        A(f"v_cmp_nle_f32 vcc, v{LS[kb]}, v{T+14}")
        A(f"s_cbranch_vccnz {lr}")
        A.label(lb)
        rescues.append((lr, lb, kb, masked, it_back))
    def emit_rescue(lr, lb, kb, masked, it_back):
        A.label(lr)
        A("s_nop 15")
        A("s_nop 15")
        A(f"""
        s_sub_u32 s{sT}, s{sIT}, {it_back}
        s_lshl_b32 s{sT}, s{sT}, 1
        s_add_u32 s{sT}, s{sT}, s{sG}
        s_lshl_b32 s{sT}, s{sT}, 14
        s_lshl_b32 s{sT+1}, s{sH}, 19
        s_add_u32 s{sT}, s{sT}, s{sT+1}
        s_add_u32 s{sT}, s{sT}, {kb*8192}
        s_add_u32 s{sT+1}, s{sT}, 4096
        """)
        for ks in range(8):
            so = sT if ks < 4 else sT+1
            A(f"buffer_load_dwordx4 {v(T+4,4)}, v{vL16}, s[{S_KF}:{S_KF+3}], s{so} offen offset:{(ks&3)*1024}")
            A("s_waitcnt vmcnt(0)")
            mfma(A, S+16*kb, T+4, Q+4*ks, NM if ks == 0 else S+16*kb)
            A("s_nop 7")
        A("s_nop 15")
        if masked:
            for op in mask_ops(kb): A(op)
        for op in max_ops(kb, T+2): A(op)
        A(f"v_max_f32 v{T+2}, 0, v{T+2}")
        A(f"v_sub_f32 v{T+3}, 0, v{T+2}")
        A(f"v_exp_f32 v{T+3}, v{T+3}")
        for r in range(16):
            A(f"v_sub_f32 v{NM+r}, v{NM+r}, v{T+2}")
        for r in range(32):
            A(f"v_sub_f32 v{S+r}, v{S+r}, v{T+2}")
        for r in range(64):
            A(f"v_mul_f32 v{O+r}, v{O+r}, v{T+3}")
        A(f"v_mul_f32 v{LS[1-kb]}, v{LS[1-kb]}, v{T+3}")
        for op in sm_ops(kb): A(op)
        A("s_nop 1")
        A(f"s_branch {lb}")

    def ph_items(ph):
        L = []
        for i in range(8):
            if ph in ("A", "C"):
                kb = 0 if ph == "A" else 1
                rd = (vKA, kb*8192 + i*1024)
                d = S + 16*kb
                mf = (d, Q + 4*i, NM if i == 0 else d)
            else:
                kk = (2 if ph == "B" else 0) + (i >> 2); db = i & 3
                rd = (vVA, (kk >> 1)*8192 + db*2048 + (kk & 1)*1024)
                d = O + 16*db
                mf = (d, P + 4*kk, d)
            L.append((rd, mf))
        return L
    def rd_line(rd, slot):
        return f"ds_read_b128 {v(F+4*slot,4)}, v{rd[0]} offset:{rd[1]}"

    def stream(phases, nxt_phase, pre, fills, extras, post):
        items = []
        for ph in phases: items += [(ph, i, it) for i, it in enumerate(ph_items(ph))]
        tail_items = ph_items(nxt_phase)[:4] if nxt_phase else []
        allrd = [it[2][0] for it in items] + [t[0] for t in tail_items]
        n = len(items)
        fq = {}
        for ph in phases:
            st, lines = fills.get(ph, (0, []))
            slots = 8 - st
            per = [len(lines)//slots + (1 if k < len(lines) % slots else 0) for k in range(slots)]
            k = 0
            for i in range(st, 8):
                fq[(ph, i)] = lines[k:k+per[i-st]]; k += per[i-st]
        for idx, (ph, i, (rd, mf)) in enumerate(items):
            if i == 0:
                for l in pre.get(ph, []):
                    if callable(l): l()
                    else: A(l)
            if idx % 4 == 0:
                A("s_waitcnt lgkmcnt(0)")
            d, b_, c = mf
            A(f"v_mfma_f32_32x32x16_bf16 {v(d,16)}, {v(F+4*(idx&7),4)}, {v(b_,4)}, {v(c,16)}")
            if idx % 4 < 2:
                base = (idx & ~3) + 4 + (idx % 4)*2
                for j in (base, base+1):
                    if j < len(allrd): A(rd_line(allrd[j], j & 7))
            for l in extras.get(ph, {}).get(i, []): A(l)
            for l in fq.get((ph, i), []): A(l)
            if i == 7 and ph in post: post[ph]()

    def split_fill(L, n1, n2):
        k = (len(L) * n1) // (n1 + n2)
        return L[:k], L[k:]

    SM1_A, SM1_D = None, None
    def sm1_parts(first, last):
        L = []
        if first:
            L += [f"v_sub_f32 v{NM+r}, 0, v{T+2}" for r in range(16)]
            L += [f"v_sub_f32 v{S+16+r}, v{S+16+r}, v{T+2}" for r in range(16)]
        if last: L += mask_ops(1)
        pre = len(L)
        sm = sm_ops(1)
        k = 18
        return L + sm[:k], sm[k:]

    def iteration(first, last):
        dm = {}
        def barY():
            A("s_waitcnt vmcnt(4)")
            A("s_barrier")
            dm["V"] = kv_issue(True, defer=True)
            A(f"v_xor_b32 v{vVA}, 0x8000, v{vVA}")
        def barX():
            A("s_waitcnt vmcnt(4)")
            A("s_barrier")
            dm["K"] = kv_issue(False, defer=True) if not last else []
            A(f"v_xor_b32 v{vKA}, 0x8000, v{vKA}")
        sm0 = []
        if last: sm0 += mask_ops(0)
        if first:
            sm0 += max_ops(0, T+2)
            sm0 += [f"v_max_f32 v{T+2}, v{T+13}, v{T+2}"]
            sm0 += [f"v_sub_f32 v{S+r}, v{S+r}, v{T+2}" for r in range(16)]
        sm0 += sm_ops(0)
        d_part, _ = sm1_parts(first, last)
        _, a_part = sm1_parts(False, False)
        class Lazy(dict):
            pass
        def dma(kind, q):
            return lambda: (A(dm[kind][q]) if dm.get(kind) else None)
        phases = ["A", "C", "D"] if first else ["A", "B", "C", "D"]
        fills = {}
        if first:
            fills["C"] = (2, sm0)
        else:
            b_part, c_part = split_fill(sm0, 6, 8)
            fills["A"] = (0, a_part)
            fills["B"] = (2, b_part)
            fills["C"] = (0, c_part)
        fills["D"] = (2, d_part)
        pre = {"C": [barY], "D": [barX]}
        post = {"C": lambda: check(0, last, 0)}
        if not first:
            post["A"] = lambda: check(1, False, 1)
        return phases, pre, fills, post, dm

    def emit_iteration(first, last):
        phases, pre, fills, post, dm = iteration(first, last)
        class Ex(dict):
            def get(self, ph, default=None):
                if ph == "C" and "V" in dm: return {1: [dm["V"][0]], 3: [dm["V"][1]], 5: [dm["V"][2]], 7: [dm["V"][3]]}
                if ph == "D" and dm.get("K"): return {1: [dm["K"][0]], 3: [dm["K"][1]], 5: [dm["K"][2]], 7: [dm["K"][3]]}
                return {}
        stream(phases, "B" if last else "A", pre, fills, Ex(), post)
        if last:
            _, a_part = sm1_parts(False, False)
            for l in a_part: A(l)
            check(1, True, 0)
            A("s_nop 0")
            stream(["B"], None, {}, {}, {}, {})

    blk_top = A.newlabel("blk_top")
    A.label(blk_top)
    for r in range(64): A(f"v_mov_b32 v{O+r}, 0")
    for r in range(16): A(f"v_mov_b32 v{NM+r}, 0")
    A(f"""
    v_mov_b32 v{vL}, 0
    v_mov_b32 v{T+13}, {f32hex(MFLOOR)}
    v_mov_b32 v{T+14}, {f32hex(BIGL)}
    v_mov_b32 v{T+15}, {f32hex(NEGBIG)}
    s_mov_b32 s{sIT}, 0
    """)
    for i in range(4): A(rd_line(ph_items("A")[i][0], i))
    l_only = A.newlabel("only"); l_mid = A.newlabel("mid"); l_last = A.newlabel("last"); l_merge = A.newlabel("merge")
    A(f"s_cmp_eq_u32 s{sBLK}, 0")
    A(f"s_cbranch_scc1 {l_only}")
    emit_iteration(True, False)
    A(f"s_mov_b32 s{sIT}, 1")
    A(f"s_cmp_ge_u32 s{sIT}, s{sBLK}")
    A(f"s_cbranch_scc1 {l_last}")
    A.label(l_mid)
    emit_iteration(False, False)
    A(f"s_add_u32 s{sIT}, s{sIT}, 1")
    A(f"s_cmp_lt_u32 s{sIT}, s{sBLK}")
    A(f"s_cbranch_scc1 {l_mid}")
    A.label(l_last)
    emit_iteration(False, True)
    A(f"s_branch {l_merge}")
    A.label(l_only)
    emit_iteration(True, True)
    A.label(l_merge)
    A(f"""
    v_mov_b32 v{T}, v{vL}
    s_nop 1
    v_permlane32_swap_b32 v{vL}, v{T}
    s_nop 1
    v_add_f32 v{vL}, v{vL}, v{T}
    s_barrier
    s_and_b32 s{sT}, s{sM0K}, 32768
    s_xor_b32 s{sT+1}, s{sM0V}, 32768
    s_and_b32 s{sT+1}, s{sT+1}, {65536+32768}
    s_xor_b32 s{sT+1}, s{sT+1}, 32768
    s_cmp_eq_u32 s{sG}, 0
    s_cselect_b32 s{sT+2}, s{sT}, s{sT+1}
    s_cselect_b32 s{sT+3}, s{sT+1}, s{sT}
    s_lshl_b32 s{sT}, s{sWR}, 13
    s_add_u32 s{sT+2}, s{sT+2}, s{sT}
    s_add_u32 s{sT+3}, s{sT+3}, s{sT}
    v_add_u32 v{T+2}, s{sT+2}, v{vL16}
    v_add_u32 v{T+3}, s{sT+3}, v{vL16}
    v_lshlrev_b32 v{T+4}, 3, v0                  ; lane*8
    s_lshl_b32 s{sT}, s{sW}, 9
    s_add_u32 s{sT}, s{sT}, 131072
    v_add_u32 v{T+5}, s{sT}, v{T+4}
    s_xor_b32 s{sT}, s{sT}, 2048
    v_add_u32 v{T+4}, s{sT}, v{T+4}
    v_mov_b32 v{T+6}, v{NM}
    v_mov_b32 v{T+7}, v{vL}
    ds_write_b64 v{T+5}, {v(T+6,2)}
    """)
    lg1 = A.newlabel("mg1"); lgd = A.newlabel("mgd")
    A(f"s_cmp_eq_u32 s{sG}, 0")
    A(f"s_cbranch_scc0 {lg1}")
    for gsel in range(2):
        if gsel == 1: A.label(lg1)
        give = O + (32 if gsel == 0 else 0)
        keep = O + (0 if gsel == 0 else 32)
        for i in range(8):
            A(f"ds_write_b128 v{T+2}, {v(give+4*i,4)} offset:{i*1024}")
        A("s_waitcnt lgkmcnt(0)")
        A("s_barrier")
        A(f"ds_read_b64 {v(T+8,2)}, v{T+4}")
        for i in range(8):
            A(f"ds_read_b128 {v(give+4*i,4)}, v{T+3} offset:{i*1024}")
        A(f"""
        s_waitcnt lgkmcnt(8)
        v_min_f32 v{T+10}, v{NM}, v{T+8}          ; -M
        v_sub_f32 v{T+11}, v{T+10}, v{NM}         ; m_self - M
        v_sub_f32 v{T+12}, v{T+10}, v{T+8}        ; m_part - M
        v_exp_f32 v{T+11}, v{T+11}
        v_exp_f32 v{T+12}, v{T+12}
        s_nop 0
        v_mul_f32 v{T+10}, v{vL}, v{T+11}
        v_fmac_f32 v{T+10}, v{T+9}, v{T+12}       ; l_total
        v_rcp_f32 v{T+10}, v{T+10}
        s_nop 0
        v_mul_f32 v{T+11}, v{T+11}, v{T+10}
        v_mul_f32 v{T+12}, v{T+12}, v{T+10}
        s_waitcnt lgkmcnt(0)
        """)
        for r in range(32):
            A(f"v_mul_f32 v{keep+r}, v{keep+r}, v{T+11}")
            A(f"v_fmac_f32 v{keep+r}, v{give+r}, v{T+12}")
        for i in range(16):
            A(f"v_cvt_pk_bf16_f32 v{S+i}, v{keep+2*i}, v{keep+2*i+1}")
        if gsel == 0: A(f"s_branch {lgd}")
    A.label(lgd)
    A("s_barrier")
    kv_issue(False)
    A(f"""
    s_lshl_b32 s{sT}, s{sBLK}, 2
    s_add_u32 s{sT}, s{sT}, s{sWR}
    s_lshl_b32 s{sT}, s{sT}, 18                  ; *256*1024
    s_lshl_b32 s{sT+1}, s{sH}, 13
    s_add_u32 s{sT}, s{sT}, s{sT+1}
    s_lshl_b32 s{sT+1}, s{sG}, 12
    s_add_u32 s{sT}, s{sT}, s{sT+1}
    """)
    for i in range(4):
        A(f"buffer_store_dwordx4 {v(S+4*i,4)}, v{vL16}, s[{S_CTX}:{S_CTX+3}], s{sT} offen offset:{i*1024}")
    stamp(A, 6)
    fin = A.newlabel("k2_fin")
    A(f"s_cmp_eq_u32 s{sPASS}, 1")
    A(f"s_cbranch_scc1 {fin}")
    A(f"s_mov_b32 s{sPASS}, 1")
    A(f"s_mov_b32 s{sBLK}, s{sI}")
    for r in range(32): A(f"v_mov_b32 v{Q+r}, v{Q2+r}")
    A(f"s_branch {blk_top}")
    for rr in rescues:
        emit_rescue(*rr)
    A.label(fin)
    if gen.STAMPS:
        A("s_waitcnt vmcnt(0)")
        stamp(A, 7); stamp(A, 9, True)
        stamp_flush(A, 10, 4, 5, sW, 0)
    A.label(done)
    A("s_endpgm")
    A.end_kernel(name, 248, 102)
    A.add_launch(name, 256, 512, 163840)
```

```python
from asmlib import *
import gen
from gen import *
from gen_k2 import f32hex, LOG2E

SLOT = 1
POLL_SLEEP = 12
FORCE_SLOW = False
SPIN_MAX = 1 << 18
WS_PART = 0x5000000

def gen_k3(A):
    name = "out_kernel"
    A.begin_kernel(name)
    done = A.newlabel("k3_done")
    S_H, S_WD, S_X, S_OUT, S_P, S_DBG = 12, 20, 24, 28, 8, 16
    S_A, S_B = 32, 36
    sW, sRT, sCT, sSP, sTILE, sWR2, sWC = 40, 41, 42, 43, 44, 45, 46
    sSH, sSW, sM0 = 47, 48, 49
    sAO, sBO, sLI, sXCC, sSLOW, sGRP = 50, 51, 52, 53, 54, 55
    sT = 56
    NB, NST = 5, 23
    A(f"""
    s_cmp_ge_u32 s2, 256
    s_cbranch_scc1 {done}
    s_load_dwordx2 s[56:57], s[0:1], {KA_X}
    s_load_dwordx2 s[58:59], s[0:1], {KA_WO}
    s_load_dwordx8 s[60:67], s[0:1], {KA_WD}
    v_lshrrev_b32 v1, 6, v0
    v_and_b32 v0, 63, v0
    v_readfirstlane_b32 s{sW}, v1
    s_and_b32 s{sGRP}, s2, 7
    s_lshr_b32 s{sSP}, s2, 3
    s_and_b32 s{sSP}, s{sSP}, 3                  ; split
    s_lshr_b32 s{sCT}, s2, 5
    s_lshl_b32 s{sTILE}, s{sGRP}, 3
    s_add_u32 s{sTILE}, s{sTILE}, s{sCT}
    s_lshr_b32 s{sRT}, s{sTILE}, 2
    s_and_b32 s{sCT}, s{sCT}, 3
    s_lshr_b32 s{sWR2}, s{sW}, 2
    s_and_b32 s{sWC}, s{sW}, 3
    s_getreg_b32 s{sXCC}, hwreg(HW_REG_XCC_ID)
    s_and_b32 s{sXCC}, s{sXCC}, 7
    s_lshl_b32 s{sXCC}, s{sXCC}, 3
    v_lshlrev_b32 v1, 4, v0
    s_waitcnt lgkmcnt(0)
    s_mov_b32 s4, s66
    s_mov_b32 s5, s67
    """)
    vL16 = 1
    stamp(A, 0); stamp(A, 5, True)
    srd(A, S_X, 56, 57, 2048*1024)
    srd(A, S_B, 58, 59, 4096*1024)
    srd(A, S_WD, 60, 61, 1792*1024)
    srd(A, S_OUT, 62, 63, 2048*1024)
    srd(A, S_DBG, 64, 65, 256)
    srd(A, S_A, 4, 5, 16*1024*1024, WS_CTX)
    srd(A, S_H, 4, 5, 64*112*1024, WS_H)
    srd(A, S_P, 4, 5, 64*4*5*4*4096, WS_PART)
    vDW, vDW2, vRX, vRW = 2, 3, 4, 5
    A(f"""
    v_lshrrev_b32 v7, 4, v0
    v_lshlrev_b32 v6, 10, v7                      ; (l>>4)*1024
    v_and_b32 v8, 15, v0
    v_lshlrev_b32 v9, 2, v7
    v_xor_b32 v8, v8, v9
    v_lshlrev_b32 v8, 4, v8
    v_add_u32 v{vDW}, v6, v8
    v_add_u32 v{vDW2}, {4096-1024}, v{vDW}
    s_lshl_b32 s{sT}, s{sRT}, 2
    s_lshr_b32 s{sT+1}, s{sW}, 1
    s_add_u32 s{sT}, s{sT}, s{sT+1}               ; rowblk32
    s_and_b32 s{sT+1}, s{sW}, 1
    s_lshl_b32 s{sT+1}, s{sT+1}, 11
    s_lshl_b32 s{sAO}, s{sT}, 18
    s_add_u32 s{sAO}, s{sAO}, s{sT+1}
    s_mul_i32 s{sSH}, s{sT}, {112*1024}
    s_add_u32 s{sSH}, s{sSH}, s{sT+1}
    s_lshl_b32 s{sSW}, s{sW}, 13
    s_lshl_b32 s{sT}, s{sCT}, 8
    s_add_u32 s{sSW}, s{sSW}, s{sT}
    s_mul_i32 s{sLI}, s{sSP}, {NST}
    s_lshl_b32 s{sT}, s{sLI}, 12
    s_add_u32 s{sAO}, s{sAO}, s{sT}
    s_lshl_b32 s{sT}, s{sLI}, 16
    s_add_u32 s{sBO}, s{sSW}, s{sT}
    s_lshl_b32 s{sM0}, s{sW}, 11
    """)
    l3 = A.newlabel("k3_not3")
    A(f"s_cmp_lg_u32 s{sSP}, 3")
    A(f"s_cbranch_scc1 {l3}")
    for i in range(3):
        A(f"s_mov_b32 s{S_A+i}, s{S_H+i}")
        A(f"s_mov_b32 s{S_B+i}, s{S_WD+i}")
    A(f"s_add_u32 s{sAO}, s{sSH}, {(3*NST-64)*4096}")
    A(f"s_add_u32 s{sBO}, s{sSW}, {(3*NST-64)*65536}")
    A.label(l3)
    def pieces(buf):
        b = buf * 32768
        lsw = A.newlabel("k3_sw")
        return [
          [f"s_add_u32 m0, s{sM0}, {b}", "s_nop 0",
           f"buffer_load_dwordx4 v{vL16}, s[{S_A}:{S_A+3}], s{sAO} offen lds"],
          [f"buffer_load_dwordx4 v{vL16}, s[{S_A}:{S_A+3}], s{sAO} offen offset:1024 lds"],
          [f"s_add_u32 m0, s{sM0}, {b + 16384}", f"s_add_u32 s{sAO}, s{sAO}, 4096",
           f"buffer_load_dwordx4 v{vDW}, s[{S_B}:{S_B+3}], s{sBO} offen lds"],
          [f"buffer_load_dwordx4 v{vDW2}, s[{S_B}:{S_B+3}], s{sBO} offen offset:1024 lds",
           f"s_add_u32 s{sBO}, s{sBO}, 65536",
           f"s_add_u32 s{sLI}, s{sLI}, 1",
           f"s_cmp_lg_u32 s{sLI}, 64",
           f"s_cbranch_scc1 {lsw}",
           f"s_mov_b32 s{S_A}, s{S_H}", f"s_mov_b32 s{S_A+1}, s{S_H+1}", f"s_mov_b32 s{S_A+2}, s{S_H+2}",
           f"s_mov_b32 s{S_B}, s{S_WD}", f"s_mov_b32 s{S_B+1}, s{S_WD+1}", f"s_mov_b32 s{S_B+2}, s{S_WD+2}",
           f"s_mov_b32 s{sAO}, s{sSH}", f"s_mov_b32 s{sBO}, s{sSW}",
           lsw + ":"]]
    def emit(lines):
        for l in lines:
            if l.endswith(":"): A.label(l[:-1])
            else: A(l)
    lsk = A.newlabel("k3_nocen")
    A(f"""
    v_mov_b32 v14, 0
    s_mov_b64 s[{sT+2}:{sT+3}], 1
    s_lshl_b64 s[{sT+2}:{sT+3}], s[{sT+2}:{sT+3}], s{sXCC}
    v_mov_b32 v8, s{sT+2}
    v_mov_b32 v9, s{sT+3}
    s_lshl_b32 s{sT}, s{sGRP}, 3
    s_cmp_lg_u32 s{sW}, 0
    s_cbranch_scc1 {lsk}
    s_mov_b64 exec, 1
    buffer_atomic_add_x2 v[8:9], v14, s[{S_DBG}:{S_DBG+3}], s{sT} offen sc1
    s_mov_b64 exec, -1
    """)
    A.label(lsk)
    for st in range(NB - 1):
        for p in pieces(st): emit(p)
    A(f"""
    s_lshl_b32 s{sT}, s{sWR2}, 13
    v_add_u32 v{vRX}, s{sT}, v{vL16}
    v_lshrrev_b32 v6, 5, v0
    v_lshlrev_b32 v6, 10, v6                      ; (g>>1)*4 rows*256
    v_bfe_u32 v7, v0, 2, 2
    v_lshlrev_b32 v10, 8, v7
    v_add_u32 v6, v6, v10
    v_lshlrev_b32 v10, 6, v7
    v_add_u32 v6, v6, v10
    v_bfe_u32 v10, v0, 4, 1
    v_lshlrev_b32 v10, 5, v10
    v_add_u32 v6, v6, v10
    v_and_b32 v10, 3, v0
    v_lshlrev_b32 v10, 3, v10
    v_add_u32 v6, v6, v10
    s_lshl_b32 s{sT}, s{sWC}, 6
    v_xor_b32 v6, s{sT}, v6
    v_add_u32 v{vRW}, 16384, v6
    """)
    RX = [vRX, 10, 11]; RW = [vRW, 12, 13]
    for i in (1, 2):
        A(f"v_add_u32 v{RX[i]}, {65536*i}, v{vRX}")
        A(f"v_add_u32 v{RW[i]}, {65536*i}, v{vRW}")
    AC, SV = 64, 96
    for r in range(32): A(f"v_mov_b32 v{AC+r}, 0")
    FR = 16
    def reads(buf, j):
        b = (buf & 1) * 32768
        fr = FR + j * 12
        return [f"ds_read_b64_tr_b16 {v(fr,2)}, v{RW[buf>>1]} offset:{b + j*4096}",
                f"ds_read_b64_tr_b16 {v(fr+2,2)}, v{RW[buf>>1]} offset:{b + j*4096 + 2048}",
                f"ds_read_b128 {v(fr+4,4)}, v{RX[buf>>1]} offset:{b + j*1024}",
                f"ds_read_b128 {v(fr+8,4)}, v{RX[buf>>1]} offset:{b + 4096 + j*1024}"]
    stamp(A, 1)
    A(f"s_waitcnt vmcnt({4*(NB-3)})")
    A("s_barrier")
    stamp(A, 2)
    for j in range(2): emit(reads(0, j))
    for st in range(NST):
        buf = st % NB
        if st > 0:
            rem = min(NB - 3, NST - 1 - (st + 1))
            if st < NST - 1:
                A(f"s_waitcnt vmcnt({4*rem})")
                A("s_barrier")
        if st == NST - 2:
            A(f"s_lshl_b32 s{sT+6}, s{sGRP}, 3")
            A(f"buffer_load_dwordx2 v[8:9], v14, s[{S_DBG}:{S_DBG+3}], s{sT+6} offen sc1")
        if st == 64 - 2*NST:
            lns = A.newlabel("k3_nosw")
            A(f"s_cmp_lg_u32 s{sSP}, 2")
            A(f"s_cbranch_scc1 {lns}")
            A("s_nop 15")
            for r in range(32):
                A(f"v_mov_b32 v{SV+r}, v{AC+r}")
                A(f"v_mov_b32 v{AC+r}, 0")
            A("s_nop 1")
            A.label(lns)
        pcs = pieces((buf + NB - 1) % NB) if st + NB - 1 < NST else []
        for j in range(4):
            if j < 2: emit(reads(buf, j + 2)); A("s_waitcnt lgkmcnt(8)")
            elif st < NST - 1: emit(reads((buf + 1) % NB, j - 2)); A("s_waitcnt lgkmcnt(8)")
            else: A(f"s_waitcnt lgkmcnt({4*(3-j)})")
            fr = FR + j * 12
            mfma(A, AC, fr, fr + 4, AC)
            mfma(A, AC + 16, fr, fr + 8, AC + 16)
            if pcs: emit(pcs.pop(0))
    stamp(A, 3)
    A(f"""
    s_waitcnt vmcnt(0)
    v_readfirstlane_b32 s{sT+6}, v8
    v_readfirstlane_b32 s{sT+7}, v9
    s_lshr_b64 s[{sT+6}:{sT+7}], s[{sT+6}:{sT+7}], s{sXCC}
    s_and_b32 s{sT+6}, s{sT+6}, 0xff
    s_cmp_lg_u32 s{sT+6}, 32
    s_cselect_b32 s{sSLOW}, 1, 0
    """)
    if FORCE_SLOW: A(f"s_mov_b32 s{sSLOW}, 1")
    A(f"""
    s_lshl_b32 s{sT}, s{sTILE}, 2
    s_lshl_b32 s{sT+1}, s{sWR2}, 1
    s_add_u32 s{sT}, s{sT}, s{sT+1}
    s_mul_i32 s{sT}, s{sT}, {5*16384}
    s_lshl_b32 s{sT+1}, s{sWC}, 12
    s_add_u32 s{sT}, s{sT}, s{sT+1}
    s_add_u32 s{sT+1}, s{sSP}, 1
    s_cmp_lt_u32 s{sSP}, 2
    s_cselect_b32 s{sT+1}, s{sSP}, s{sT+1}
    s_lshl_b32 s{sT+1}, s{sT+1}, 14
    s_add_u32 s{sT+1}, s{sT+1}, s{sT}
    s_add_u32 s{sT+2}, s{sT}, {2*16384}
    """)
    lwt = A.newlabel("k3_wt"); lj = A.newlabel("k3_stj")
    A(f"s_cmp_lg_u32 s{sSLOW}, 0")
    A(f"s_cbranch_scc1 {lwt}")
    for wt in range(2):
        if wt: A.label(lwt)
        fl = " sc0 sc1" if wt else ""
        for b in range(2):
            lsk = A.newlabel("k3_own")
            A(f"s_lshl_b32 s{sT+3}, s{sWR2}, 1")
            A(f"s_add_u32 s{sT+3}, s{sT+3}, {b}")
            A(f"s_cmp_eq_u32 s{sT+3}, s{sSP}")
            A(f"s_cbranch_scc1 {lsk}")
            A(f"s_add_u32 s{sT+4}, s{sT+1}, {b*5*16384}")
            for i in range(4):
                A(f"buffer_store_dwordx4 {v(AC+16*b+4*i,4)}, v{vL16}, s[{S_P}:{S_P+3}], s{sT+4} offen offset:{i*1024}{fl}")
            A(f"s_cmp_lg_u32 s{sSP}, 2")
            A(f"s_cbranch_scc1 {lsk}")
            A(f"s_add_u32 s{sT+4}, s{sT+2}, {b*5*16384}")
            for i in range(4):
                A(f"buffer_store_dwordx4 {v(SV+16*b+4*i,4)}, v{vL16}, s[{S_P}:{S_P+3}], s{sT+4} offen offset:{i*1024}{fl}")
            A.label(lsk)
        if not wt: A(f"s_branch {lj}")
    A.label(lj)
    lns = A.newlabel("k3_nosig")
    A(f"""
    s_lshr_b32 s{sT+5}, s{sTILE}, 2
    s_lshl_b32 s{sT+5}, s{sT+5}, 2
    s_add_u32 s{sT+5}, s{sT+5}, 64
    s_and_b32 s{sT+6}, s{sTILE}, 3
    s_lshl_b32 s{sT+6}, s{sT+6}, 3
    s_lshl_b32 s{sT+7}, 1, s{sT+6}
    v_mov_b32 v15, s{sT+7}
    s_waitcnt vmcnt(0)
    s_barrier
    s_cmp_lg_u32 s{sW}, 0
    s_cbranch_scc1 {lns}
    s_mov_b64 exec, 1
    buffer_atomic_add v15, v14, s[{S_DBG}:{S_DBG+3}], s{sT+5} offen sc1
    s_mov_b64 exec, -1
    """)
    A.label(lns)
    A(f"s_lshr_b32 s{sT+3}, s{sSP}, 1")
    A(f"s_cmp_lg_u32 s{sT+3}, s{sWR2}")
    A(f"s_cbranch_scc1 {done if not gen.STAMPS else 'k3_fin'}")
    lb1 = A.newlabel("k3_b1"); lbj = A.newlabel("k3_bj")
    A(f"s_and_b32 s{sT+3}, s{sSP}, 1")
    A(f"s_cmp_lg_u32 s{sT+3}, 0")
    A(f"s_cbranch_scc1 {lb1}")
    l2 = A.newlabel("k3_s2")
    A(f"s_cmp_lg_u32 s{sSP}, 0")
    A(f"s_cbranch_scc1 {l2}")
    for r in range(16):
        A(f"v_mov_b32 v{16+r}, v{AC+r}"); A(f"v_mov_b32 v{32+r}, 0")
    A(f"s_branch {lbj}")
    A.label(l2)
    for r in range(16):
        A(f"v_mov_b32 v{16+r}, v{SV+r}"); A(f"v_mov_b32 v{32+r}, v{AC+r}")
    A(f"s_branch {lbj}")
    A.label(lb1)
    l3b = A.newlabel("k3_s3")
    A(f"s_cmp_lg_u32 s{sSP}, 1")
    A(f"s_cbranch_scc1 {l3b}")
    for r in range(16):
        A(f"v_mov_b32 v{16+r}, v{AC+16+r}"); A(f"v_mov_b32 v{32+r}, 0")
    A(f"s_branch {lbj}")
    A.label(l3b)
    for r in range(16):
        A(f"v_mov_b32 v{16+r}, 0"); A(f"v_mov_b32 v{32+r}, v{AC+16+r}")
    A.label(lbj)
    A(f"""
    v_and_b32 v8, 31, v0
    v_lshlrev_b32 v8, 10, v8
    v_lshrrev_b32 v9, 5, v0
    v_lshlrev_b32 v9, 3, v9
    v_add_u32 v8, v8, v9
    s_lshl_b32 s{sT+1}, s{sRT}, 17
    s_lshl_b32 s{sT+2}, s{sSP}, 15
    s_add_u32 s{sT+1}, s{sT+1}, s{sT+2}
    s_lshl_b32 s{sT+2}, s{sCT}, 8
    s_add_u32 s{sT+1}, s{sT+1}, s{sT+2}
    s_lshl_b32 s{sT+2}, s{sWC}, 6
    s_add_u32 s{sT+1}, s{sT+1}, s{sT+2}
    """)
    for a_ in range(4):
        A(f"buffer_load_dwordx2 {v(48+2*a_,2)}, v8, s[{S_X}:{S_X+3}], s{sT+1} offen offset:{a_*16}")
    lok = A.newlabel("k3_ok"); lsp = A.newlabel("k3_spin")
    A(f"s_mov_b32 s{sT+4}, 0")
    A(f"s_cmp_lg_u32 s{sWC}, 0")
    A(f"s_cbranch_scc1 {lok}")
    A.label(lsp)
    A(f"""
    buffer_load_dword v9, v14, s[{S_DBG}:{S_DBG+3}], s{sT+5} offen sc1
    s_waitcnt vmcnt(0)
    v_readfirstlane_b32 s{sT+7}, v9
    s_lshr_b32 s{sT+7}, s{sT+7}, s{sT+6}
    s_and_b32 s{sT+7}, s{sT+7}, 0xff
    s_cmp_ge_u32 s{sT+7}, 4
    s_cbranch_scc1 {lok}
    s_add_u32 s{sT+4}, s{sT+4}, 1
    s_cmp_ge_u32 s{sT+4}, {SPIN_MAX}
    s_cbranch_scc1 {lok}
    s_sleep {POLL_SLEEP}
    s_branch {lsp}
    """)
    A.label(lok)
    A("s_barrier")
    A(f"""
    s_and_b32 s{sT+3}, s{sSP}, 1
    s_mul_i32 s{sT+3}, s{sT+3}, {5*16384}
    s_add_u32 s{sT}, s{sT}, s{sT+3}
    """)
    own = {0: [0], 1: [1], 2: [2, 3], 3: [4]}
    for slot in range(5):
        sp_own = [sp for sp in range(4) if slot in own[sp]][0]
        A(f"s_add_u32 s{sT+4}, s{sT}, {slot*16384}")
        A(f"s_cmp_eq_u32 s{sSP}, {sp_own}")
        A(f"s_cselect_b32 s{sT+4}, 0x7ff00000, s{sT+4}")
        for i in range(4):
            A(f"buffer_load_dwordx4 {v(64+slot*16+4*i,4)}, v{vL16}, s[{S_P}:{S_P+3}], s{sT+4} offen offset:{i*1024} sc1")
    A("s_waitcnt vmcnt(0)")
    for r in range(16):
        A(f"v_add_f32 v{16+r}, v{16+r}, v{64+r}")
        A(f"v_add_f32 v{80+r}, v{80+r}, v{96+r}")
        A(f"v_add_f32 v{32+r}, v{32+r}, v{112+r}")
        A(f"v_add_f32 v{16+r}, v{16+r}, v{80+r}")
        A(f"v_add_f32 v{32+r}, v{32+r}, v{128+r}")
    A(f"s_mov_b32 s{sT+2}, {f32hex(-LOG2E)}")
    for r in range(16):
        round_bf16(A, 16+r)
        round_bf16(A, 32+r)
        A(f"v_mul_f32 v{64+r}, s{sT+2}, v{32+r}")
        A(f"v_exp_f32 v{64+r}, v{64+r}")
    for r in range(16):
        A(f"v_add_f32 v{64+r}, 1.0, v{64+r}")
        A(f"v_rcp_f32 v{64+r}, v{64+r}")
    for r in range(16):
        A(f"v_mul_f32 v{32+r}, v{32+r}, v{64+r}")
        round_bf16(A, 32+r)
        A(f"v_mul_f32 v{16+r}, v{16+r}, v{32+r}")
        round_bf16(A, 16+r)
    for i in range(8):
        A(f"v_lshlrev_b32 v80, 16, v{48+i}")
        A(f"v_and_b32 v81, 0xffff0000, v{48+i}")
        A(f"v_add_f32 v{16+2*i}, v{16+2*i}, v80")
        A(f"v_add_f32 v{17+2*i}, v{17+2*i}, v81")
        A(f"v_cvt_pk_bf16_f32 v{56+i}, v{16+2*i}, v{17+2*i}")
    for a_ in range(4):
        A(f"buffer_store_dwordx2 {v(56+2*a_,2)}, v8, s[{S_OUT}:{S_OUT+3}], s{sT+1} offen offset:{a_*16}")
    if gen.STAMPS:
        A.label("k3_fin")
        A("s_waitcnt vmcnt(0)")
        stamp(A, 4); stamp(A, 6, True)
        stamp_flush(A, 7, 4, 5, sW, SLOT)
    A.label(done)
    A("s_endpgm")
    A.end_kernel(name, 144, 102)
    A.add_launch(name, 256, 512, 163840)
```

```python
import sys
import gen
from asmlib import *
from gen import *
import gen_f, gen_k3b
import gen_k3c as gen_k3
A = Asm()
if "stamps" in sys.argv: gen.STAMPS = True
if "nopretouch" in sys.argv: gen.PRETOUCH = False
if "slow" in sys.argv: gen_f.FORCE_SLOW = True; gen_k3b.FORCE_SLOW = True
if "nobulk" in sys.argv: gen_f.BULK = False
for a_ in sys.argv:
    if a_.startswith("touch="): gen_f.TOUCH_ST = int(a_[6:])
gen_f.gen_fused(A)
gen_k3.SLOT = 1
gen_k3.gen_k3(A)
open(sys.argv[1], "w").write(A.text(HEADER))
```

```python
import sys
from asmlib import *

HEADER = open("recurrent_scan__compressed_kv_cla__geglu_ffn__prompt.s.ref").read().split("; Override launch")[0]

WS_XN  = 0x0000000
WS_KF  = 0x1000000
WS_VF  = 0x2000000
WS_H   = 0x3000000
WS_CTX = 0x4000000
WS_WF  = 0x7000000
WS_SYNC = 0x7800000
WS_SIZE = 0x10000000

KA_X, KA_CKV, KA_WQ, KA_WUK, KA_WUV, KA_WO, KA_BX, KA_WG, KA_WU, KA_WD, KA_OUT, KA_DBG, KA_WS = [8*i for i in range(13)]

def srd(A, d, lo, hi, nbytes, add=0):
    if add:
        A(f"s_add_u32 s{d}, s{lo}, {add:#x}")
        A(f"s_addc_u32 s{d+1}, s{hi}, 0")
    else:
        A(f"s_mov_b32 s{d}, s{lo}")
        A(f"s_mov_b32 s{d+1}, s{hi}")
    A(f"s_mov_b32 s{d+2}, {nbytes:#x}")
    A(f"s_mov_b32 s{d+3}, 0x00020000")

def mfma(A, d, a_, b_, c=None):
    cs = "0" if c is None else v(c, 16)
    A(f"v_mfma_f32_32x32x16_bf16 {v(d,16)}, {v(a_,4)}, {v(b_,4)}, {cs}")

def wave_allreduce_add(A, x, t, s0):
    A(f"""
    s_nop 1
    v_add_f32_dpp v{x}, v{x}, v{x} quad_perm:[1,0,3,2] row_mask:0xf bank_mask:0xf
    s_nop 1
    v_add_f32_dpp v{x}, v{x}, v{x} quad_perm:[2,3,0,1] row_mask:0xf bank_mask:0xf
    s_nop 1
    v_add_f32_dpp v{x}, v{x}, v{x} row_half_mirror row_mask:0xf bank_mask:0xf
    s_nop 1
    v_add_f32_dpp v{x}, v{x}, v{x} row_mirror row_mask:0xf bank_mask:0xf
    s_nop 1
    v_readlane_b32 s{s0}, v{x}, 0
    v_readlane_b32 s{s0+1}, v{x}, 16
    v_readlane_b32 s{s0+2}, v{x}, 32
    v_readlane_b32 s{s0+3}, v{x}, 48
    s_nop 1
    v_mov_b32 v{x}, s{s0}
    v_add_f32 v{x}, s{s0+1}, v{x}
    v_add_f32 v{x}, s{s0+2}, v{x}
    v_add_f32 v{x}, s{s0+3}, v{x}
    """)

def round_bf16(A, x):
    A(f"v_cvt_pk_bf16_f32 v{x}, v{x}, v{x}")
    A(f"v_lshlrev_b32 v{x}, 16, v{x}")

STAMPS = False
PRETOUCH = True
WS_STAMP = 0x8000000
COARSE = True
CLOCKMODE = None
def stamp(A, idx, real=False, force=False):
    if not STAMPS: return
    if CLOCKMODE is not None:
        if real or idx not in CLOCKMODE: return
        k = CLOCKMODE[idx]
        A(f"s_memtime s[{80+2*k}:{81+2*k}]")
        A(f"s_memrealtime s[{90+2*k}:{91+2*k}]")
        return
    if not COARSE and not force and not real: return
    A(f"s_memrealtime s[{80+2*idx}:{81+2*idx}]" if real else f"s_memtime s[{80+2*idx}:{81+2*idx}]")
def stamp_flush(A, n, ws_lo, ws_hi, swave, slot=0):
    if not STAMPS: return
    A("s_waitcnt lgkmcnt(0)")
    srd(A, 76, ws_lo, ws_hi, 0x1000000, WS_STAMP + slot*0x100000)
    A(f"s_lshl_b32 s74, s2, 3")
    A(f"s_add_u32 s74, s74, s{swave}")
    A(f"s_lshl_b32 s74, s74, 6")
    A("v_mov_b32 v1, 0")
    for i in range(n):
        A(f"v_mov_b32 v2, s{80+2*i}")
        A(f"buffer_store_dword v2, v1, s[76:79], s74 offen offset:{4*i}")
        A("s_nop 1")

def gen_k1(A):
    name = "kv_kernel"
    A.begin_kernel(name)
    done = A.newlabel("k1_done")
    S_X, S_CKV, S_W, S_XN, S_OUT = 8, 12, 16, 20, 24
    sW, sH, sJ, sWM, sWN = 28, 29, 30, 31, 32
    sSX, sSW, sM0X, sM0W = 33, 34, 35, 36
    sT = 40
    A(f"""
    s_cmp_ge_u32 s2, 256
    s_cbranch_scc1 {done}
    s_load_dwordx4 s[44:47], s[0:1], {KA_X}      ; x, ckv
    s_load_dwordx4 s[48:51], s[0:1], {KA_WUK}
    s_load_dwordx2 s[52:53], s[0:1], {KA_WS}
    s_load_dwordx2 s[54:55], s[0:1], {KA_WQ}
    s_load_dwordx2 s[56:57], s[0:1], {KA_WO}
    s_load_dwordx4 s[60:63], s[0:1], {KA_WG}
    s_load_dwordx2 s[58:59], s[0:1], {KA_WD}
    v_lshrrev_b32 v1, 6, v0
    v_and_b32 v0, 63, v0                          ; lane
    v_readfirstlane_b32 s{sW}, v1
    s_and_b32 s{sH}, s2, 7
    s_lshl_b32 s{sH}, s{sH}, 2
    s_lshr_b32 s{sT}, s2, 3
    s_and_b32 s{sT}, s{sT}, 3
    s_add_u32 s{sH}, s{sH}, s{sT}                 ; head
    s_lshr_b32 s{sJ}, s2, 5
    s_lshr_b32 s{sWM}, s{sW}, 2
    s_and_b32 s{sWN}, s{sW}, 3
    s_waitcnt lgkmcnt(0)
    """)
    stamp(A, 0); stamp(A, 5, True)
    srd(A, S_X, 44, 45, 2048*1024)
    srd(A, S_CKV, 46, 47, 2048*1024)
    A(f"""
    s_cmp_lt_u32 s{sW}, 4
    s_cselect_b32 s{S_W}, s48, s50
    s_cselect_b32 s{S_W+1}, s49, s51
    s_mov_b32 s{S_W+2}, {512*8192:#x}
    s_mov_b32 s{S_W+3}, 0x00020000
    """)
    srd(A, S_XN, 52, 53, 2048*1024, WS_XN)
    A(f"""
    s_mov_b32 s{sT}, {WS_KF:#x}
    s_cmp_lt_u32 s{sWN}, 2
    s_cselect_b32 s{sT}, s{sT}, {WS_VF:#x}
    s_add_u32 s{S_OUT}, s52, s{sT}
    s_addc_u32 s{S_OUT+1}, s53, 0
    s_mov_b32 s{S_OUT+2}, {16*1024*1024:#x}
    s_mov_b32 s{S_OUT+3}, 0x00020000
    """)
    vLN = 200
    A(f"""
    s_lshl_b32 s{sT}, s2, 3
    s_add_u32 s{sT}, s{sT}, s{sW}                 ; row
    s_lshl_b32 s{sT+1}, s{sT}, 10                 ; row*1024
    v_lshlrev_b32 v1, 4, v0                       ; lane*16
    buffer_load_dwordx4 v[{vLN}:{vLN+3}], v1, s[{S_X}:{S_X+3}], s{sT+1} offen
    """)
    vDX, vDX2, vDW, vDW2 = 2, 3, 4, 5
    A(f"""
    v_lshrrev_b32 v6, 2, v0                       ; l>>2
    v_lshlrev_b32 v6, 10, v6                      ; *1024
    v_lshrrev_b32 v7, 4, v0                       ; l>>4
    v_and_b32 v8, 3, v0
    v_xor_b32 v8, v8, v7                          ; (l&3)^((l>>4)&3)
    v_lshlrev_b32 v8, 4, v8
    v_add_u32 v{vDX}, v6, v8
    v_add_u32 v{vDX2}, {16*1024-1024}, v{vDX}
    v_lshlrev_b32 v6, 13, v7                      ; (l>>4)*8192
    v_and_b32 v8, 15, v0
    v_lshlrev_b32 v9, 2, v7
    v_xor_b32 v8, v8, v9                          ; (l&15)^((l>>4)<<2)
    v_lshlrev_b32 v8, 4, v8
    v_add_u32 v{vDW}, v6, v8
    v_add_u32 v{vDW2}, {32768-1024}, v{vDW}
    """)
    A(f"""
    s_lshl_b32 s{sSX}, s{sJ}, 18                  ; j*256*1024
    s_lshl_b32 s{sT+2}, s{sW}, 15                 ; w*32*1024
    s_add_u32 s{sSX}, s{sSX}, s{sT+2}
    s_lshl_b32 s{sSW}, s{sWN}, 16                 ; (w&3)*8*8192
    s_lshl_b32 s{sT+2}, s{sH}, 8
    s_add_u32 s{sSW}, s{sSW}, s{sT+2}
    s_lshl_b32 s{sM0X}, s{sW}, 11                 ; w*2048
    s_add_u32 s{sM0W}, s{sM0X}, 0x10000
    """)
    def pieces(st):
        buf = st & 3
        return [
         [f"s_add_u32 m0, s{sM0X}, {buf*16384}", f"s_add_u32 s{sT+2}, s{sSX}, {st*64}",
          f"buffer_load_dwordx4 v{vDX}, s[{S_CKV}:{S_CKV+3}], s{sT+2} offen lds"],
         [f"buffer_load_dwordx4 v{vDX2}, s[{S_CKV}:{S_CKV+3}], s{sT+2} offen offset:1024 lds"],
         [f"s_add_u32 m0, s{sM0W}, {buf*16384}", f"s_add_u32 s{sT+3}, s{sSW}, {st*32*8192}",
          f"buffer_load_dwordx4 v{vDW}, s[{S_W}:{S_W+3}], s{sT+3} offen lds"],
         [f"buffer_load_dwordx4 v{vDW2}, s[{S_W}:{S_W+3}], s{sT+3} offen offset:1024 lds"]]
    def issue(st):
        for p in pieces(st):
            for l in p: A(l)
    issue(0); issue(1); issue(2)
    vRX = [10, 11]
    vRW = [12, 13]
    A(f"""
    v_and_b32 v6, 31, v0                          ; row
    v_lshrrev_b32 v7, 5, v0                       ; half
    v_lshrrev_b32 v8, 2, v6
    v_and_b32 v8, 3, v8                           ; (row>>2)&3
    v_xor_b32 v8, v8, v7                          ; half ^ f
    v_lshlrev_b32 v8, 4, v8
    v_lshlrev_b32 v6, 6, v6                       ; row*64
    v_add_u32 v6, v6, v8
    s_lshl_b32 s{sT+2}, s{sWM}, 13                ; wm*4*2048
    v_add_u32 v{vRX[0]}, s{sT+2}, v6
    v_xor_b32 v{vRX[1]}, 32, v{vRX[0]}            ; chunk ^ 2
    v_lshrrev_b32 v6, 5, v0                       ; g>>1
    v_lshlrev_b32 v6, 11, v6                      ; *8*256
    v_bfe_u32 v7, v0, 2, 2                        ; r
    v_lshlrev_b32 v8, 8, v7                       ; r*256
    v_add_u32 v6, v6, v8
    v_lshlrev_b32 v8, 6, v7                       ; r<<6
    v_add_u32 v6, v6, v8
    v_bfe_u32 v8, v0, 4, 1                        ; g&1
    v_lshlrev_b32 v8, 5, v8
    v_add_u32 v6, v6, v8
    v_and_b32 v8, 3, v0
    v_lshlrev_b32 v8, 3, v8
    v_add_u32 v6, v6, v8
    s_lshr_b32 s{sT+2}, s{sWN}, 1
    s_lshl_b32 s{sT+2}, s{sT+2}, 13
    s_add_u32 s{sT+2}, s{sT+2}, 0x10000
    v_add_u32 v6, s{sT+2}, v6
    s_and_b32 s{sT+2}, s{sWN}, 1
    s_lshl_b32 s{sT+2}, s{sT+2}, 7                ; (2*(wn&1))<<6
    v_xor_b32 v{vRW[0]}, s{sT+2}, v6
    v_xor_b32 v{vRW[1]}, 64, v{vRW[0]}
    """)
    A(f"""
    s_lshl_b32 s{sT+2}, s2, 3
    s_add_u32 s{sT+2}, s{sT+2}, s{sW}
    s_lshl_b32 s{sT+2}, s{sT+2}, 7
    v_lshlrev_b32 v14, 18, v0
    v_add_u32 v14, s{sT+2}, v14
    """)
    f = vLN + 4
    t = vLN + 12
    A("s_waitcnt vmcnt(12)")
    for i in range(4):
        A(f"v_lshlrev_b32 v{f+2*i}, 16, v{vLN+i}")
        A(f"v_and_b32 v{f+2*i+1}, 0xffff0000, v{vLN+i}")
    A(f"v_add_f32 v{t}, v{f}, v{f+1}")
    for i in range(2, 8):
        A(f"v_add_f32 v{t}, v{t}, v{f+i}")
    wave_allreduce_add(A, t, None, sT+4)
    A(f"v_mul_f32 v{t}, {1.0/512!r}, v{t}")
    A(f"v_sub_f32 v{t+1}, v{f}, v{t}")
    A(f"v_mul_f32 v{t+2}, v{t+1}, v{t+1}")
    for i in range(1, 8):
        A(f"v_sub_f32 v{t+1}, v{f+i}, v{t}")
        A(f"v_fmac_f32 v{t+2}, v{t+1}, v{t+1}")
    wave_allreduce_add(A, t+2, None, sT+4)
    A(f"v_mul_f32 v{t+2}, {1.0/512!r}, v{t+2}")
    round_bf16(A, t)
    round_bf16(A, t+2)
    A(f"v_add_f32 v{t+2}, 0x3727c5ac, v{t+2}")
    round_bf16(A, t+2)
    A(f"v_sqrt_f32 v{t+2}, v{t+2}")
    A("s_nop 0")
    round_bf16(A, t+2)
    A(f"v_rcp_f32 v{t+3}, v{t+2}")
    A("s_nop 0")
    for i in range(8):
        A(f"v_sub_f32 v{f+i}, v{f+i}, v{t}")
        round_bf16(A, f+i)
        A(f"v_mul_f32 v{t+4}, v{f+i}, v{t+3}")
        A(f"v_fma_f32 v{t+5}, -v{t+4}, v{t+2}, v{f+i}")
        A(f"v_fma_f32 v{f+i}, v{t+5}, v{t+3}, v{t+4}")
    for i in range(4):
        A(f"v_cvt_pk_bf16_f32 v{vLN+i}, v{f+2*i}, v{f+2*i+1}")
    A(f"""
    v_lshrrev_b32 v6, 1, v0
    v_lshlrev_b32 v6, 10, v6
    v_and_b32 v7, 1, v0
    v_lshlrev_b32 v7, 9, v7
    v_add_u32 v6, v6, v7
    s_lshr_b32 s{sT+2}, s{sT}, 5
    s_lshl_b32 s{sT+2}, s{sT+2}, 15
    s_and_b32 s{sT+3}, s{sT}, 31
    s_lshl_b32 s{sT+3}, s{sT+3}, 4
    s_add_u32 s{sT+2}, s{sT+2}, s{sT+3}
    buffer_store_dwordx4 v[{vLN}:{vLN+3}], v6, s[{S_XN}:{S_XN+3}], s{sT+2} offen
    """)
    ACC = 64
    FR = [16, 40]
    def reads(ks):
        st, kp = ks >> 1, ks & 1
        buf = st & 3
        fr = FR[ks & 1]
        L = []
        for nb in range(2):
            for tt in range(2):
                L.append(f"ds_read_b64_tr_b16 {v(fr+16+nb*4+tt*2,2)}, v{vRW[nb]} offset:{buf*16384 + kp*4096 + tt*1024}")
        for kb in range(4):
            L.append(f"ds_read_b128 {v(fr+kb*4,4)}, v{vRX[kp]} offset:{buf*16384 + kb*2048}")
        return L
    lblV = A.newlabel("k1_v"); lblE = A.newlabel("k1_epi")
    stamp(A, 1)
    A("s_waitcnt vmcnt(5)")
    A("s_barrier")
    stamp(A, 2)
    A(f"s_cmp_ge_u32 s{sWN}, 2")
    A(f"s_cbranch_scc1 {lblV}")
    for ver in range(2):
        if ver == 1:
            A.label(lblV)
        for r in reads(0): A(r)
        for st in range(16):
            if st > 0:
                n_out = 4 if st < 14 else (0 if st == 14 else None)
                if n_out is not None:
                    A(f"s_waitcnt vmcnt({n_out})")
                    A("s_barrier")
            pcs = pieces(st + 3) if st + 3 < 16 else []
            if PRETOUCH and st == 14:
                for lo, nb in [(54, 512*8192), (60, 512*3584), (62, 512*3584), (56, 4096*1024), (58, 1792*1024)]:
                    srd(A, 64, lo, lo + 1, nb)
                    A(f"buffer_load_dword v15, v14, s[64:67], 0 offen")
            for kp in range(2):
                ks = 2*st + kp
                fr = FR[ks & 1]
                nxt = reads(ks + 1) if ks + 1 < 32 else []
                idx = 0
                for kb in range(4):
                    for nb in range(2):
                        if nb == 0:
                            need_done = 4 + kb + 1
                            outstanding_after = (8 - need_done) + idx
                            A(f"s_waitcnt lgkmcnt({min(outstanding_after,15)})")
                        d = ACC + (kb*2+nb)*16
                        xa, wa = fr + kb*4, fr + 16 + nb*4
                        c = None if ks == 0 else d
                        if ver == 0: mfma(A, d, wa, xa, c)
                        else:        mfma(A, d, xa, wa, c)
                        if idx < len(nxt):
                            A(nxt[idx]); idx += 1
                        if pcs and (kb*2+nb) % 4 == 1:
                            for l in pcs.pop(0): A(l)
            assert not pcs
        if ver == 0:
            A(f"s_branch {lblE}")
    A.label(lblE)
    stamp(A, 3)
    A(f"""
    s_nop 7
    s_nop 7
    v_lshlrev_b32 v1, 4, v0
    s_lshl_b32 s{sT+2}, s{sH}, 19                 ; h*512KB
    s_lshl_b32 s{sT+3}, s{sJ}, 16                 ; j*8 keyblks*8192
    s_add_u32 s{sT+2}, s{sT+2}, s{sT+3}
    s_lshl_b32 s{sT+3}, s{sWM}, 15                ; wm*4*8192
    s_add_u32 s{sT+2}, s{sT+2}, s{sT+3}
    s_and_b32 s{sT+3}, s{sWN}, 1
    s_lshl_b32 s{sT+3}, s{sT+3}, 12
    s_add_u32 s{sT+2}, s{sT+2}, s{sT+3}
    """)
    for kb in range(4):
        for nb in range(2):
            d = ACC + (kb*2+nb)*16
            p = 16 + ((kb*2+nb) & 3) * 8
            for i in range(8):
                A(f"v_cvt_pk_bf16_f32 v{p+i}, v{d+2*i}, v{d+2*i+1}")
            A(f"buffer_store_dwordx4 {v(p,4)}, v1, s[{S_OUT}:{S_OUT+3}], s{sT+2} offen offset:{nb*2048}")
            A(f"buffer_store_dwordx4 {v(p+4,4)}, v1, s[{S_OUT}:{S_OUT+3}], s{sT+2} offen offset:{nb*2048+1024}")
        if kb < 3:
            A(f"s_add_u32 s{sT+2}, s{sT+2}, 8192")
    if STAMPS:
        A("s_waitcnt vmcnt(0)")
        stamp(A, 4); stamp(A, 6, True)
        stamp_flush(A, 7, 52, 53, sW)
    A.label(done)
    A("s_endpgm")
    A.end_kernel(name, 224, 100)
    A.add_launch(name, 256, 512, 131072)

if __name__ == "__main__":
    A = Asm()
    if "stamps" in sys.argv: STAMPS = True
    gen_k1(A)
    out = sys.argv[1] if len(sys.argv) > 1 else "k.s"
    open(out, "w").write(A.text(HEADER))
```

```python
from asmlib import *
import gen
from gen import *
import math, struct
from gen_k2 import f32hex, LOG2E, QSCALE, GC1, GC2, BIGL, NEGBIG, MFLOOR

FORCE_SLOW = False
BULK = 2
ATT = 0
TOUCH2_ST = 13
MIRROR = 1
DIAGSKIP = 1
WNB = 4
LN_SIG = 3
XN_SC1 = 1
TOUCH_ST = 6
SPIN_MAX = 1 << 18
KV_SIGNAL_STAGE = 0

def gen_fused(A):
    name = "main_kernel"
    A.begin_kernel(name)
    done = A.newlabel("f_done")
    S_XN, S_WG, S_WU, S_WQ, S_KF, S_VF, S_H, S_CTX = 8, 12, 16, 20, 24, 28, 32, 36
    S_CKV, S_W, S_X, S_KVO = 24, 28, 32, 32
    S_DBG = 76
    sW, sH, sI, sP, sC, sG, sWR = 40, 41, 42, 43, 44, 45, 46
    sSX, sSWF, sSWQ, sM0 = 47, 48, 49, 50
    sFT, sRBF, sRBO = 51, 52, 53
    sBLK, sIT, sNIT = 54, 55, 56
    sKN, sVN = 57, 58
    sM0K, sM0V = 59, 60
    sHB = 61
    sPASS = 62
    sKJ, sVJ = 63, 64
    sB0 = 65
    sT = 66
    sMK = 12
    sSX1, sSW1, sM0X, sM0W = 54, 55, 56, 57
    sWM, sWN = sG, sWR
    A(f"""
    s_cmp_ge_u32 s2, 256
    s_cbranch_scc1 {done}
    s_load_dwordx8 s[56:63], s[0:1], {KA_X}
    s_load_dwordx4 s[64:67], s[0:1], {KA_WUV}
    s_load_dwordx4 s[68:71], s[0:1], {KA_WG}
    s_load_dwordx2 s[100:101], s[0:1], {KA_WD}
    s_load_dwordx4 s[72:75], s[0:1], {KA_DBG}
    s_getpc_b64 s[76:77]
code_here:
    s_lshr_b32 s3, s2, 3
    s_lshl_b32 s3, s3, 11
    v_lshlrev_b32 v247, 7, v0
    v_add_u32 v247, s3, v247
    v_min_u32 v247, code_end - code_here - 4, v247
    v_cmp_gt_u32 vcc, 16, v0
    s_and_saveexec_b64 s[78:79], vcc
    s_cbranch_execz code_skip
    global_load_dword v247, v247, s[76:77]
code_skip:
    s_mov_b64 exec, -1
    v_lshrrev_b32 v1, 6, v0
    v_and_b32 v0, 63, v0
    v_readfirstlane_b32 s{sW}, v1
    s_and_b32 s{sH}, s2, 7
    s_lshl_b32 s{sH}, s{sH}, 2
    s_lshr_b32 s{sI}, s2, 3
    s_and_b32 s{sI}, s{sI}, 3
    s_add_u32 s{sH}, s{sH}, s{sI}                ; head
    s_lshr_b32 s{sI}, s2, 5
    s_and_b32 s{sP}, s{sW}, 1
    s_lshr_b32 s{sC}, s{sW}, 1
    s_lshr_b32 s{sG}, s{sW}, 2
    s_and_b32 s{sWR}, s{sW}, 3
    v_lshlrev_b32 v1, 4, v0
    s_waitcnt lgkmcnt(0)
    s_mov_b32 s4, s74
    s_mov_b32 s5, s75
    s_mov_b32 s6, s66
    s_mov_b32 s7, s67
    """)
    vL16 = 1
    stamp(A, 0); stamp(A, 8, True)
    srd(A, S_X, 56, 57, 2048*1024)
    srd(A, S_CKV, 58, 59, 2048*1024)
    srd(A, S_WQ, 60, 61, 512*8192)
    A(f"""
    s_cmp_lt_u32 s{sW}, 4
    s_cselect_b32 s{S_W}, s62, s64
    s_cselect_b32 s{S_W+1}, s63, s65
    s_mov_b32 s{S_W+2}, {512*8192:#x}
    s_mov_b32 s{S_W+3}, 0x00020000
    """)
    srd(A, 36, 62, 63, 512*8192)
    srd(A, 60, 64, 65, 512*8192)
    srd(A, S_WG, 68, 69, 512*3584)
    srd(A, S_WU, 70, 71, 512*3584)
    srd(A, S_DBG, 72, 73, 256)
    sGRP, sXCC, sSLOW = 3, 74, 75
    srd(A, S_XN, 4, 5, 2048*1024, WS_XN)
    sROW = 58
    vLN = 200
    A(f"""
    s_and_b32 s{sGRP}, s2, 7
    s_sub_u32 s{sB0}, 15, s{sI}
    s_getreg_b32 s{sXCC}, hwreg(HW_REG_XCC_ID)
    s_and_b32 s{sXCC}, s{sXCC}, 7
    s_or_b32 s{sXCC}, s{sXCC}, 0x10
    s_cmp_lt_u32 s{sH}, 16
    s_cselect_b32 s{sROW}, s{sI}, s{sB0}
    s_lshl_b32 s{sROW}, s{sROW}, 7
    s_and_b32 s{sT}, s{sH}, 15
    s_lshl_b32 s{sT}, s{sT}, 3
    s_add_u32 s{sROW}, s{sROW}, s{sT}
    s_add_u32 s{sROW}, s{sROW}, s{sW}
    s_lshl_b32 s{sT+1}, s{sROW}, 10
    s_lshl_b32 s{sT}, s{sW}, 10
    s_add_u32 m0, s{sT}, 0xc000
    v_add_u32 v{vLN+4}, 0xc000, v{vL16}
    v_add_u32 v{vLN+4}, s{sT}, v{vLN+4}
    buffer_load_dwordx4 v{vL16}, s[{S_X}:{S_X+3}], s{sT+1} offen lds
    """)
    A("v_mov_b32 v14, 0")
    A("v_mov_b32 v15, 1")
    A(f"""
    s_cmp_lt_u32 s{sH}, 14
    s_cselect_b32 s{sRBF}, s{sI}, s{sB0}
    s_cselect_b32 s{sRBO}, s{sB0}, s{sI}
    s_sub_u32 s{sFT}, s{sH}, 14
    s_cselect_b32 s{sFT}, s{sH}, s{sFT}
    s_cmp_ge_u32 s{sFT}, 14
    s_cselect_b32 s{sFT}, 0, s{sFT}
    """)
    vDX, vDX2, vDW, vDW2 = 2, 3, 4, 5
    A(f"""
    v_lshrrev_b32 v6, 2, v0
    v_lshlrev_b32 v6, 10, v6
    v_lshrrev_b32 v7, 4, v0
    v_and_b32 v8, 3, v0
    v_xor_b32 v8, v8, v7
    v_lshlrev_b32 v8, 4, v8
    v_add_u32 v{vDX}, v6, v8
    v_add_u32 v{vDX2}, {16*1024-1024}, v{vDX}
    v_lshlrev_b32 v6, 13, v7
    v_and_b32 v8, 15, v0
    v_lshlrev_b32 v9, 2, v7
    v_xor_b32 v8, v8, v9
    v_lshlrev_b32 v8, 4, v8
    v_add_u32 v{vDW}, v6, v8
    v_add_u32 v{vDW2}, {32768-1024}, v{vDW}
    s_lshl_b32 s{sT}, s{sG}, 1
    s_add_u32 s{sT}, s{sT}, s{sP}
    s_lshl_b32 s{sSX1}, s{sI}, 18
    s_lshl_b32 s{sT+2}, s{sT}, 16                 ; q*64 rows*1024
    s_add_u32 s{sSX1}, s{sSX1}, s{sT+2}
    s_lshl_b32 s{sSW1}, s{sP}, 17                 ; (q&1)*16 rows*8192
    s_lshl_b32 s{sT+2}, s{sH}, 8
    s_add_u32 s{sSW1}, s{sSW1}, s{sT+2}
    s_lshl_b32 s{sM0X}, s{sT}, 12                 ; q*4096
    s_add_u32 s{sM0W}, s{sM0X}, 0x10000
    """)
    def xpieces(st):
        buf = st & 3
        L = []
        for a_ in range(2):
            L += [[f"s_add_u32 m0, s{sM0X}, {buf*16384 + a_*2048}", f"s_add_u32 s{sT+2}, s{sSX1}, {st*64 + a_*32768}",
                   f"buffer_load_dwordx4 v{vDX}, s[{S_CKV}:{S_CKV+3}], s{sT+2} offen lds"],
                  [f"buffer_load_dwordx4 v{vDX2}, s[{S_CKV}:{S_CKV+3}], s{sT+2} offen offset:1024 lds"]]
        return L
    def wpieces(st):
        buf = st % WNB
        L = []
        for a_ in range(2):
            L += [[f"s_add_u32 m0, s{sM0W}, {buf*16384 + a_*2048}", f"s_add_u32 s{sT+3}, s{sSW1}, {st*32*8192 + a_*65536}",
                   f"buffer_load_dwordx4 v{vDW}, s[{S_W}:{S_W+3}], s{sT+3} offen lds"],
                  [f"buffer_load_dwordx4 v{vDW2}, s[{S_W}:{S_W+3}], s{sT+3} offen offset:1024 lds"]]
        return L
    WLA = WNB - 1
    LA = [3, WLA]
    PF = [xpieces, wpieces]
    lpw = A.newlabel("p1_prow"); lpj = A.newlabel("p1_proj")
    A(f"s_cmp_ge_u32 s{sWN}, 2")
    A(f"s_cbranch_scc1 {lpw}")
    for ver in range(2):
        if ver: A.label(lpw)
        for st in range(LA[ver]):
            for p in PF[ver](st):
                for l in p: A(l)
        if not ver: A(f"s_branch {lpj}")
    A.label(lpj)
    def issue0(ver):
        return [("d", st) for st in range(LA[ver]) for _ in range(4)] + [("o", 0)] * ((3 if BULK else 0) + 1)
    def allowed(log, need):
        last = max(i for i, (k, st_) in enumerate(log) if k == "d" and st_ == need)
        return len(log) - 1 - last
    if BULK == 2:
        A(f"""
        s_lshl_b32 s{sT}, s2, 3
        s_add_u32 s{sT}, s{sT}, s{sW}
        s_lshl_b32 s{sT+1}, s{sT}, 10
        s_lshl_b32 s{sT}, s{sT}, 11
        v_lshlrev_b32 v6, 7, v0
        s_mov_b64 exec, 0xff
        buffer_load_dword v9, v6, s[{S_CKV}:{S_CKV+3}], s{sT+1} offen
        s_mov_b64 exec, 0xffff
        buffer_load_dword v9, v6, s[36:39], s{sT} offen
        buffer_load_dword v9, v6, s[60:63], s{sT} offen
        s_mov_b64 exec, -1
        """)
    if BULK == 1:
        A(f"""
        s_lshr_b32 s{sT}, s2, 3
        s_lshl_b32 s{sT}, s{sT}, 3
        s_add_u32 s{sT}, s{sT}, s{sW}
        s_lshl_b32 s{sT+1}, s{sT}, 13
        v_lshlrev_b32 v6, 7, v0
        buffer_load_dword v9, v6, s[{S_CKV}:{S_CKV+3}], s{sT+1} offen
        v_and_b32 v6, 7, v0
        v_lshlrev_b32 v6, 7, v6
        v_bfe_u32 v7, v0, 3, 1
        v_lshlrev_b32 v7, 13, v7
        v_add_u32 v6, v6, v7
        s_lshl_b32 s{sT+1}, s{sT}, 14
        s_lshl_b32 s{sT}, s{sGRP}, 10
        s_add_u32 s{sT+1}, s{sT+1}, s{sT}
        s_mov_b64 exec, 0xffff
        buffer_load_dword v9, v6, s[36:39], s{sT+1} offen
        buffer_load_dword v9, v6, s[60:63], s{sT+1} offen
        s_mov_b64 exec, -1
        """)
    A(f"""
    s_mov_b32 s{sT}, {WS_KF:#x}
    s_cmp_lt_u32 s{sWN}, 2
    s_cselect_b32 s{sT}, s{sT}, {WS_VF:#x}
    s_add_u32 s{S_KVO}, s4, s{sT}
    s_addc_u32 s{S_KVO+1}, s5, 0
    s_mov_b32 s{S_KVO+2}, {16*1024*1024:#x}
    s_mov_b32 s{S_KVO+3}, 0x00020000
    """)
    vRX = [10, 11]; vRW = [12, 13]; vRW2 = [192, 193]
    A(f"""
    v_and_b32 v6, 31, v0
    v_lshrrev_b32 v7, 5, v0
    v_lshrrev_b32 v8, 2, v6
    v_and_b32 v8, 3, v8
    v_xor_b32 v8, v8, v7
    v_lshlrev_b32 v8, 4, v8
    v_lshlrev_b32 v6, 6, v6
    v_add_u32 v6, v6, v8
    s_lshl_b32 s{sT+2}, s{sWM}, 13
    v_add_u32 v{vRX[0]}, s{sT+2}, v6
    v_xor_b32 v{vRX[1]}, 32, v{vRX[0]}
    v_lshrrev_b32 v6, 5, v0
    v_lshlrev_b32 v6, 11, v6
    v_bfe_u32 v7, v0, 2, 2
    v_lshlrev_b32 v8, 8, v7
    v_add_u32 v6, v6, v8
    v_lshlrev_b32 v8, 6, v7
    v_add_u32 v6, v6, v8
    v_bfe_u32 v8, v0, 4, 1
    v_lshlrev_b32 v8, 5, v8
    v_add_u32 v6, v6, v8
    v_and_b32 v8, 3, v0
    v_lshlrev_b32 v8, 3, v8
    v_add_u32 v198, v6, v8
    s_lshr_b32 s{sT+2}, s{sWN}, 1
    s_lshl_b32 s{sT+2}, s{sT+2}, 13
    s_add_u32 s{sT+2}, s{sT+2}, 0x10000
    v_add_u32 v6, s{sT+2}, v198
    s_and_b32 s{sT+2}, s{sWN}, 1
    s_lshl_b32 s{sT+2}, s{sT+2}, 7
    v_xor_b32 v{vRW[0]}, s{sT+2}, v6
    v_xor_b32 v{vRW[1]}, 64, v{vRW[0]}
    v_add_u32 v{vRW2[0]}, 0x10000, v{vRW[0]}
    v_add_u32 v{vRW2[1]}, 0x10000, v{vRW[1]}
    """)
    f = vLN + 4
    t = vLN + 12
    lq = A.newlabel("ln_w"); lq2 = A.newlabel("ln_j")
    A(f"s_cmp_ge_u32 s{sWN}, 2")
    A(f"s_cbranch_scc1 {lq}")
    A("s_waitcnt vmcnt(%d)" % (12 + (3 if BULK else 0)))
    A(f"s_branch {lq2}")
    A.label(lq)
    A("s_waitcnt vmcnt(%d)" % (4*WLA + (3 if BULK else 0)))
    A.label(lq2)
    A(f"ds_read_b128 {v(vLN,4)}, v{vLN+4}")
    A("s_waitcnt lgkmcnt(0)")
    for i in range(4):
        A(f"v_lshlrev_b32 v{f+2*i}, 16, v{vLN+i}")
        A(f"v_and_b32 v{f+2*i+1}, 0xffff0000, v{vLN+i}")
    A(f"v_add_f32 v{t}, v{f}, v{f+1}")
    for i in range(2, 8):
        A(f"v_add_f32 v{t}, v{t}, v{f+i}")
    wave_allreduce_add(A, t, None, sT+4)
    A(f"v_mul_f32 v{t}, {1.0/512!r}, v{t}")
    A(f"v_sub_f32 v{t+1}, v{f}, v{t}")
    A(f"v_mul_f32 v{t+2}, v{t+1}, v{t+1}")
    for i in range(1, 8):
        A(f"v_sub_f32 v{t+1}, v{f+i}, v{t}")
        A(f"v_fmac_f32 v{t+2}, v{t+1}, v{t+1}")
    wave_allreduce_add(A, t+2, None, sT+4)
    A(f"v_mul_f32 v{t+2}, {1.0/512!r}, v{t+2}")
    round_bf16(A, t)
    round_bf16(A, t+2)
    A(f"v_add_f32 v{t+2}, 0x3727c5ac, v{t+2}")
    round_bf16(A, t+2)
    A(f"v_sqrt_f32 v{t+2}, v{t+2}")
    A("s_nop 0")
    round_bf16(A, t+2)
    A(f"v_rcp_f32 v{t+3}, v{t+2}")
    A("s_nop 0")
    for i in range(8):
        A(f"v_sub_f32 v{f+i}, v{f+i}, v{t}")
        round_bf16(A, f+i)
        A(f"v_mul_f32 v{t+4}, v{f+i}, v{t+3}")
        A(f"v_fma_f32 v{t+5}, -v{t+4}, v{t+2}, v{f+i}")
        A(f"v_fma_f32 v{f+i}, v{t+5}, v{t+3}, v{t+4}")
    for i in range(4):
        A(f"v_cvt_pk_bf16_f32 v{vLN+i}, v{f+2*i}, v{f+2*i+1}")
    A(f"""
    v_lshrrev_b32 v6, 1, v0
    v_lshlrev_b32 v6, 10, v6
    v_and_b32 v7, 1, v0
    v_lshlrev_b32 v7, 9, v7
    v_add_u32 v6, v6, v7
    s_lshr_b32 s{sT+2}, s{sROW}, 5
    s_lshl_b32 s{sT+2}, s{sT+2}, 15
    s_and_b32 s{sT+3}, s{sROW}, 31
    s_lshl_b32 s{sT+3}, s{sT+3}, 4
    s_add_u32 s{sT+2}, s{sT+2}, s{sT+3}
    buffer_store_dwordx4 v[{vLN}:{vLN+3}], v6, s[{S_XN}:{S_XN+3}], s{sT+2} offen sc0 sc1
    """)
    vST, vSA, vSB = 199, 244, 245
    A(f"v_lshlrev_b32 v{vSA}, 2, v0")
    def state_store(val_sgpr, vtmp, vzero):
        A(f"v_mov_b32 v{vtmp}, s{val_sgpr}")
        A("s_mov_b64 exec, 1")
        A(f"buffer_store_byte v{vtmp}, v{vzero}, s[{S_DBG}:{S_DBG+3}], s2 offen sc0 sc1")
        A("s_mov_b64 exec, -1")
    def state_load():
        A(f"buffer_load_dword v{vST}, v{vSA}, s[{S_DBG}:{S_DBG+3}], 0 offen sc1")
    def peers_byte():
        A(f"s_and_b32 s{sT+4}, s2, 3")
        A(f"s_lshl_b32 s{sT+4}, s{sT+4}, 3")
        A(f"v_lshrrev_b32 v{vSB}, s{sT+4}, v{vST}")
        A(f"s_bfe_u32 s{sT+4}, s2, 0x30002")
        A(f"s_mov_b32 s{sT+2}, 0x01010101")
        A(f"s_mov_b32 s{sT+3}, 0x01010101")
        A(f"s_lshl_b64 s[{sT+2}:{sT+3}], s[{sT+2}:{sT+3}], s{sT+4}")
    def state_wait(kind):
        lok = A.newlabel("fl_ok"); lsp = A.newlabel("fl_spin")
        A(f"s_mov_b32 s{sT+7}, 0")
        A.label(lsp)
        if kind == 0:
            A(f"""
            v_and_b32 v{vSB}, 0x10101010, v{vST}
            v_cmp_eq_u32 vcc, 0x10101010, v{vSB}
            s_lshl_b32 s{sT+4}, s{sI}, 3
            s_lshr_b64 s[{sT+2}:{sT+3}], vcc, s{sT+4}
            s_and_b32 s{sT+2}, s{sT+2}, 0xff
            s_cmp_eq_u32 s{sT+2}, 0xff
            """)
        else:
            peers_byte()
            A(f"""
            v_and_b32 v{vSB}, 0x20, v{vSB}
            v_cmp_ne_u32 vcc, 0, v{vSB}
            s_and_b64 s[{sT+4}:{sT+5}], vcc, s[{sT+2}:{sT+3}]
            s_cmp_eq_u64 s[{sT+4}:{sT+5}], s[{sT+2}:{sT+3}]
            """)
        A(f"""
        s_cbranch_scc1 {lok}
        s_add_u32 s{sT+7}, s{sT+7}, 1
        s_cmp_ge_u32 s{sT+7}, {SPIN_MAX}
        s_cbranch_scc1 {lok}
        s_sleep 16
        """)
        state_load()
        A("s_waitcnt vmcnt(0)")
        A(f"s_branch {lsp}")
        A.label(lok)
    def placement_eval():
        peers_byte()
        A(f"""
        v_and_b32 v{vSB}, 0x17, v{vSB}
        v_cmp_eq_u32 vcc, s{sXCC}, v{vSB}
        s_and_b64 s[{sT+4}:{sT+5}], vcc, s[{sT+2}:{sT+3}]
        s_cmp_eq_u64 s[{sT+4}:{sT+5}], s[{sT+2}:{sT+3}]
        s_cselect_b32 s{sSLOW}, 0, 1
        """)
        if FORCE_SLOW: A(f"s_mov_b32 s{sSLOW}, 1")
    ACC = 64
    FR = [16, 40]
    def reads(ks):
        st, kp = ks >> 1, ks & 1
        buf = st & 3
        fr = FR[ks & 1]
        L = []
        wb = st % WNB
        for nb in range(2):
            for tt in range(2):
                L.append(f"ds_read_b64_tr_b16 {v(fr+16+nb*4+tt*2,2)}, v{(vRW if wb < 4 else vRW2)[nb]} offset:{(wb & 3)*16384 + kp*4096 + tt*1024}")
        for kb in range(4):
            L.append(f"ds_read_b128 {v(fr+kb*4,4)}, v{vRX[kp]} offset:{buf*16384 + kb*2048}")
        return L
    lblV = A.newlabel("p1_v"); lblE = A.newlabel("p1_epi")
    stamp(A, 1)
    A(f"""
    s_lshl_b32 s{sT+2}, s2, 3
    s_add_u32 s{sT+2}, s{sT+2}, s{sW}
    s_lshl_b32 s60, s{sT+2}, 11
    s_mul_i32 s61, s{sT+2}, 896
    v_lshlrev_b32 v8, 7, v0
    """)
    def touch2(S4, S175a, S175b, dst, va):
        A("s_mov_b64 exec, 0xffff")
        A(f"buffer_load_dword v{dst}, v{va}, s[{S4}:{S4+3}], s60 offen")
        A("s_mov_b64 exec, 0x7f")
        A(f"buffer_load_dword v{dst}, v{va}, s[{S175a}:{S175a+3}], s61 offen")
        if S175b: A(f"buffer_load_dword v{dst}, v{va}, s[{S175b}:{S175b+3}], s61 offen")
        A("s_mov_b64 exec, -1")
    A(f"s_cmp_ge_u32 s{sWN}, 2")
    A(f"s_cbranch_scc1 {lblV}")
    for ver in range(2):
        if ver == 1: A.label(lblV)
        log = issue0(ver)
        A("s_waitcnt vmcnt(%d)" % allowed(log, 1))
        A("s_barrier")
        for r in reads(0): A(r)
        for st in range(16):
            if st > 0:
                n_out = allowed(log, st + 1) if st < 15 else None
                if st == LN_SIG:
                    n_out = min(n_out, len(log) - 1 - max(i for i, o in enumerate(log) if o == ("o", 0)))
                if n_out is not None:
                    A(f"s_waitcnt vmcnt({n_out})")
                    A("s_barrier")
            pcs = PF[ver](st + LA[ver]) if st + LA[ver] < 16 else []
            log += [("d", st + LA[ver])] * len(pcs)
            if st == LN_SIG and ver == 0:
                lsk = A.newlabel("p1_nf")
                A(f"s_cmp_lg_u32 s{sW}, 0")
                A(f"s_cbranch_scc1 {lsk}")
                state_store(sXCC, 15, 14)
                A.label(lsk)
            if st == TOUCH_ST and gen.PRETOUCH:
                touch2(S_WQ, S_WG, S_WU, 9, 8)
            if st == TOUCH2_ST:
                A(f"""
                s_lshl_b32 s{sT+4}, s{sI}, 3
                s_add_u32 s{sT+4}, s{sT+4}, s{sW}
                s_lshl_b32 s{sT+5}, s{sT+4}, 16
                s_lshl_b32 s{sT+6}, s{sH}, 8
                s_add_u32 s{sT+5}, s{sT+5}, s{sT+6}
                s_mul_i32 s{sT+4}, s{sT+4}, {8*3584}
                s_lshl_b32 s{sT+6}, s{sFT}, 8
                s_add_u32 s{sT+4}, s{sT+4}, s{sT+6}
                v_bfe_u32 v6, v0, 1, 3
                v_and_b32 v7, 1, v0
                v_lshlrev_b32 v7, 7, v7
                v_mul_u32_u24 v8, 3584, v6
                v_add_u32 v8, v8, v7
                v_lshlrev_b32 v6, 13, v6
                v_add_u32 v6, v6, v7
                s_mov_b64 exec, 0xffff
                buffer_load_dword v9, v6, s[{S_WQ}:{S_WQ+3}], s{sT+5} offen
                buffer_load_dword v9, v8, s[{S_WG}:{S_WG+3}], s{sT+4} offen
                buffer_load_dword v9, v8, s[{S_WU}:{S_WU+3}], s{sT+4} offen
                s_mov_b64 exec, -1
                """)
            if st == 14:
                state_load()
            for kp in range(2):
                ks = 2*st + kp
                fr = FR[ks & 1]
                nxt = reads(ks + 1) if ks + 1 < 32 else []
                idx = 0
                for kb in range(4):
                    for nb in range(2):
                        if nb == 0:
                            A(f"s_waitcnt lgkmcnt({min((8 - (4 + kb + 1)) + idx, 15)})")
                        d = ACC + (kb*2+nb)*16
                        xa, wa = fr + kb*4, fr + 16 + nb*4
                        c = None if ks == 0 else d
                        if ver == 0: mfma(A, d, wa, xa, c)
                        else:        mfma(A, d, xa, wa, c)
                        if idx < len(nxt):
                            A(nxt[idx]); idx += 1
                        if pcs and (kb*2+nb) % 4 == 1:
                            for l in pcs.pop(0): A(l)
        if ver == 0: A(f"s_branch {lblE}")
    A.label(lblE)
    stamp(A, 2)
    vDF, vDQ = 192, 193
    vRXl, vRXh, vRWl, vRWh = 194, 195, 196, 197
    STG = 40960
    A(f"""
    v_lshrrev_b32 v7, 4, v0
    v_and_b32 v8, 15, v0
    v_lshlrev_b32 v9, 2, v7
    v_xor_b32 v8, v8, v9
    v_lshlrev_b32 v8, 4, v8
    v_mul_u32_u24 v6, 3584, v7
    v_add_u32 v{vDF}, v6, v8
    v_lshlrev_b32 v6, 13, v7
    v_add_u32 v{vDQ}, v6, v8
    s_cmp_lt_u32 s{sW}, 4
    s_cselect_b32 s{sT}, s{sRBF}, s{sRBO}
    s_lshl_b32 s{sT}, s{sT}, 2
    s_add_u32 s{sT}, s{sT}, s{sWR}
    s_lshl_b32 s{sSX}, s{sT}, 15
    s_mul_i32 s{sSWF}, s{sW}, {4*3584}
    s_lshl_b32 s{sT}, s{sFT}, 8
    s_add_u32 s{sSWF}, s{sSWF}, s{sT}
    s_lshl_b32 s{sSWQ}, s{sW}, 15
    s_lshl_b32 s{sT}, s{sH}, 8
    s_add_u32 s{sSWQ}, s{sSWQ}, s{sT}
    s_lshl_b32 s{sM0}, s{sW}, 10
    s_lshl_b32 s{sNIT}, s{sW}, 11
    s_lshl_b32 s{sT}, s{sP}, 12
    v_add_u32 v{vRXl}, s{sT}, v{vL16}
    v_add_u32 v{vRXh}, {2*STG}, v{vRXl}
    s_lshl_b32 s{sT}, s{sC}, 6
    v_xor_b32 v6, s{sT}, v198
    v_add_u32 v{vRWl}, 16384, v6
    v_add_u32 v{vRWh}, {2*STG}, v{vRWl}
    s_waitcnt vmcnt(0)
    s_barrier
    """)
    state_wait(0)
    placement_eval()
    XNSC = ' sc1' if XN_SC1 else ''
    def gpieces(st):
        b = (st & 3) * STG
        return [
         [f"s_add_u32 m0, s{sNIT}, {b}", f"s_add_u32 s{sT+1}, s{sSX}, {st*2048}",
          f"buffer_load_dwordx4 v{vL16}, s[{S_XN}:{S_XN+3}], s{sT+1} offen{XNSC} lds"],
         [f"buffer_load_dwordx4 v{vL16}, s[{S_XN}:{S_XN+3}], s{sT+1} offen offset:1024{XNSC} lds"],
         [f"s_add_u32 m0, s{sM0}, {b+16384}", f"s_add_u32 s{sT+2}, s{sSWF}, {st*32*3584}",
          f"buffer_load_dwordx4 v{vDF}, s[{S_WG}:{S_WG+3}], s{sT+2} offen lds"],
         [f"s_add_u32 m0, s{sM0}, {b+24576}", f"s_add_u32 s{sT+3}, s{sSWQ}, {st*32*8192}",
          f"buffer_load_dwordx4 v{vDF}, s[{S_WU}:{S_WU+3}], s{sT+2} offen lds"],
         [f"s_add_u32 m0, s{sM0}, {b+32768}", "s_nop 0",
          f"buffer_load_dwordx4 v{vDQ}, s[{S_WQ}:{S_WQ+3}], s{sT+3} offen lds"]]
    for st in range(3):
        for p in gpieces(st):
            for l in p: A(l)
    A(f"""
    s_lshl_b32 s{sT+4}, s{sH}, 19
    s_lshl_b32 s{sT+5}, s{sI}, 16
    s_add_u32 s{sT+4}, s{sT+4}, s{sT+5}
    s_lshl_b32 s{sT+5}, s{sWM}, 15
    s_add_u32 s{sT+4}, s{sT+4}, s{sT+5}
    s_and_b32 s{sT+5}, s{sWN}, 1
    s_lshl_b32 s{sT+5}, s{sT+5}, 12
    s_add_u32 s{sT+4}, s{sT+4}, s{sT+5}
    """)
    lwt = A.newlabel("p1e_wt"); lje = A.newlabel("p1e_join")
    A(f"s_cmp_lg_u32 s{sSLOW}, 0")
    A(f"s_cbranch_scc1 {lwt}")
    for wt in range(2):
        if wt: A.label(lwt)
        fl = " sc0 sc1" if wt else ""
        for kb in range(4):
            for nb in range(2):
                d = ACC + (kb*2+nb)*16
                p = 200 + ((kb*2+nb) & 3) * 8
                for i in range(8):
                    A(f"v_cvt_pk_bf16_f32 v{p+i}, v{d+2*i}, v{d+2*i+1}")
                A(f"buffer_store_dwordx4 {v(p,4)}, v{vL16}, s[{S_KVO}:{S_KVO+3}], s{sT+4} offen offset:{nb*2048}{fl}")
                A(f"buffer_store_dwordx4 {v(p+4,4)}, v{vL16}, s[{S_KVO}:{S_KVO+3}], s{sT+4} offen offset:{nb*2048+1024}{fl}")
            if kb < 3:
                A(f"s_add_u32 s{sT+4}, s{sT+4}, 8192")
        if not wt: A(f"s_branch {lje}")
    A.label(lje)
    stamp(A, 3)
    srd(A, S_KF, 4, 5, 16*1024*1024, WS_KF)
    srd(A, S_VF, 4, 5, 16*1024*1024, WS_VF)
    srd(A, S_H, 4, 5, 64*112*1024, WS_H)
    srd(A, S_CTX, 4, 5, 16*1024*1024, WS_CTX)
    FR = [8, 36]
    XOFF = [0, 2048, 8192, 10240]
    def greads(ks):
        st, kp = ks >> 1, ks & 1
        buf = st & 3
        fr = FR[ks & 1]
        rx = vRXl if buf < 2 else vRXh
        rw = vRWl if buf < 2 else vRWh
        bo = (buf & 1) * STG
        def wr(sub):
            return [f"ds_read_b64_tr_b16 {v(fr+sub*4+tt*2,2)}, v{rw} offset:{bo + sub*8192 + kp*4096 + tt*1024}" for tt in range(2)]
        def xr(i):
            return [f"ds_read_b128 {v(fr+12+i*4,4)}, v{rx} offset:{bo + XOFF[i] + kp*1024}"]
        return wr(0) + xr(0) + xr(1) + wr(1) + wr(2) + xr(2) + xr(3)
    MF = [(0, 0, 0, 3), (1, 0, 1, 4), (2, 1, 0, 6), (3, 1, 1, 6), (4, 2, 0, 8), (5, 2, 1, 8), (6, 2, 2, 9), (7, 2, 3, 10)]
    def relayout_loads():
        srd(A, 24, 6, 7, 4096*1024)
        srd(A, 28, 100, 101, 1792*1024)
        A(f"""
        v_and_b32 v2, 31, v0
        v_lshlrev_b32 v2, 1, v2
        v_lshrrev_b32 v3, 5, v0
        v_lshlrev_b32 v3, 12, v3
        v_add_u32 v2, v2, v3
        v_add_u32 v3, 8192, v2                       ; +8 rows
        s_mul_i32 s{sT}, s2, 23
        s_mul_i32 s{sT+1}, s{sW}, 3
        s_add_u32 s{sBLK}, s{sT}, s{sT+1}
        """)
        for i in range(3):
            lwd = A.newlabel("rl_wd"); lj = A.newlabel("rl_j")
            R = 220 + 8*i
            A(f"""
            s_add_u32 s{sT}, s{sBLK}, {i}
            s_lshr_b32 s{sT+1}, s{sT}, 4
            s_and_b32 s{sT}, s{sT}, 15
            s_lshl_b32 s{sT}, s{sT}, 6
            s_cmp_ge_u32 s{sT+1}, 256
            s_cbranch_scc1 {lwd}
            s_lshl_b32 s{sT+1}, s{sT+1}, 14
            s_add_u32 s{sT}, s{sT}, s{sT+1}
            """)
            for S_ in (24, 28):
                if S_ == 28:
                    A.label(lwd)
                    A(f"s_sub_u32 s{sT+1}, s{sT+1}, 256")
                    A(f"s_lshl_b32 s{sT+1}, s{sT+1}, 14")
                    A(f"s_add_u32 s{sT}, s{sT}, s{sT+1}")
                for j in range(8):
                    va = 2 if j < 4 else 3
                    A(f"buffer_load_ushort v{R + j}, v{va}, s[{S_}:{S_+3}], s{sT} offen offset:{(j & 3)*1024}")
                if S_ == 24: A(f"s_branch {lj}")
            A.label(lj)

        srd(A, S_KF, 4, 5, 16*1024*1024, WS_KF)
        srd(A, S_VF, 4, 5, 16*1024*1024, WS_VF)
    A(f"v_mov_b32 v4, 0")
    A(f"v_mov_b32 v5, 1")
    A("s_waitcnt vmcnt(21)")
    A("s_barrier")
    for r in greads(0): A(r)
    for st in range(16):
        if st > 0:
            n_out = 5 if st < 14 else (0 if st == 14 else None)
            if st == 1: n_out = 21
            if n_out is not None:
                A(f"s_waitcnt vmcnt({n_out})")
                A("s_barrier")
        if st == 2:
            lsk = A.newlabel("p2_ns")
            A(f"s_cmp_lg_u32 s{sW}, 7")
            A(f"s_cbranch_scc1 {lsk}")
            A(f"s_or_b32 s{sT+4}, s{sXCC}, 0x20")
            state_store(sT+4, 5, 4)
            A.label(lsk)
        pcs = gpieces(st + 3) if st + 3 < 16 else []
        if st == 14:
            state_load()
            relayout_loads()
        for kp in range(2):
            ks = 2*st + kp
            fr = FR[ks & 1]
            nxt = greads(ks + 1) if ks + 1 < 32 else []
            idx = 0
            prev_need = 0
            for (acc, sub, xi, need) in MF:
                if need > prev_need:
                    A(f"s_waitcnt lgkmcnt({min((10 - need) + idx, 15)})")
                    prev_need = need
                d = ACC + acc*16
                mfma(A, d, fr + sub*4, fr + 12 + xi*4, None if ks == 0 else d)
                for _ in range(2 if acc in (0, 1) else 1):
                    if idx < len(nxt):
                        A(nxt[idx]); idx += 1
                if pcs and (kp*8 + acc) % 3 == 1:
                    for l in pcs.pop(0): A(l)
        assert not pcs
    stamp(A, 4)
    A(f"""
    s_waitcnt vmcnt(24)
    s_barrier
    v_mov_b32 v14, 0
    """)
    A(f"""
    s_mul_i32 s{sT}, s{sG}, {3 if MIRROR else 0}
    s_xor_b32 s{sWR}, s{sWR}, s{sT}
    s_lshl_b32 s{sT}, s{sG}, 1
    s_sub_u32 s{sNIT}, s{sWR}, s{sT}
    s_add_u32 s{sNIT}, s{sNIT}, 1
    s_lshl_b32 s{sHB}, s{sH}, 19
    s_lshl_b32 s{sT}, s{sW}, 12
    s_add_u32 s{sHB}, s{sHB}, s{sT}
    s_lshl_b32 s{sM0}, s{sW}, 12
    s_mov_b32 s{sKJ}, 0
    s_mov_b32 s{sVJ}, 0
    s_mov_b32 s{sKN}, s{sHB}
    s_mov_b32 s{sVN}, s{sHB}
    s_mov_b32 s{sM0K}, s{sM0}
    s_add_u32 s{sM0V}, s{sM0}, 65536
    """)
    sDS = 72
    def kv_issue(isV, defer=False):
        sJ = sVJ if isV else sKJ
        sN = sVN if isV else sKN
        sMM = sM0V if isV else sM0K
        S = S_VF if isV else S_KF
        sD = sDS + (1 if isV else 0)
        SL = [f"s_mov_b32 m0, s{sMM}", f"s_mov_b32 s{sD}, s{sN}", f"s_xor_b32 s{sMM}, s{sMM}, 32768",
              f"s_add_u32 s{sN}, s{sN}, 32768", f"s_cmp_eq_u32 s{sJ}, s{sB0}", f"s_cselect_b32 s{sN}, s{sHB}, s{sN}",
              f"s_add_u32 s{sJ}, s{sJ}, 1"]
        L = [f"buffer_load_dwordx4 v{vL16}, s[{S}:{S+3}], s{sD} offen offset:{q*1024} lds" for q in range(4)]
        if defer: return SL, L
        for l in SL: A(l)
        for l in L: A(l)
    state_wait(1)
    kv_issue(False)
    kv_issue(True)
    kv_issue(False)
    T = 200
    A(f"v_mov_b32 v{T+16}, {f32hex(QSCALE)}")
    A(f"""
    s_lshl_b32 s{sT}, s{sP}, 14                   ; 2p*8192
    s_lshl_b32 s{sT+1}, s{sC}, 11                 ; 2c*1024
    s_add_u32 s{sT}, s{sT}, s{sT+1}
    s_add_u32 s{sT}, s{sT}, {96*1024}
    v_add_u32 v6, s{sT}, v{vL16}
    """)
    for qi in range(4):
        d = ACC + (4+qi)*16
        for r in range(0, 16, 2):
            A(f"v_pk_mul_f32 {v(d+r,2)}, {v(d+r,2)}, {v(T+16,2)} op_sel_hi:[1,0]")
        p = T + (qi & 1)*8
        for i in range(8):
            A(f"v_cvt_pk_bf16_f32 v{p+i}, v{d+2*i}, v{d+2*i+1}")
        xb_off = [0, 8192, 32768, 40960][qi]
        A(f"ds_write_b128 v6, {v(p,4)} offset:{xb_off}")
        A(f"ds_write_b128 v6, {v(p+4,4)} offset:{xb_off+1024}")
    A("s_waitcnt lgkmcnt(0)")
    A(f"v_mov_b32 v{T+8}, {f32hex(GC1)}")
    A(f"v_mov_b32 v{T+9}, {f32hex(GC2)}")
    A(f"v_mov_b32 v{T+10}, 1.0")
    A(f"""
    s_lshl_b32 s{sT}, s{sRBF}, 2
    s_lshl_b32 s{sT+1}, s{sP}, 1
    s_add_u32 s{sT}, s{sT}, s{sT+1}
    s_mul_i32 s{sT}, s{sT}, {112*1024}
    s_lshl_b32 s{sT+1}, s{sFT}, 13
    s_add_u32 s{sT}, s{sT}, s{sT+1}
    s_lshl_b32 s{sT+1}, s{sC}, 11
    s_add_u32 s{sT}, s{sT}, s{sT+1}
    s_cmp_lt_u32 s{sH}, 28
    s_cselect_b32 s{sT}, s{sT}, 0x7ff00000
    """)
    for j in range(2):
        g0 = ACC + j*16
        u0 = ACC + (2+j)*16
        for r0 in range(0, 16, 8):
            prs = [(g0 + r, u0 + r, T + 12 + (r - r0)) for r in range(r0, r0 + 8, 2)]
            for x, u, t in prs: A(f"v_pk_mul_f32 {v(t,2)}, {v(x,2)}, {v(x,2)}")
            for x, u, t in prs: A(f"v_pk_fma_f32 {v(t,2)}, {v(t,2)}, {v(T+8,2)}, {v(T+8,2)} op_sel:[0,1,0] op_sel_hi:[1,1,0]")
            for x, u, t in prs: A(f"v_pk_mul_f32 {v(t,2)}, {v(t,2)}, {v(x,2)}")
            for x, u, t in prs:
                A(f"v_exp_f32 v{t}, v{t}"); A(f"v_exp_f32 v{t+1}, v{t+1}")
            for x, u, t in prs: A(f"v_pk_mul_f32 {v(x,2)}, {v(x,2)}, {v(u,2)}")
            for x, u, t in prs: A(f"v_pk_add_f32 {v(t,2)}, {v(t,2)}, {v(T+10,2)} op_sel_hi:[1,0]")
            for x, u, t in prs:
                A(f"v_rcp_f32 v{t}, v{t}"); A(f"v_rcp_f32 v{t+1}, v{t+1}")
            A("s_nop 0")
            for x, u, t in prs: A(f"v_pk_mul_f32 {v(x,2)}, {v(x,2)}, {v(t,2)}")
        p = T
        for i in range(8):
            A(f"v_cvt_pk_bf16_f32 v{p+i}, v{g0+2*i}, v{g0+2*i+1}")
        A(f"buffer_store_dwordx4 {v(p,4)}, v{vL16}, s[{S_H}:{S_H+3}], s{sT} offen")
        A(f"buffer_store_dwordx4 {v(p+4,4)}, v{vL16}, s[{S_H}:{S_H+3}], s{sT} offen offset:1024")
        if j == 0:
            A(f"s_add_u32 s{sT}, s{sT}, {112*1024}")
    stamp(A, 5)
    srd(A, 12, 4, 5, 5888*1024, WS_WF)
    A(f"""
    s_lshl_b32 s{sT}, s{sBLK}, 10
    s_add_u32 s{sT+1}, s{sT}, 2048
    s_cmp_eq_u32 s{sW}, 7
    s_cselect_b32 s{sT+1}, 0x7ff00000, s{sT+1}
    s_waitcnt vmcnt(16)
    """)
    for q in range(12):
        A(f"v_lshl_or_b32 v{32+q}, v{221+2*q}, 16, v{220+2*q}")
    A(f"""
    buffer_store_dwordx4 v[32:35], v{vL16}, s[12:15], s{sT} offen
    buffer_store_dwordx4 v[36:39], v{vL16}, s[12:15], s{sT} offen offset:1024
    buffer_store_dwordx4 v[40:43], v{vL16}, s[12:15], s{sT+1} offen
    """)
    srd(A, 12, 4, 5, 72*128, WS_SYNC)
    A(f"""
    v_mov_b32 v44, 0
    v_lshlrev_b32 v45, 2, v0
    s_lshl_b32 s{sT}, s2, 7
    s_cmp_eq_u32 s{sW}, 0
    s_cselect_b32 s{sT}, s{sT}, 0x7ff00000
    s_mov_b64 exec, 0xffffffff
    buffer_store_dword v44, v45, s[12:15], s{sT} offen
    s_mov_b64 exec, -1
    """)
    vKA, vVA, vL, vM, vTMP, vD = 2, 3, 4, 5, 6, 7
    F = 8; Q = 40; Q2 = 72; S = 104; NM = 136; P = 152; O = 168; T = 232
    A(f"""
    s_waitcnt lgkmcnt(0)
    s_barrier
    s_cmp_eq_u32 s{sRBF}, s{sB0}
    s_cselect_b32 s{sT}, 0, 32768
    s_cselect_b32 s{sT+1}, 32768, 0
    s_lshl_b32 s{sT+2}, s{sWR}, 13
    s_add_u32 s{sT+2}, s{sT+2}, {96*1024}
    s_add_u32 s{sT}, s{sT}, s{sT+2}
    s_add_u32 s{sT+1}, s{sT+1}, s{sT+2}
    v_add_u32 v{vTMP}, s{sT}, v{vL16}
    v_add_u32 v{vD}, s{sT+1}, v{vL16}
    """)
    for ks in range(8):
        A(f"ds_read_b128 {v(Q+4*ks,4)}, v{vTMP} offset:{ks*1024}")
    for ks in range(8):
        A(f"ds_read_b128 {v(Q2+4*ks,4)}, v{vD} offset:{ks*1024}")
    A(f"""
    s_waitcnt lgkmcnt(0)
    v_and_b32 v{vD}, 31, v0
    v_lshrrev_b32 v{vTMP}, 5, v0
    v_lshlrev_b32 v{vTMP}, 2, v{vTMP}
    v_sub_u32 v{vD}, v{vD}, v{vTMP}
    s_lshl_b32 s{sT}, s{sWR}, 5
    s_lshl_b32 s{sT+1}, s{sG}, 6
    s_sub_u32 s{sT}, s{sT}, s{sT+1}
    v_add_u32 v{vD}, s{sT}, v{vD}
    s_mov_b32 s{sPASS}, 0
    s_mov_b32 s{sBLK}, s{sB0}
    s_lshl_b32 s{sT}, s{sG}, 14
    v_add_u32 v{vKA}, s{sT}, v{vL16}              ; K(0) slot 0
    s_add_u32 s{sT}, s{sT}, {65536+32768}
    v_add_u32 v{vVA}, s{sT}, v{vL16}
    """)
    A("s_waitcnt vmcnt(8)")
    A("s_barrier")

    def mask_ops(kb):
        L = []
        for r0 in range(0, 16, 4):
            for j in range(4):
                r = r0 + j
                c = 32*kb + 8*(r >> 2) + (r & 3)
                L.append(f"v_cmp_gt_i32 s[{sMK+2*j}:{sMK+2*j+1}], {c}, v{vD}")
            for j in range(4):
                r = r0 + j
                L.append(f"v_cndmask_b32 v{S+16*kb+r}, v{S+16*kb+r}, v{T+15}, s[{sMK+2*j}:{sMK+2*j+1}]")
        return L
    def max_ops(kb, dst):
        x = S + 16*kb
        L = [f"v_max3_f32 v{dst}, v{x}, v{x+1}, v{x+2}"]
        for r in range(3, 15, 2):
            L.append(f"v_max3_f32 v{dst}, v{dst}, v{x+r}, v{x+r+1}")
        L.append(f"v_max_f32 v{dst}, v{dst}, v{x+15}")
        L.append(f"v_mov_b32 v{dst+1}, v{dst}")
        L.append("s_nop 1")
        L.append(f"v_permlane32_swap_b32 v{dst}, v{dst+1}")
        L.append("s_nop 1")
        L.append(f"v_max_f32 v{dst}, v{dst}, v{dst+1}")
        return L
    LS = [T+12, vL]
    def sm_ops(kb):
        x = S + 16*kb
        src, dst, t1 = LS[1-kb], LS[kb], T+kb
        L = []
        for r in range(0, 16, 2):
            L.append(f"v_exp_f32 v{x+r}, v{x+r}")
            L.append(f"v_exp_f32 v{x+r+1}, v{x+r+1}")
            if r >= 2:
                q = r - 2
                if q == 0:
                    L.append(f"v_add_f32 v{dst}, v{src}, v{x}")
                    L.append(f"v_cvt_pk_bf16_f32 v{P+8*kb}, v{x}, v{x+1}")
                elif q == 2:
                    L.append(f"v_add_f32 v{dst}, v{dst}, v{x+q}")
                    L.append(f"v_add_f32 v{t1}, v{x+1}, v{x+q+1}")
                    L.append(f"v_cvt_pk_bf16_f32 v{P+8*kb+q//2}, v{x+q}, v{x+q+1}")
                else:
                    L.append(f"v_add_f32 v{dst}, v{dst}, v{x+q}")
                    L.append(f"v_add_f32 v{t1}, v{t1}, v{x+q+1}")
                    L.append(f"v_cvt_pk_bf16_f32 v{P+8*kb+q//2}, v{x+q}, v{x+q+1}")
        L.append(f"v_add_f32 v{dst}, v{dst}, v{x+14}")
        L.append(f"v_add_f32 v{t1}, v{t1}, v{x+15}")
        L.append(f"v_cvt_pk_bf16_f32 v{P+8*kb+7}, v{x+14}, v{x+15}")
        L.append(f"v_add_f32 v{dst}, v{dst}, v{t1}")
        return L
    rescues = []
    def check(kb, masked, it_back):
        lr = A.newlabel("resc"); lb = A.newlabel("back")
        A(f"v_cmp_nle_f32 vcc, v{LS[kb]}, v{T+14}")
        A(f"s_cbranch_vccnz {lr}")
        A.label(lb)
        rescues.append((lr, lb, kb, masked, it_back))
    def emit_rescue(lr, lb, kb, masked, it_back):
        A.label(lr)
        A("s_nop 15")
        A("s_nop 15")
        A(f"""
        s_sub_u32 s{sT}, s{sIT}, {it_back}
        s_lshl_b32 s{sT}, s{sT}, 1
        s_add_u32 s{sT}, s{sT}, s{sG}
        s_lshl_b32 s{sT}, s{sT}, 14
        s_lshl_b32 s{sT+1}, s{sH}, 19
        s_add_u32 s{sT}, s{sT}, s{sT+1}
        s_add_u32 s{sT}, s{sT}, {kb*8192}
        s_add_u32 s{sT+1}, s{sT}, 4096
        """)
        for ks in range(8):
            so = sT if ks < 4 else sT+1
            A(f"buffer_load_dwordx4 {v(T+4,4)}, v{vL16}, s[{S_KF}:{S_KF+3}], s{so} offen offset:{(ks&3)*1024}")
            A("s_waitcnt vmcnt(0)")
            mfma(A, S+16*kb, T+4, Q+4*ks, NM if ks == 0 else S+16*kb)
            A("s_nop 7")
        A("s_nop 15")
        if masked:
            for op in mask_ops(kb): A(op)
        for op in max_ops(kb, T+2): A(op)
        A(f"v_max_f32 v{T+2}, 0, v{T+2}")
        A(f"v_sub_f32 v{T+3}, 0, v{T+2}")
        A(f"v_exp_f32 v{T+3}, v{T+3}")
        for r in range(16):
            A(f"v_sub_f32 v{NM+r}, v{NM+r}, v{T+2}")
        for r in range(32):
            A(f"v_sub_f32 v{S+r}, v{S+r}, v{T+2}")
        for r in range(64):
            A(f"v_mul_f32 v{O+r}, v{O+r}, v{T+3}")
        A(f"v_mul_f32 v{LS[1-kb]}, v{LS[1-kb]}, v{T+3}")
        for op in sm_ops(kb): A(op)
        A("s_nop 1")
        A(f"s_branch {lb}")

    def ph_items(ph):
        L = []
        for i in range(8):
            if ph in ("A", "C"):
                kb = 0 if ph == "A" else 1
                rd = (vKA, kb*8192 + i*1024)
                d = S + 16*kb
                mf = (d, Q + 4*i, NM if i == 0 else d)
            else:
                kk = (2 if ph == "B" else 0) + (i >> 2); db = i & 3
                rd = (vVA, (kk >> 1)*8192 + db*2048 + (kk & 1)*1024)
                d = O + 16*db
                mf = (d, P + 4*kk, d)
            L.append((rd, mf))
        return L
    def rd_line(rd, slot):
        return f"ds_read_b128 {v(F+4*slot,4)}, v{rd[0]} offset:{rd[1]}"

    def stream(phases, nxt_phase, pre, fills, extras, post, skip=None):
        items = []
        for ph in phases: items += [(ph, i, it) for i, it in enumerate(ph_items(ph))]
        tail_items = ph_items(nxt_phase)[:4] if nxt_phase else []
        allrd = [it[2][0] for it in items] + [t[0] for t in tail_items]
        n = len(items)
        fq = {}
        for ph in phases:
            st, lines = fills.get(ph, (0, []))
            slots = 8 - st
            per = [len(lines)//slots + (1 if k < len(lines) % slots else 0) for k in range(slots)]
            k = 0
            for i in range(st, 8):
                fq[(ph, i)] = lines[k:k+per[i-st]]; k += per[i-st]
        for idx, (ph, i, (rd, mf)) in enumerate(items):
            if i == 0:
                for l in pre.get(ph, []):
                    if callable(l): l()
                    else: A(l)
            if idx % 4 == 0:
                A("s_waitcnt lgkmcnt(0)")
            d, b_, c = mf
            lsk = None
            if skip and ph in skip:
                lsk = A.newlabel("msk")
                A(f"s_cmp_lt_i32 s{sNIT}, {skip[ph]}")
                A(f"s_cbranch_scc1 {lsk}")
            A(f"v_mfma_f32_32x32x16_bf16 {v(d,16)}, {v(F+4*(idx&7),4)}, {v(b_,4)}, {v(c,16)}")
            if lsk: A.label(lsk)
            if idx % 4 < 2:
                base = (idx & ~3) + 4 + (idx % 4)*2
                for j in (base, base+1):
                    if j < len(allrd): A(rd_line(allrd[j], j & 7))
            for l in extras.get(ph, {}).get(i, []): A(l)
            for l in fq.get((ph, i), []): A(l)
            if i == 7 and ph in post: post[ph]()

    def split_fill(L, n1, n2):
        k = (len(L) * n1) // (n1 + n2)
        return L[:k], L[k:]

    SM1_A, SM1_D = None, None
    def sm1_parts(first, last):
        L = []
        if first:
            L += [f"v_sub_f32 v{NM+r}, 0, v{T+2}" for r in range(16)]
            L += [f"v_sub_f32 v{S+16+r}, v{S+16+r}, v{T+2}" for r in range(16)]
        if last: L += mask_ops(1)
        pre = len(L)
        sm = sm_ops(1)
        k = 18
        return L + sm[:k], sm[k:]

    def iteration(first, last):
        dm = {}
        slV, dm["V"] = kv_issue(True, defer=True)
        slK, dm["K"] = kv_issue(False, defer=True) if not last else ([], [])
        dm["preY"] = slV + [f"v_xor_b32 v{vVA}, 0x8000, v{vVA}"]
        dm["preX"] = slK + [f"v_xor_b32 v{vKA}, 0x8000, v{vKA}"]
        def barY():
            A("s_waitcnt vmcnt(4)")
            A("s_barrier")
        def barX():
            A("s_waitcnt vmcnt(4)")
            A("s_barrier")
        sm0 = []
        if last: sm0 += mask_ops(0)
        if first:
            sm0 += max_ops(0, T+2)
            sm0 += [f"v_max_f32 v{T+2}, v{T+13}, v{T+2}"]
            sm0 += [f"v_sub_f32 v{S+r}, v{S+r}, v{T+2}" for r in range(16)]
        sm0 += sm_ops(0)
        d_part, _ = sm1_parts(first, last)
        _, a_part = sm1_parts(False, False)
        class Lazy(dict):
            pass
        def dma(kind, q):
            return lambda: (A(dm[kind][q]) if dm.get(kind) else None)
        phases = ["A", "C", "D"] if first else ["A", "B", "C", "D"]
        fills = {}
        if first:
            fills["C"] = (2, sm0)
        else:
            b_part, c_part = split_fill(sm0, 6, 8)
            fills["A"] = (0, a_part)
            fills["B"] = (2, b_part)
            fills["C"] = (0, c_part)
        fills["D"] = (2, d_part)
        pre = {"C": [barY], "D": [barX]}
        post = {"C": lambda: check(0, last, 0)}
        if not first:
            post["A"] = lambda: check(1, False, 1)
        return phases, pre, fills, post, dm

    def emit_iteration(first, last):
        phases, pre, fills, post, dm = iteration(first, last)
        class Ex(dict):
            def get(self, ph, default=None):
                ex = {}
                if ph == "C": ex = {1: [dm["V"][0]], 2: [dm["V"][1]], 3: [dm["V"][2]], 4: [dm["V"][3]]}
                if ph == "D" and dm.get("K"): ex = {1: [dm["K"][0]], 3: [dm["K"][1]], 5: [dm["K"][2]], 7: [dm["K"][3]]}
                if ph == ("A" if first else "B"):
                    ex.setdefault(6, []); ex[6] = ex[6] + dm["preY"]
                if ph == "C":
                    ex.setdefault(6, []); ex[6] = ex[6] + dm["preX"]
                return ex
        stream(phases, "B" if last else "A", pre, fills, Ex(), post, skip=({"A": 1, "C": 2, "D": 1} if last and DIAGSKIP else None))
        if last:
            _, a_part = sm1_parts(False, False)
            for l in a_part: A(l)
            check(1, True, 0)
            A("s_nop 0")
            stream(["B"], None, {}, {}, {}, {}, skip=({"B": 2} if DIAGSKIP else None))

    blk_top = A.newlabel("blk_top")
    A.label(blk_top)
    def astamp(k):
        if not (gen.STAMPS and ATT): return
        l = A.newlabel("ast")
        A(f"s_cmp_lg_u32 s{sPASS}, 0")
        A(f"s_cbranch_scc1 {l}")
        A(f"s_memtime s[{80+2*k}:{81+2*k}]")
        A.label(l)
    astamp(0)
    for r in range(0, 64, 2): A(f"v_mov_b64 {v(O+r,2)}, 0")
    for r in range(0, 16, 2): A(f"v_mov_b64 {v(NM+r,2)}, 0")
    A(f"""
    v_mov_b32 v{vL}, 0
    v_mov_b32 v{T+13}, {f32hex(MFLOOR)}
    v_mov_b32 v{T+14}, {f32hex(BIGL)}
    v_mov_b32 v{T+15}, {f32hex(NEGBIG)}
    s_mov_b32 s{sIT}, 0
    """)
    for i in range(4): A(rd_line(ph_items("A")[i][0], i))
    l_only = A.newlabel("only"); l_mid = A.newlabel("mid"); l_last = A.newlabel("last"); l_merge = A.newlabel("merge")
    A(f"s_cmp_eq_u32 s{sBLK}, 0")
    A(f"s_cbranch_scc1 {l_only}")
    astamp(1)
    emit_iteration(True, False)
    astamp(2)
    A(f"s_mov_b32 s{sIT}, 1")
    A(f"s_cmp_ge_u32 s{sIT}, s{sBLK}")
    A(f"s_cbranch_scc1 {l_last}")
    A.label(l_mid)
    emit_iteration(False, False)
    A(f"s_add_u32 s{sIT}, s{sIT}, 1")
    A(f"s_cmp_lt_u32 s{sIT}, s{sBLK}")
    A(f"s_cbranch_scc1 {l_mid}")
    A.label(l_last)
    astamp(3)
    emit_iteration(False, True)
    A(f"s_branch {l_merge}")
    A.label(l_only)
    emit_iteration(True, True)
    A.label(l_merge)
    astamp(4)
    A(f"""
    v_mov_b32 v{T}, v{vL}
    s_nop 1
    v_permlane32_swap_b32 v{vL}, v{T}
    s_nop 1
    v_add_f32 v{vL}, v{vL}, v{T}
    s_barrier
    s_and_b32 s{sT}, s{sM0K}, 32768
    s_xor_b32 s{sT+1}, s{sM0V}, 32768
    s_and_b32 s{sT+1}, s{sT+1}, {65536+32768}
    s_xor_b32 s{sT+1}, s{sT+1}, 32768
    s_cmp_eq_u32 s{sG}, 0
    s_cselect_b32 s{sT+2}, s{sT}, s{sT+1}
    s_cselect_b32 s{sT+3}, s{sT+1}, s{sT}
    s_lshl_b32 s{sT}, s{sWR}, 13
    s_add_u32 s{sT+2}, s{sT+2}, s{sT}
    s_add_u32 s{sT+3}, s{sT+3}, s{sT}
    v_add_u32 v{T+2}, s{sT+2}, v{vL16}
    v_add_u32 v{T+3}, s{sT+3}, v{vL16}
    v_lshlrev_b32 v{T+4}, 3, v0                  ; lane*8
    s_lshl_b32 s{sT}, s{sG}, 2
    s_add_u32 s{sT}, s{sT}, s{sWR}
    s_lshl_b32 s{sT}, s{sT}, 9
    s_add_u32 s{sT}, s{sT}, 131072
    v_add_u32 v{T+5}, s{sT}, v{T+4}
    s_xor_b32 s{sT}, s{sT}, 2048
    v_add_u32 v{T+4}, s{sT}, v{T+4}
    v_mov_b32 v{T+6}, v{NM}
    v_mov_b32 v{T+7}, v{vL}
    ds_write_b64 v{T+5}, {v(T+6,2)}
    """)
    lg1 = A.newlabel("mg1"); lgd = A.newlabel("mgd")
    A(f"s_cmp_eq_u32 s{sG}, 0")
    A(f"s_cbranch_scc0 {lg1}")
    for gsel in range(2):
        if gsel == 1: A.label(lg1)
        give = O + (32 if gsel == 0 else 0)
        keep = O + (0 if gsel == 0 else 32)
        for i in range(8):
            A(f"ds_write_b128 v{T+2}, {v(give+4*i,4)} offset:{i*1024}")
        A("s_waitcnt lgkmcnt(0)")
        A("s_barrier")
        A(f"ds_read_b64 {v(T+8,2)}, v{T+4}")
        for i in range(8):
            A(f"ds_read_b128 {v(give+4*i,4)}, v{T+3} offset:{i*1024}")
        A(f"""
        s_waitcnt lgkmcnt(8)
        v_min_f32 v{T+10}, v{NM}, v{T+8}          ; -M
        v_sub_f32 v{T+11}, v{T+10}, v{NM}         ; m_self - M
        v_sub_f32 v{T+12}, v{T+10}, v{T+8}        ; m_part - M
        v_exp_f32 v{T+11}, v{T+11}
        v_exp_f32 v{T+12}, v{T+12}
        s_nop 0
        v_mul_f32 v{T+10}, v{vL}, v{T+11}
        v_fmac_f32 v{T+10}, v{T+9}, v{T+12}       ; l_total
        v_rcp_f32 v{T+10}, v{T+10}
        s_nop 0
        v_mul_f32 v{T+11}, v{T+11}, v{T+10}
        v_mul_f32 v{T+12}, v{T+12}, v{T+10}
        s_waitcnt lgkmcnt(0)
        """)
        for r in range(0, 32, 2):
            A(f"v_pk_mul_f32 {v(keep+r,2)}, {v(keep+r,2)}, {v(T+10,2)} op_sel:[0,1] op_sel_hi:[1,1]")
            A(f"v_pk_fma_f32 {v(keep+r,2)}, {v(give+r,2)}, {v(T+12,2)}, {v(keep+r,2)} op_sel_hi:[1,0,1]")
        for i in range(16):
            A(f"v_cvt_pk_bf16_f32 v{S+i}, v{keep+2*i}, v{keep+2*i+1}")
        if gsel == 0: A(f"s_branch {lgd}")
    A.label(lgd)
    A("s_barrier")
    kv_issue(False)
    A(f"""
    s_lshl_b32 s{sT}, s{sBLK}, 2
    s_add_u32 s{sT}, s{sT}, s{sWR}
    s_lshl_b32 s{sT}, s{sT}, 18                  ; *256*1024
    s_lshl_b32 s{sT+1}, s{sH}, 13
    s_add_u32 s{sT}, s{sT}, s{sT+1}
    s_lshl_b32 s{sT+1}, s{sG}, 12
    s_add_u32 s{sT}, s{sT}, s{sT+1}
    """)
    for i in range(4):
        A(f"buffer_store_dwordx4 {v(S+4*i,4)}, v{vL16}, s[{S_CTX}:{S_CTX+3}], s{sT} offen offset:{i*1024}")
    stamp(A, 6)
    astamp(5)
    if ATT: A(f"s_mov_b32 s92, s{sBLK}")
    fin = A.newlabel("k2_fin")
    A(f"s_cmp_eq_u32 s{sPASS}, 1")
    A(f"s_cbranch_scc1 {fin}")
    A(f"s_mov_b32 s{sPASS}, 1")
    A(f"s_mov_b32 s{sBLK}, s{sI}")
    for r in range(0, 32, 2): A(f"v_mov_b64 {v(Q+r,2)}, {v(Q2+r,2)}")
    A(f"s_branch {blk_top}")
    for rr in rescues:
        emit_rescue(*rr)
    A.label(fin)
    if gen.STAMPS:
        A("s_waitcnt vmcnt(0)")
        stamp(A, 7); stamp(A, 9, True)
        stamp_flush(A, 10, 4, 5, sW, 0)
    A.label(done)
    A("s_endpgm")
    A.end_kernel(name, 248, 102)
    A.add_launch(name, 256, 512, 163840)
```

```python
import sys
import gen
from asmlib import *
from gen import *
import gen_main, gen_k3c
A = Asm()
if "stamps" in sys.argv: gen.STAMPS = True
if "nopretouch" in sys.argv: gen.PRETOUCH = False
if "slow" in sys.argv: gen_main.FORCE_SLOW = True
for a_ in sys.argv:
    if "=" in a_:
        k_, v_ = a_.split("=")
        setattr(gen_main, k_, int(v_))
if "clock" in sys.argv: gen.CLOCKMODE = {0: 0, 2: 1, 4: 2, 5: 3, 7: 4}
if "clock2" in sys.argv: gen.CLOCKMODE = {0: 0, 1: 1, 2: 2, 3: 3, 4: 4}
if gen_main.ATT: gen.COARSE = False
gen_main.gen_fused(A)
gen.COARSE = True
gen.CLOCKMODE = None
gen_k3c.SLOT = 1
gen_k3c.gen_k3(A)
A.label("code_end")
A("s_endpgm")
open(sys.argv[1], "w").write(A.text(HEADER))
```

```python
from asmlib import *
import gen
from gen import *
import math, struct
from gen_k2 import f32hex, LOG2E, QSCALE, GC1, GC2, BIGL, NEGBIG, MFLOOR

FORCE_SLOW = False
BULK = 2
ATT = 0
TOUCH2_ST = 13
MIRROR = 1
DIAGSKIP = 1
WNB = 4
LN_SIG = 3
XN_SC1 = 1
TOUCH_ST = 6
SPIN_MAX = 1 << 18
KV_SIGNAL_STAGE = 0

def gen_fused(A):
    name = "main_kernel"
    A.begin_kernel(name)
    done = A.newlabel("f_done")
    S_XN, S_WG, S_WU, S_WQ, S_KF, S_VF, S_H, S_CTX = 8, 12, 16, 20, 24, 28, 32, 36
    S_CKV, S_W, S_X, S_KVO = 24, 28, 32, 32
    S_DBG = 76
    sW, sH, sI, sP, sC, sG, sWR = 40, 41, 42, 43, 44, 45, 46
    sSX, sSWF, sSWQ, sM0 = 47, 48, 49, 50
    sFT, sRBF, sRBO = 51, 52, 53
    sBLK, sIT, sNIT = 54, 55, 56
    sKN, sVN = 57, 58
    sM0K, sM0V = 59, 60
    sHB = 61
    sPASS = 62
    sKJ, sVJ = 63, 64
    sB0 = 65
    sT = 66
    sMK = 12
    sSX1, sSW1, sM0X, sM0W = 54, 55, 56, 57
    sWM, sWN = sG, sWR
    A(f"""
    s_cmp_ge_u32 s2, 256
    s_cbranch_scc1 {done}
    s_load_dwordx8 s[56:63], s[0:1], {KA_X}
    s_load_dwordx4 s[64:67], s[0:1], {KA_WUV}
    s_load_dwordx4 s[68:71], s[0:1], {KA_WG}
    s_load_dwordx2 s[100:101], s[0:1], {KA_WD}
    s_load_dwordx4 s[72:75], s[0:1], {KA_DBG}
    s_getpc_b64 s[76:77]
code_here:
    s_lshr_b32 s3, s2, 3
    s_lshl_b32 s3, s3, 11
    v_lshlrev_b32 v247, 7, v0
    v_add_u32 v247, s3, v247
    v_min_u32 v247, code_end - code_here - 4, v247
    v_cmp_gt_u32 vcc, 16, v0
    s_and_saveexec_b64 s[78:79], vcc
    s_cbranch_execz code_skip
    global_load_dword v247, v247, s[76:77]
code_skip:
    s_mov_b64 exec, -1
    v_lshrrev_b32 v1, 6, v0
    v_and_b32 v0, 63, v0
    v_readfirstlane_b32 s{sW}, v1
    s_and_b32 s{sH}, s2, 7
    s_lshl_b32 s{sH}, s{sH}, 2
    s_lshr_b32 s{sI}, s2, 3
    s_and_b32 s{sI}, s{sI}, 3
    s_add_u32 s{sH}, s{sH}, s{sI}                ; head
    s_lshr_b32 s{sI}, s2, 5
    s_and_b32 s{sP}, s{sW}, 1
    s_lshr_b32 s{sC}, s{sW}, 1
    s_lshr_b32 s{sG}, s{sW}, 2
    s_and_b32 s{sWR}, s{sW}, 3
    v_lshlrev_b32 v1, 4, v0
    s_waitcnt lgkmcnt(0)
    s_mov_b32 s4, s74
    s_mov_b32 s5, s75
    s_mov_b32 s6, s66
    s_mov_b32 s7, s67
    """)
    vL16 = 1
    stamp(A, 0); stamp(A, 8, True)
    srd(A, S_X, 56, 57, 2048*1024)
    srd(A, S_CKV, 58, 59, 2048*1024)
    srd(A, S_WQ, 60, 61, 512*8192)
    A(f"""
    s_cmp_lt_u32 s{sW}, 4
    s_cselect_b32 s{S_W}, s62, s64
    s_cselect_b32 s{S_W+1}, s63, s65
    s_mov_b32 s{S_W+2}, {512*8192:#x}
    s_mov_b32 s{S_W+3}, 0x00020000
    """)
    srd(A, 36, 62, 63, 512*8192)
    srd(A, 60, 64, 65, 512*8192)
    srd(A, S_WG, 68, 69, 512*3584)
    srd(A, S_WU, 70, 71, 512*3584)
    srd(A, S_DBG, 72, 73, 256)
    sGRP, sXCC, sSLOW = 3, 74, 75
    srd(A, S_XN, 4, 5, 2048*1024, WS_XN)
    sROW = 58
    vLN = 200
    A(f"""
    s_and_b32 s{sGRP}, s2, 7
    s_sub_u32 s{sB0}, 15, s{sI}
    s_getreg_b32 s{sXCC}, hwreg(HW_REG_XCC_ID)
    s_and_b32 s{sXCC}, s{sXCC}, 7
    s_or_b32 s{sXCC}, s{sXCC}, 0x10
    s_cmp_lt_u32 s{sH}, 16
    s_cselect_b32 s{sROW}, s{sI}, s{sB0}
    s_lshl_b32 s{sROW}, s{sROW}, 7
    s_and_b32 s{sT}, s{sH}, 15
    s_lshl_b32 s{sT}, s{sT}, 3
    s_add_u32 s{sROW}, s{sROW}, s{sT}
    s_add_u32 s{sROW}, s{sROW}, s{sW}
    s_lshl_b32 s{sT+1}, s{sROW}, 10
    s_lshl_b32 s{sT}, s{sW}, 10
    s_add_u32 m0, s{sT}, 0xc000
    v_add_u32 v{vLN+4}, 0xc000, v{vL16}
    v_add_u32 v{vLN+4}, s{sT}, v{vLN+4}
    buffer_load_dwordx4 v{vL16}, s[{S_X}:{S_X+3}], s{sT+1} offen lds
    """)
    A("v_mov_b32 v14, 0")
    A("v_mov_b32 v15, 1")
    A(f"""
    s_cmp_lt_u32 s{sH}, 14
    s_cselect_b32 s{sRBF}, s{sI}, s{sB0}
    s_cselect_b32 s{sRBO}, s{sB0}, s{sI}
    s_sub_u32 s{sFT}, s{sH}, 14
    s_cselect_b32 s{sFT}, s{sH}, s{sFT}
    s_cmp_ge_u32 s{sFT}, 14
    s_cselect_b32 s{sFT}, 0, s{sFT}
    """)
    vDX, vDX2, vDW, vDW2 = 2, 3, 4, 5
    A(f"""
    v_lshrrev_b32 v6, 2, v0
    v_lshlrev_b32 v6, 10, v6
    v_lshrrev_b32 v7, 4, v0
    v_and_b32 v8, 3, v0
    v_xor_b32 v8, v8, v7
    v_lshlrev_b32 v8, 4, v8
    v_add_u32 v{vDX}, v6, v8
    v_add_u32 v{vDX2}, {16*1024-1024}, v{vDX}
    v_lshlrev_b32 v6, 13, v7
    v_and_b32 v8, 15, v0
    v_lshlrev_b32 v9, 2, v7
    v_xor_b32 v8, v8, v9
    v_lshlrev_b32 v8, 4, v8
    v_add_u32 v{vDW}, v6, v8
    v_add_u32 v{vDW2}, {32768-1024}, v{vDW}
    s_lshl_b32 s{sT}, s{sG}, 1
    s_add_u32 s{sT}, s{sT}, s{sP}
    s_lshl_b32 s{sSX1}, s{sI}, 18
    s_lshl_b32 s{sT+2}, s{sT}, 16                 ; q*64 rows*1024
    s_add_u32 s{sSX1}, s{sSX1}, s{sT+2}
    s_lshl_b32 s{sSW1}, s{sP}, 17                 ; (q&1)*16 rows*8192
    s_lshl_b32 s{sT+2}, s{sH}, 8
    s_add_u32 s{sSW1}, s{sSW1}, s{sT+2}
    s_lshl_b32 s{sM0X}, s{sT}, 12                 ; q*4096
    s_add_u32 s{sM0W}, s{sM0X}, 0x10000
    """)
    def xpieces(st):
        buf = st & 3
        L = []
        for a_ in range(2):
            L += [[f"s_add_u32 m0, s{sM0X}, {buf*16384 + a_*2048}", f"s_add_u32 s{sT+2}, s{sSX1}, {st*64 + a_*32768}",
                   f"buffer_load_dwordx4 v{vDX}, s[{S_CKV}:{S_CKV+3}], s{sT+2} offen lds"],
                  [f"buffer_load_dwordx4 v{vDX2}, s[{S_CKV}:{S_CKV+3}], s{sT+2} offen offset:1024 lds"]]
        return L
    def wpieces(st):
        buf = st % WNB
        L = []
        for a_ in range(2):
            L += [[f"s_add_u32 m0, s{sM0W}, {buf*16384 + a_*2048}", f"s_add_u32 s{sT+3}, s{sSW1}, {st*32*8192 + a_*65536}",
                   f"buffer_load_dwordx4 v{vDW}, s[{S_W}:{S_W+3}], s{sT+3} offen lds"],
                  [f"buffer_load_dwordx4 v{vDW2}, s[{S_W}:{S_W+3}], s{sT+3} offen offset:1024 lds"]]
        return L
    WLA = WNB - 1
    LA = [3, WLA]
    PF = [xpieces, wpieces]
    lpw = A.newlabel("p1_prow"); lpj = A.newlabel("p1_proj")
    A(f"s_cmp_ge_u32 s{sWN}, 2")
    A(f"s_cbranch_scc1 {lpw}")
    for ver in range(2):
        if ver: A.label(lpw)
        for st in range(LA[ver]):
            for p in PF[ver](st):
                for l in p: A(l)
        if not ver: A(f"s_branch {lpj}")
    A.label(lpj)
    def issue0(ver):
        return [("d", st) for st in range(LA[ver]) for _ in range(4)] + [("o", 0)] * ((3 if BULK else 0) + 2)
    def allowed(log, need):
        last = max(i for i, (k, st_) in enumerate(log) if k == "d" and st_ == need)
        return len(log) - 1 - last
    if BULK == 2:
        A(f"""
        s_lshl_b32 s{sT}, s2, 3
        s_add_u32 s{sT}, s{sT}, s{sW}
        s_lshl_b32 s{sT+1}, s{sT}, 10
        s_lshl_b32 s{sT}, s{sT}, 11
        v_lshlrev_b32 v6, 7, v0
        s_mov_b64 exec, 0xff
        buffer_load_dword v9, v6, s[{S_CKV}:{S_CKV+3}], s{sT+1} offen
        s_mov_b64 exec, 0xffff
        buffer_load_dword v9, v6, s[36:39], s{sT} offen
        buffer_load_dword v9, v6, s[60:63], s{sT} offen
        s_mov_b64 exec, -1
        """)
    if BULK == 1:
        A(f"""
        s_lshr_b32 s{sT}, s2, 3
        s_lshl_b32 s{sT}, s{sT}, 3
        s_add_u32 s{sT}, s{sT}, s{sW}
        s_lshl_b32 s{sT+1}, s{sT}, 13
        v_lshlrev_b32 v6, 7, v0
        buffer_load_dword v9, v6, s[{S_CKV}:{S_CKV+3}], s{sT+1} offen
        v_and_b32 v6, 7, v0
        v_lshlrev_b32 v6, 7, v6
        v_bfe_u32 v7, v0, 3, 1
        v_lshlrev_b32 v7, 13, v7
        v_add_u32 v6, v6, v7
        s_lshl_b32 s{sT+1}, s{sT}, 14
        s_lshl_b32 s{sT}, s{sGRP}, 10
        s_add_u32 s{sT+1}, s{sT+1}, s{sT}
        s_mov_b64 exec, 0xffff
        buffer_load_dword v9, v6, s[36:39], s{sT+1} offen
        buffer_load_dword v9, v6, s[60:63], s{sT+1} offen
        s_mov_b64 exec, -1
        """)
    A(f"""
    s_mov_b32 s{sT}, {WS_KF:#x}
    s_cmp_lt_u32 s{sWN}, 2
    s_cselect_b32 s{sT}, s{sT}, {WS_VF:#x}
    s_add_u32 s{S_KVO}, s4, s{sT}
    s_addc_u32 s{S_KVO+1}, s5, 0
    s_mov_b32 s{S_KVO+2}, {16*1024*1024:#x}
    s_mov_b32 s{S_KVO+3}, 0x00020000
    """)
    vRX = [10, 11]; vRW = [12, 13]; vRW2 = [192, 193]
    A(f"""
    v_and_b32 v6, 31, v0
    v_lshrrev_b32 v7, 5, v0
    v_lshrrev_b32 v8, 2, v6
    v_and_b32 v8, 3, v8
    v_xor_b32 v8, v8, v7
    v_lshlrev_b32 v8, 4, v8
    v_lshlrev_b32 v6, 6, v6
    v_add_u32 v6, v6, v8
    s_lshl_b32 s{sT+2}, s{sWM}, 13
    v_add_u32 v{vRX[0]}, s{sT+2}, v6
    v_xor_b32 v{vRX[1]}, 32, v{vRX[0]}
    v_lshrrev_b32 v6, 5, v0
    v_lshlrev_b32 v6, 11, v6
    v_bfe_u32 v7, v0, 2, 2
    v_lshlrev_b32 v8, 8, v7
    v_add_u32 v6, v6, v8
    v_lshlrev_b32 v8, 6, v7
    v_add_u32 v6, v6, v8
    v_bfe_u32 v8, v0, 4, 1
    v_lshlrev_b32 v8, 5, v8
    v_add_u32 v6, v6, v8
    v_and_b32 v8, 3, v0
    v_lshlrev_b32 v8, 3, v8
    v_add_u32 v198, v6, v8
    s_lshr_b32 s{sT+2}, s{sWN}, 1
    s_lshl_b32 s{sT+2}, s{sT+2}, 13
    s_add_u32 s{sT+2}, s{sT+2}, 0x10000
    v_add_u32 v6, s{sT+2}, v198
    s_and_b32 s{sT+2}, s{sWN}, 1
    s_lshl_b32 s{sT+2}, s{sT+2}, 7
    v_xor_b32 v{vRW[0]}, s{sT+2}, v6
    v_xor_b32 v{vRW[1]}, 64, v{vRW[0]}
    v_add_u32 v{vRW2[0]}, 0x10000, v{vRW[0]}
    v_add_u32 v{vRW2[1]}, 0x10000, v{vRW[1]}
    """)
    f = vLN + 4
    t = vLN + 12
    lq = A.newlabel("ln_w"); lq2 = A.newlabel("ln_j")
    A(f"s_cmp_ge_u32 s{sWN}, 2")
    A(f"s_cbranch_scc1 {lq}")
    A("s_waitcnt vmcnt(%d)" % (12 + (3 if BULK else 0)))
    A(f"s_branch {lq2}")
    A.label(lq)
    A("s_waitcnt vmcnt(%d)" % (4*WLA + (3 if BULK else 0)))
    A.label(lq2)
    A(f"ds_read_b128 {v(vLN,4)}, v{vLN+4}")
    A("s_waitcnt lgkmcnt(0)")
    for i in range(4):
        A(f"v_lshlrev_b32 v{f+2*i}, 16, v{vLN+i}")
        A(f"v_and_b32 v{f+2*i+1}, 0xffff0000, v{vLN+i}")
    A(f"v_add_f32 v{t}, v{f}, v{f+1}")
    for i in range(2, 8):
        A(f"v_add_f32 v{t}, v{t}, v{f+i}")
    wave_allreduce_add(A, t, None, sT+4)
    A(f"v_mul_f32 v{t}, {1.0/512!r}, v{t}")
    A(f"v_sub_f32 v{t+1}, v{f}, v{t}")
    A(f"v_mul_f32 v{t+2}, v{t+1}, v{t+1}")
    for i in range(1, 8):
        A(f"v_sub_f32 v{t+1}, v{f+i}, v{t}")
        A(f"v_fmac_f32 v{t+2}, v{t+1}, v{t+1}")
    wave_allreduce_add(A, t+2, None, sT+4)
    A(f"v_mul_f32 v{t+2}, {1.0/512!r}, v{t+2}")
    round_bf16(A, t)
    round_bf16(A, t+2)
    A(f"v_add_f32 v{t+2}, 0x3727c5ac, v{t+2}")
    round_bf16(A, t+2)
    A(f"v_sqrt_f32 v{t+2}, v{t+2}")
    A("s_nop 0")
    round_bf16(A, t+2)
    A(f"v_rcp_f32 v{t+3}, v{t+2}")
    A("s_nop 0")
    for i in range(8):
        A(f"v_sub_f32 v{f+i}, v{f+i}, v{t}")
        round_bf16(A, f+i)
        A(f"v_mul_f32 v{t+4}, v{f+i}, v{t+3}")
        A(f"v_fma_f32 v{t+5}, -v{t+4}, v{t+2}, v{f+i}")
        A(f"v_fma_f32 v{f+i}, v{t+5}, v{t+3}, v{t+4}")
    for i in range(4):
        A(f"v_cvt_pk_bf16_f32 v{vLN+i}, v{f+2*i}, v{f+2*i+1}")
    A(f"""
    v_lshrrev_b32 v6, 1, v0
    v_lshlrev_b32 v6, 10, v6
    v_and_b32 v7, 1, v0
    v_lshlrev_b32 v7, 9, v7
    v_add_u32 v6, v6, v7
    s_lshr_b32 s{sT+2}, s{sROW}, 5
    s_lshl_b32 s{sT+2}, s{sT+2}, 15
    s_and_b32 s{sT+3}, s{sROW}, 31
    s_lshl_b32 s{sT+3}, s{sT+3}, 4
    s_add_u32 s{sT+2}, s{sT+2}, s{sT+3}
    """)
    srd(A, 60, 4, 5, 256*128, WS_SYNC)
    A(f"""
    s_lshl_b32 s{sT+3}, s2, 7
    s_cmp_eq_u32 s{sW}, 1
    s_cselect_b32 s{sT+3}, s{sT+3}, 0x7ff00000
    s_mov_b64 exec, 1
    buffer_store_dword v14, v14, s[60:63], s{sT+3} offen sc0 sc1
    s_mov_b64 exec, -1
    buffer_store_dwordx4 v[{vLN}:{vLN+3}], v6, s[{S_XN}:{S_XN+3}], s{sT+2} offen sc0 sc1
    """)
    vST, vSA, vSB = 199, 244, 245
    A(f"v_lshlrev_b32 v{vSA}, 2, v0")
    def state_store(val_sgpr, vtmp, vzero):
        A(f"v_mov_b32 v{vtmp}, s{val_sgpr}")
        A("s_mov_b64 exec, 1")
        A(f"buffer_store_byte v{vtmp}, v{vzero}, s[{S_DBG}:{S_DBG+3}], s2 offen sc0 sc1")
        A("s_mov_b64 exec, -1")
    def state_load():
        A(f"buffer_load_dword v{vST}, v{vSA}, s[{S_DBG}:{S_DBG+3}], 0 offen sc1")
    def peers_byte():
        A(f"s_and_b32 s{sT+4}, s2, 3")
        A(f"s_lshl_b32 s{sT+4}, s{sT+4}, 3")
        A(f"v_lshrrev_b32 v{vSB}, s{sT+4}, v{vST}")
        A(f"s_bfe_u32 s{sT+4}, s2, 0x30002")
        A(f"s_mov_b32 s{sT+2}, 0x01010101")
        A(f"s_mov_b32 s{sT+3}, 0x01010101")
        A(f"s_lshl_b64 s[{sT+2}:{sT+3}], s[{sT+2}:{sT+3}], s{sT+4}")
    def state_wait(kind):
        lok = A.newlabel("fl_ok"); lsp = A.newlabel("fl_spin")
        A(f"s_mov_b32 s{sT+7}, 0")
        A.label(lsp)
        if kind == 0:
            A(f"""
            v_and_b32 v{vSB}, 0x10101010, v{vST}
            v_cmp_eq_u32 vcc, 0x10101010, v{vSB}
            s_lshl_b32 s{sT+4}, s{sI}, 3
            s_lshr_b64 s[{sT+2}:{sT+3}], vcc, s{sT+4}
            s_and_b32 s{sT+2}, s{sT+2}, 0xff
            s_cmp_eq_u32 s{sT+2}, 0xff
            """)
        elif kind == 2:
            A(f"""
            v_and_b32 v{vSB}, 0x40404040, v{vST}
            v_cmp_eq_u32 vcc, 0x40404040, v{vSB}
            s_cmp_eq_u64 vcc, -1
            """)
        else:
            peers_byte()
            A(f"""
            v_and_b32 v{vSB}, 0x20, v{vSB}
            v_cmp_ne_u32 vcc, 0, v{vSB}
            s_and_b64 s[{sT+4}:{sT+5}], vcc, s[{sT+2}:{sT+3}]
            s_cmp_eq_u64 s[{sT+4}:{sT+5}], s[{sT+2}:{sT+3}]
            """)
        A(f"""
        s_cbranch_scc1 {lok}
        s_add_u32 s{sT+7}, s{sT+7}, 1
        s_cmp_ge_u32 s{sT+7}, {SPIN_MAX}
        s_cbranch_scc1 {lok}
        s_sleep 16
        """)
        state_load()
        A("s_waitcnt vmcnt(0)")
        A(f"s_branch {lsp}")
        A.label(lok)
    def placement_eval():
        peers_byte()
        A(f"""
        v_and_b32 v{vSB}, 0x17, v{vSB}
        v_cmp_eq_u32 vcc, s{sXCC}, v{vSB}
        s_and_b64 s[{sT+4}:{sT+5}], vcc, s[{sT+2}:{sT+3}]
        s_cmp_eq_u64 s[{sT+4}:{sT+5}], s[{sT+2}:{sT+3}]
        s_cselect_b32 s{sSLOW}, 0, 1
        """)
        if FORCE_SLOW: A(f"s_mov_b32 s{sSLOW}, 1")
    ACC = 64
    FR = [16, 40]
    def reads(ks):
        st, kp = ks >> 1, ks & 1
        buf = st & 3
        fr = FR[ks & 1]
        L = []
        wb = st % WNB
        for nb in range(2):
            for tt in range(2):
                L.append(f"ds_read_b64_tr_b16 {v(fr+16+nb*4+tt*2,2)}, v{(vRW if wb < 4 else vRW2)[nb]} offset:{(wb & 3)*16384 + kp*4096 + tt*1024}")
        for kb in range(4):
            L.append(f"ds_read_b128 {v(fr+kb*4,4)}, v{vRX[kp]} offset:{buf*16384 + kb*2048}")
        return L
    lblV = A.newlabel("p1_v"); lblE = A.newlabel("p1_epi")
    stamp(A, 1)
    A(f"""
    s_lshl_b32 s{sT+2}, s2, 3
    s_add_u32 s{sT+2}, s{sT+2}, s{sW}
    s_lshl_b32 s60, s{sT+2}, 11
    s_mul_i32 s61, s{sT+2}, 896
    v_lshlrev_b32 v8, 7, v0
    """)
    def touch2(S4, S175a, S175b, dst, va):
        A("s_mov_b64 exec, 0xffff")
        A(f"buffer_load_dword v{dst}, v{va}, s[{S4}:{S4+3}], s60 offen")
        A("s_mov_b64 exec, 0x7f")
        A(f"buffer_load_dword v{dst}, v{va}, s[{S175a}:{S175a+3}], s61 offen")
        if S175b: A(f"buffer_load_dword v{dst}, v{va}, s[{S175b}:{S175b+3}], s61 offen")
        A("s_mov_b64 exec, -1")
    A(f"s_cmp_ge_u32 s{sWN}, 2")
    A(f"s_cbranch_scc1 {lblV}")
    for ver in range(2):
        if ver == 1: A.label(lblV)
        log = issue0(ver)
        A("s_waitcnt vmcnt(%d)" % allowed(log, 1))
        A("s_barrier")
        for r in reads(0): A(r)
        for st in range(16):
            if st > 0:
                n_out = allowed(log, st + 1) if st < 15 else None
                if st == LN_SIG:
                    n_out = min(n_out, len(log) - 1 - max(i for i, o in enumerate(log) if o == ("o", 0)))
                if n_out is not None:
                    A(f"s_waitcnt vmcnt({n_out})")
                    A("s_barrier")
            pcs = PF[ver](st + LA[ver]) if st + LA[ver] < 16 else []
            log += [("d", st + LA[ver])] * len(pcs)
            if st == LN_SIG and ver == 0:
                lsk = A.newlabel("p1_nf")
                A(f"s_cmp_lg_u32 s{sW}, 0")
                A(f"s_cbranch_scc1 {lsk}")
                state_store(sXCC, 15, 14)
                A.label(lsk)
            if st == TOUCH_ST and gen.PRETOUCH:
                touch2(S_WQ, S_WG, S_WU, 9, 8)
            if st == TOUCH2_ST:
                A(f"""
                s_lshl_b32 s{sT+4}, s{sI}, 3
                s_add_u32 s{sT+4}, s{sT+4}, s{sW}
                s_lshl_b32 s{sT+5}, s{sT+4}, 16
                s_lshl_b32 s{sT+6}, s{sH}, 8
                s_add_u32 s{sT+5}, s{sT+5}, s{sT+6}
                s_mul_i32 s{sT+4}, s{sT+4}, {8*3584}
                s_lshl_b32 s{sT+6}, s{sFT}, 8
                s_add_u32 s{sT+4}, s{sT+4}, s{sT+6}
                v_bfe_u32 v6, v0, 1, 3
                v_and_b32 v7, 1, v0
                v_lshlrev_b32 v7, 7, v7
                v_mul_u32_u24 v8, 3584, v6
                v_add_u32 v8, v8, v7
                v_lshlrev_b32 v6, 13, v6
                v_add_u32 v6, v6, v7
                s_mov_b64 exec, 0xffff
                buffer_load_dword v9, v6, s[{S_WQ}:{S_WQ+3}], s{sT+5} offen
                buffer_load_dword v9, v8, s[{S_WG}:{S_WG+3}], s{sT+4} offen
                buffer_load_dword v9, v8, s[{S_WU}:{S_WU+3}], s{sT+4} offen
                s_mov_b64 exec, -1
                """)
            if st == 14:
                state_load()
            for kp in range(2):
                ks = 2*st + kp
                fr = FR[ks & 1]
                nxt = reads(ks + 1) if ks + 1 < 32 else []
                idx = 0
                for kb in range(4):
                    for nb in range(2):
                        if nb == 0:
                            A(f"s_waitcnt lgkmcnt({min((8 - (4 + kb + 1)) + idx, 15)})")
                        d = ACC + (kb*2+nb)*16
                        xa, wa = fr + kb*4, fr + 16 + nb*4
                        c = None if ks == 0 else d
                        if ver == 0: mfma(A, d, wa, xa, c)
                        else:        mfma(A, d, xa, wa, c)
                        if idx < len(nxt):
                            A(nxt[idx]); idx += 1
                        if pcs and (kb*2+nb) % 4 == 1:
                            for l in pcs.pop(0): A(l)
        if ver == 0: A(f"s_branch {lblE}")
    A.label(lblE)
    stamp(A, 2)
    vDF, vDQ = 192, 193
    vRXl, vRXh, vRWl, vRWh = 194, 195, 196, 197
    STG = 40960
    A(f"""
    v_lshrrev_b32 v7, 4, v0
    v_and_b32 v8, 15, v0
    v_lshlrev_b32 v9, 2, v7
    v_xor_b32 v8, v8, v9
    v_lshlrev_b32 v8, 4, v8
    v_mul_u32_u24 v6, 3584, v7
    v_add_u32 v{vDF}, v6, v8
    v_lshlrev_b32 v6, 13, v7
    v_add_u32 v{vDQ}, v6, v8
    s_cmp_lt_u32 s{sW}, 4
    s_cselect_b32 s{sT}, s{sRBF}, s{sRBO}
    s_lshl_b32 s{sT}, s{sT}, 2
    s_add_u32 s{sT}, s{sT}, s{sWR}
    s_lshl_b32 s{sSX}, s{sT}, 15
    s_mul_i32 s{sSWF}, s{sW}, {4*3584}
    s_lshl_b32 s{sT}, s{sFT}, 8
    s_add_u32 s{sSWF}, s{sSWF}, s{sT}
    s_lshl_b32 s{sSWQ}, s{sW}, 15
    s_lshl_b32 s{sT}, s{sH}, 8
    s_add_u32 s{sSWQ}, s{sSWQ}, s{sT}
    s_lshl_b32 s{sM0}, s{sW}, 10
    s_lshl_b32 s{sNIT}, s{sW}, 11
    s_lshl_b32 s{sT}, s{sP}, 12
    v_add_u32 v{vRXl}, s{sT}, v{vL16}
    v_add_u32 v{vRXh}, {2*STG}, v{vRXl}
    s_lshl_b32 s{sT}, s{sC}, 6
    v_xor_b32 v6, s{sT}, v198
    v_add_u32 v{vRWl}, 16384, v6
    v_add_u32 v{vRWh}, {2*STG}, v{vRWl}
    s_waitcnt vmcnt(0)
    s_barrier
    """)
    state_wait(0)
    placement_eval()
    XNSC = ' sc1' if XN_SC1 else ''
    def gpieces(st):
        b = (st & 3) * STG
        return [
         [f"s_add_u32 m0, s{sNIT}, {b}", f"s_add_u32 s{sT+1}, s{sSX}, {st*2048}",
          f"buffer_load_dwordx4 v{vL16}, s[{S_XN}:{S_XN+3}], s{sT+1} offen{XNSC} lds"],
         [f"buffer_load_dwordx4 v{vL16}, s[{S_XN}:{S_XN+3}], s{sT+1} offen offset:1024{XNSC} lds"],
         [f"s_add_u32 m0, s{sM0}, {b+16384}", f"s_add_u32 s{sT+2}, s{sSWF}, {st*32*3584}",
          f"buffer_load_dwordx4 v{vDF}, s[{S_WG}:{S_WG+3}], s{sT+2} offen lds"],
         [f"s_add_u32 m0, s{sM0}, {b+24576}", f"s_add_u32 s{sT+3}, s{sSWQ}, {st*32*8192}",
          f"buffer_load_dwordx4 v{vDF}, s[{S_WU}:{S_WU+3}], s{sT+2} offen lds"],
         [f"s_add_u32 m0, s{sM0}, {b+32768}", "s_nop 0",
          f"buffer_load_dwordx4 v{vDQ}, s[{S_WQ}:{S_WQ+3}], s{sT+3} offen lds"]]
    for st in range(3):
        for p in gpieces(st):
            for l in p: A(l)
    A(f"""
    s_lshl_b32 s{sT+4}, s{sH}, 19
    s_lshl_b32 s{sT+5}, s{sI}, 16
    s_add_u32 s{sT+4}, s{sT+4}, s{sT+5}
    s_lshl_b32 s{sT+5}, s{sWM}, 15
    s_add_u32 s{sT+4}, s{sT+4}, s{sT+5}
    s_and_b32 s{sT+5}, s{sWN}, 1
    s_lshl_b32 s{sT+5}, s{sT+5}, 12
    s_add_u32 s{sT+4}, s{sT+4}, s{sT+5}
    """)
    lwt = A.newlabel("p1e_wt"); lje = A.newlabel("p1e_join")
    A(f"s_cmp_lg_u32 s{sSLOW}, 0")
    A(f"s_cbranch_scc1 {lwt}")
    for wt in range(2):
        if wt: A.label(lwt)
        fl = " sc0 sc1" if wt else ""
        for kb in range(4):
            for nb in range(2):
                d = ACC + (kb*2+nb)*16
                p = 200 + ((kb*2+nb) & 3) * 8
                for i in range(8):
                    A(f"v_cvt_pk_bf16_f32 v{p+i}, v{d+2*i}, v{d+2*i+1}")
                A(f"buffer_store_dwordx4 {v(p,4)}, v{vL16}, s[{S_KVO}:{S_KVO+3}], s{sT+4} offen offset:{nb*2048}{fl}")
                A(f"buffer_store_dwordx4 {v(p+4,4)}, v{vL16}, s[{S_KVO}:{S_KVO+3}], s{sT+4} offen offset:{nb*2048+1024}{fl}")
            if kb < 3:
                A(f"s_add_u32 s{sT+4}, s{sT+4}, 8192")
        if not wt: A(f"s_branch {lje}")
    A.label(lje)
    stamp(A, 3)
    srd(A, S_KF, 4, 5, 16*1024*1024, WS_KF)
    srd(A, S_VF, 4, 5, 16*1024*1024, WS_VF)
    srd(A, S_H, 4, 5, 64*112*1024, WS_H)
    srd(A, S_CTX, 4, 5, 16*1024*1024, WS_CTX)
    FR = [8, 36]
    XOFF = [0, 2048, 8192, 10240]
    def greads(ks):
        st, kp = ks >> 1, ks & 1
        buf = st & 3
        fr = FR[ks & 1]
        rx = vRXl if buf < 2 else vRXh
        rw = vRWl if buf < 2 else vRWh
        bo = (buf & 1) * STG
        def wr(sub):
            return [f"ds_read_b64_tr_b16 {v(fr+sub*4+tt*2,2)}, v{rw} offset:{bo + sub*8192 + kp*4096 + tt*1024}" for tt in range(2)]
        def xr(i):
            return [f"ds_read_b128 {v(fr+12+i*4,4)}, v{rx} offset:{bo + XOFF[i] + kp*1024}"]
        return wr(0) + xr(0) + xr(1) + wr(1) + wr(2) + xr(2) + xr(3)
    MF = [(0, 0, 0, 3), (1, 0, 1, 4), (2, 1, 0, 6), (3, 1, 1, 6), (4, 2, 0, 8), (5, 2, 1, 8), (6, 2, 2, 9), (7, 2, 3, 10)]
    def relayout_loads():
        srd(A, 24, 6, 7, 4096*1024)
        srd(A, 28, 100, 101, 1792*1024)
        A(f"""
        v_and_b32 v2, 31, v0
        v_lshlrev_b32 v2, 1, v2
        v_lshrrev_b32 v3, 5, v0
        v_lshlrev_b32 v3, 12, v3
        v_add_u32 v2, v2, v3
        v_add_u32 v3, 8192, v2                       ; +8 rows
        s_mul_i32 s{sT}, s2, 23
        s_mul_i32 s{sT+1}, s{sW}, 3
        s_add_u32 s{sBLK}, s{sT}, s{sT+1}
        """)
        for i in range(3):
            lwd = A.newlabel("rl_wd"); lj = A.newlabel("rl_j")
            R = 220 + 8*i
            A(f"""
            s_add_u32 s{sT}, s{sBLK}, {i}
            s_lshr_b32 s{sT+1}, s{sT}, 4
            s_and_b32 s{sT}, s{sT}, 15
            s_lshl_b32 s{sT}, s{sT}, 6
            s_cmp_ge_u32 s{sT+1}, 256
            s_cbranch_scc1 {lwd}
            s_lshl_b32 s{sT+1}, s{sT+1}, 14
            s_add_u32 s{sT}, s{sT}, s{sT+1}
            """)
            for S_ in (24, 28):
                if S_ == 28:
                    A.label(lwd)
                    A(f"s_sub_u32 s{sT+1}, s{sT+1}, 256")
                    A(f"s_lshl_b32 s{sT+1}, s{sT+1}, 14")
                    A(f"s_add_u32 s{sT}, s{sT}, s{sT+1}")
                for j in range(8):
                    va = 2 if j < 4 else 3
                    A(f"buffer_load_ushort v{R + j}, v{va}, s[{S_}:{S_+3}], s{sT} offen offset:{(j & 3)*1024}")
                if S_ == 24: A(f"s_branch {lj}")
            A.label(lj)

        srd(A, S_KF, 4, 5, 16*1024*1024, WS_KF)
        srd(A, S_VF, 4, 5, 16*1024*1024, WS_VF)
    A(f"v_mov_b32 v4, 0")
    A(f"v_mov_b32 v5, 1")
    A("s_waitcnt vmcnt(21)")
    A("s_barrier")
    for r in greads(0): A(r)
    for st in range(16):
        if st > 0:
            n_out = 5 if st < 14 else (0 if st == 14 else None)
            if st == 1: n_out = 21
            if n_out is not None:
                A(f"s_waitcnt vmcnt({n_out})")
                A("s_barrier")
        if st == 2:
            lsk = A.newlabel("p2_ns")
            A(f"s_cmp_lg_u32 s{sW}, 7")
            A(f"s_cbranch_scc1 {lsk}")
            A(f"s_or_b32 s{sT+4}, s{sXCC}, 0x20")
            state_store(sT+4, 5, 4)
            A.label(lsk)
        pcs = gpieces(st + 3) if st + 3 < 16 else []
        if st == 14:
            state_load()
            relayout_loads()
        for kp in range(2):
            ks = 2*st + kp
            fr = FR[ks & 1]
            nxt = greads(ks + 1) if ks + 1 < 32 else []
            idx = 0
            prev_need = 0
            for (acc, sub, xi, need) in MF:
                if need > prev_need:
                    A(f"s_waitcnt lgkmcnt({min((10 - need) + idx, 15)})")
                    prev_need = need
                d = ACC + acc*16
                mfma(A, d, fr + sub*4, fr + 12 + xi*4, None if ks == 0 else d)
                for _ in range(2 if acc in (0, 1) else 1):
                    if idx < len(nxt):
                        A(nxt[idx]); idx += 1
                if pcs and (kp*8 + acc) % 3 == 1:
                    for l in pcs.pop(0): A(l)
        assert not pcs
    stamp(A, 4)
    A(f"""
    s_waitcnt vmcnt(24)
    s_barrier
    v_mov_b32 v14, 0
    """)
    A(f"""
    s_mul_i32 s{sT}, s{sG}, {3 if MIRROR else 0}
    s_xor_b32 s{sWR}, s{sWR}, s{sT}
    s_lshl_b32 s{sT}, s{sG}, 1
    s_sub_u32 s{sNIT}, s{sWR}, s{sT}
    s_add_u32 s{sNIT}, s{sNIT}, 1
    s_lshl_b32 s{sHB}, s{sH}, 19
    s_lshl_b32 s{sT}, s{sW}, 12
    s_add_u32 s{sHB}, s{sHB}, s{sT}
    s_lshl_b32 s{sM0}, s{sW}, 12
    s_mov_b32 s{sKJ}, 0
    s_mov_b32 s{sVJ}, 0
    s_mov_b32 s{sKN}, s{sHB}
    s_mov_b32 s{sVN}, s{sHB}
    s_mov_b32 s{sM0K}, s{sM0}
    s_add_u32 s{sM0V}, s{sM0}, 65536
    """)
    sDS = 72
    def kv_issue(isV, defer=False):
        sJ = sVJ if isV else sKJ
        sN = sVN if isV else sKN
        sMM = sM0V if isV else sM0K
        S = S_VF if isV else S_KF
        sD = sDS + (1 if isV else 0)
        SL = [f"s_mov_b32 m0, s{sMM}", f"s_mov_b32 s{sD}, s{sN}", f"s_xor_b32 s{sMM}, s{sMM}, 32768",
              f"s_add_u32 s{sN}, s{sN}, 32768", f"s_cmp_eq_u32 s{sJ}, s{sB0}", f"s_cselect_b32 s{sN}, s{sHB}, s{sN}",
              f"s_add_u32 s{sJ}, s{sJ}, 1"]
        L = [f"buffer_load_dwordx4 v{vL16}, s[{S}:{S+3}], s{sD} offen offset:{q*1024} lds" for q in range(4)]
        if defer: return SL, L
        for l in SL: A(l)
        for l in L: A(l)
    state_wait(1)
    kv_issue(False)
    kv_issue(True)
    kv_issue(False)
    T = 200
    A(f"v_mov_b32 v{T+16}, {f32hex(QSCALE)}")
    A(f"""
    s_lshl_b32 s{sT}, s{sP}, 14                   ; 2p*8192
    s_lshl_b32 s{sT+1}, s{sC}, 11                 ; 2c*1024
    s_add_u32 s{sT}, s{sT}, s{sT+1}
    s_add_u32 s{sT}, s{sT}, {96*1024}
    v_add_u32 v6, s{sT}, v{vL16}
    """)
    for qi in range(4):
        d = ACC + (4+qi)*16
        for r in range(0, 16, 2):
            A(f"v_pk_mul_f32 {v(d+r,2)}, {v(d+r,2)}, {v(T+16,2)} op_sel_hi:[1,0]")
        p = T + (qi & 1)*8
        for i in range(8):
            A(f"v_cvt_pk_bf16_f32 v{p+i}, v{d+2*i}, v{d+2*i+1}")
        xb_off = [0, 8192, 32768, 40960][qi]
        A(f"ds_write_b128 v6, {v(p,4)} offset:{xb_off}")
        A(f"ds_write_b128 v6, {v(p+4,4)} offset:{xb_off+1024}")
    A("s_waitcnt lgkmcnt(0)")
    A(f"v_mov_b32 v{T+8}, {f32hex(GC1)}")
    A(f"v_mov_b32 v{T+9}, {f32hex(GC2)}")
    A(f"v_mov_b32 v{T+10}, 1.0")
    A(f"""
    s_lshl_b32 s{sT}, s{sRBF}, 2
    s_lshl_b32 s{sT+1}, s{sP}, 1
    s_add_u32 s{sT}, s{sT}, s{sT+1}
    s_mul_i32 s{sT}, s{sT}, {112*1024}
    s_lshl_b32 s{sT+1}, s{sFT}, 13
    s_add_u32 s{sT}, s{sT}, s{sT+1}
    s_lshl_b32 s{sT+1}, s{sC}, 11
    s_add_u32 s{sT}, s{sT}, s{sT+1}
    s_cmp_lt_u32 s{sH}, 28
    s_cselect_b32 s{sT}, s{sT}, 0x7ff00000
    """)
    for j in range(2):
        g0 = ACC + j*16
        u0 = ACC + (2+j)*16
        for r0 in range(0, 16, 8):
            prs = [(g0 + r, u0 + r, T + 12 + (r - r0)) for r in range(r0, r0 + 8, 2)]
            for x, u, t in prs: A(f"v_pk_mul_f32 {v(t,2)}, {v(x,2)}, {v(x,2)}")
            for x, u, t in prs: A(f"v_pk_fma_f32 {v(t,2)}, {v(t,2)}, {v(T+8,2)}, {v(T+8,2)} op_sel:[0,1,0] op_sel_hi:[1,1,0]")
            for x, u, t in prs: A(f"v_pk_mul_f32 {v(t,2)}, {v(t,2)}, {v(x,2)}")
            for x, u, t in prs:
                A(f"v_exp_f32 v{t}, v{t}"); A(f"v_exp_f32 v{t+1}, v{t+1}")
            for x, u, t in prs: A(f"v_pk_mul_f32 {v(x,2)}, {v(x,2)}, {v(u,2)}")
            for x, u, t in prs: A(f"v_pk_add_f32 {v(t,2)}, {v(t,2)}, {v(T+10,2)} op_sel_hi:[1,0]")
            for x, u, t in prs:
                A(f"v_rcp_f32 v{t}, v{t}"); A(f"v_rcp_f32 v{t+1}, v{t+1}")
            A("s_nop 0")
            for x, u, t in prs: A(f"v_pk_mul_f32 {v(x,2)}, {v(x,2)}, {v(t,2)}")
        p = T
        for i in range(8):
            A(f"v_cvt_pk_bf16_f32 v{p+i}, v{g0+2*i}, v{g0+2*i+1}")
        A(f"buffer_store_dwordx4 {v(p,4)}, v{vL16}, s[{S_H}:{S_H+3}], s{sT} offen sc0 sc1")
        A(f"buffer_store_dwordx4 {v(p+4,4)}, v{vL16}, s[{S_H}:{S_H+3}], s{sT} offen offset:1024 sc0 sc1")
        if j == 0:
            A(f"s_add_u32 s{sT}, s{sT}, {112*1024}")
    stamp(A, 5)
    srd(A, 12, 4, 5, 5888*1024, WS_WF)
    A(f"""
    s_lshl_b32 s{sT}, s{sBLK}, 10
    s_add_u32 s{sT+1}, s{sT}, 2048
    s_cmp_eq_u32 s{sW}, 7
    s_cselect_b32 s{sT+1}, 0x7ff00000, s{sT+1}
    s_waitcnt vmcnt(16)
    """)
    for q in range(12):
        A(f"v_lshl_or_b32 v{32+q}, v{221+2*q}, 16, v{220+2*q}")
    A(f"""
    buffer_store_dwordx4 v[32:35], v{vL16}, s[12:15], s{sT} offen sc0 sc1
    buffer_store_dwordx4 v[36:39], v{vL16}, s[12:15], s{sT} offen offset:1024 sc0 sc1
    buffer_store_dwordx4 v[40:43], v{vL16}, s[12:15], s{sT+1} offen sc0 sc1
    """)
    vKA, vVA, vL, vM, vTMP, vD = 2, 3, 4, 5, 6, 7
    F = 8; Q = 40; Q2 = 72; S = 104; NM = 136; P = 152; O = 168; T = 232
    A(f"""
    s_waitcnt lgkmcnt(0)
    s_barrier
    s_cmp_eq_u32 s{sRBF}, s{sB0}
    s_cselect_b32 s{sT}, 0, 32768
    s_cselect_b32 s{sT+1}, 32768, 0
    s_lshl_b32 s{sT+2}, s{sWR}, 13
    s_add_u32 s{sT+2}, s{sT+2}, {96*1024}
    s_add_u32 s{sT}, s{sT}, s{sT+2}
    s_add_u32 s{sT+1}, s{sT+1}, s{sT+2}
    v_add_u32 v{vTMP}, s{sT}, v{vL16}
    v_add_u32 v{vD}, s{sT+1}, v{vL16}
    """)
    for ks in range(8):
        A(f"ds_read_b128 {v(Q+4*ks,4)}, v{vTMP} offset:{ks*1024}")
    for ks in range(8):
        A(f"ds_read_b128 {v(Q2+4*ks,4)}, v{vD} offset:{ks*1024}")
    A(f"""
    s_waitcnt lgkmcnt(0)
    v_and_b32 v{vD}, 31, v0
    v_lshrrev_b32 v{vTMP}, 5, v0
    v_lshlrev_b32 v{vTMP}, 2, v{vTMP}
    v_sub_u32 v{vD}, v{vD}, v{vTMP}
    s_lshl_b32 s{sT}, s{sWR}, 5
    s_lshl_b32 s{sT+1}, s{sG}, 6
    s_sub_u32 s{sT}, s{sT}, s{sT+1}
    v_add_u32 v{vD}, s{sT}, v{vD}
    s_mov_b32 s{sPASS}, 0
    s_mov_b32 s{sBLK}, s{sB0}
    s_lshl_b32 s{sT}, s{sG}, 14
    v_add_u32 v{vKA}, s{sT}, v{vL16}              ; K(0) slot 0
    s_add_u32 s{sT}, s{sT}, {65536+32768}
    v_add_u32 v{vVA}, s{sT}, v{vL16}
    """)
    A("s_waitcnt vmcnt(8)")
    A("s_barrier")

    def mask_ops(kb):
        L = []
        for r0 in range(0, 16, 4):
            for j in range(4):
                r = r0 + j
                c = 32*kb + 8*(r >> 2) + (r & 3)
                L.append(f"v_cmp_gt_i32 s[{sMK+2*j}:{sMK+2*j+1}], {c}, v{vD}")
            for j in range(4):
                r = r0 + j
                L.append(f"v_cndmask_b32 v{S+16*kb+r}, v{S+16*kb+r}, v{T+15}, s[{sMK+2*j}:{sMK+2*j+1}]")
        return L
    def max_ops(kb, dst):
        x = S + 16*kb
        L = [f"v_max3_f32 v{dst}, v{x}, v{x+1}, v{x+2}"]
        for r in range(3, 15, 2):
            L.append(f"v_max3_f32 v{dst}, v{dst}, v{x+r}, v{x+r+1}")
        L.append(f"v_max_f32 v{dst}, v{dst}, v{x+15}")
        L.append(f"v_mov_b32 v{dst+1}, v{dst}")
        L.append("s_nop 1")
        L.append(f"v_permlane32_swap_b32 v{dst}, v{dst+1}")
        L.append("s_nop 1")
        L.append(f"v_max_f32 v{dst}, v{dst}, v{dst+1}")
        return L
    LS = [T+12, vL]
    def sm_ops(kb):
        x = S + 16*kb
        src, dst, t1 = LS[1-kb], LS[kb], T+kb
        L = []
        for r in range(0, 16, 2):
            L.append(f"v_exp_f32 v{x+r}, v{x+r}")
            L.append(f"v_exp_f32 v{x+r+1}, v{x+r+1}")
            if r >= 2:
                q = r - 2
                if q == 0:
                    L.append(f"v_add_f32 v{dst}, v{src}, v{x}")
                    L.append(f"v_cvt_pk_bf16_f32 v{P+8*kb}, v{x}, v{x+1}")
                elif q == 2:
                    L.append(f"v_add_f32 v{dst}, v{dst}, v{x+q}")
                    L.append(f"v_add_f32 v{t1}, v{x+1}, v{x+q+1}")
                    L.append(f"v_cvt_pk_bf16_f32 v{P+8*kb+q//2}, v{x+q}, v{x+q+1}")
                else:
                    L.append(f"v_add_f32 v{dst}, v{dst}, v{x+q}")
                    L.append(f"v_add_f32 v{t1}, v{t1}, v{x+q+1}")
                    L.append(f"v_cvt_pk_bf16_f32 v{P+8*kb+q//2}, v{x+q}, v{x+q+1}")
        L.append(f"v_add_f32 v{dst}, v{dst}, v{x+14}")
        L.append(f"v_add_f32 v{t1}, v{t1}, v{x+15}")
        L.append(f"v_cvt_pk_bf16_f32 v{P+8*kb+7}, v{x+14}, v{x+15}")
        L.append(f"v_add_f32 v{dst}, v{dst}, v{t1}")
        return L
    rescues = []
    def check(kb, masked, it_back):
        lr = A.newlabel("resc"); lb = A.newlabel("back")
        A(f"v_cmp_nle_f32 vcc, v{LS[kb]}, v{T+14}")
        A(f"s_cbranch_vccnz {lr}")
        A.label(lb)
        rescues.append((lr, lb, kb, masked, it_back))
    def emit_rescue(lr, lb, kb, masked, it_back):
        A.label(lr)
        A("s_nop 15")
        A("s_nop 15")
        A(f"""
        s_sub_u32 s{sT}, s{sIT}, {it_back}
        s_lshl_b32 s{sT}, s{sT}, 1
        s_add_u32 s{sT}, s{sT}, s{sG}
        s_lshl_b32 s{sT}, s{sT}, 14
        s_lshl_b32 s{sT+1}, s{sH}, 19
        s_add_u32 s{sT}, s{sT}, s{sT+1}
        s_add_u32 s{sT}, s{sT}, {kb*8192}
        s_add_u32 s{sT+1}, s{sT}, 4096
        """)
        for ks in range(8):
            so = sT if ks < 4 else sT+1
            A(f"buffer_load_dwordx4 {v(T+4,4)}, v{vL16}, s[{S_KF}:{S_KF+3}], s{so} offen offset:{(ks&3)*1024}")
            A("s_waitcnt vmcnt(0)")
            mfma(A, S+16*kb, T+4, Q+4*ks, NM if ks == 0 else S+16*kb)
            A("s_nop 7")
        A("s_nop 15")
        if masked:
            for op in mask_ops(kb): A(op)
        for op in max_ops(kb, T+2): A(op)
        A(f"v_max_f32 v{T+2}, 0, v{T+2}")
        A(f"v_sub_f32 v{T+3}, 0, v{T+2}")
        A(f"v_exp_f32 v{T+3}, v{T+3}")
        for r in range(16):
            A(f"v_sub_f32 v{NM+r}, v{NM+r}, v{T+2}")
        for r in range(32):
            A(f"v_sub_f32 v{S+r}, v{S+r}, v{T+2}")
        for r in range(64):
            A(f"v_mul_f32 v{O+r}, v{O+r}, v{T+3}")
        A(f"v_mul_f32 v{LS[1-kb]}, v{LS[1-kb]}, v{T+3}")
        for op in sm_ops(kb): A(op)
        A("s_nop 1")
        A(f"s_branch {lb}")

    def ph_items(ph):
        L = []
        for i in range(8):
            if ph in ("A", "C"):
                kb = 0 if ph == "A" else 1
                rd = (vKA, kb*8192 + i*1024)
                d = S + 16*kb
                mf = (d, Q + 4*i, NM if i == 0 else d)
            else:
                kk = (2 if ph == "B" else 0) + (i >> 2); db = i & 3
                rd = (vVA, (kk >> 1)*8192 + db*2048 + (kk & 1)*1024)
                d = O + 16*db
                mf = (d, P + 4*kk, d)
            L.append((rd, mf))
        return L
    def rd_line(rd, slot):
        return f"ds_read_b128 {v(F+4*slot,4)}, v{rd[0]} offset:{rd[1]}"

    def stream(phases, nxt_phase, pre, fills, extras, post, skip=None):
        items = []
        for ph in phases: items += [(ph, i, it) for i, it in enumerate(ph_items(ph))]
        tail_items = ph_items(nxt_phase)[:4] if nxt_phase else []
        allrd = [it[2][0] for it in items] + [t[0] for t in tail_items]
        n = len(items)
        fq = {}
        for ph in phases:
            st, lines = fills.get(ph, (0, []))
            slots = 8 - st
            per = [len(lines)//slots + (1 if k < len(lines) % slots else 0) for k in range(slots)]
            k = 0
            for i in range(st, 8):
                fq[(ph, i)] = lines[k:k+per[i-st]]; k += per[i-st]
        for idx, (ph, i, (rd, mf)) in enumerate(items):
            if i == 0:
                for l in pre.get(ph, []):
                    if callable(l): l()
                    else: A(l)
            if idx % 4 == 0:
                A("s_waitcnt lgkmcnt(0)")
            d, b_, c = mf
            lsk = None
            if skip and ph in skip:
                lsk = A.newlabel("msk")
                A(f"s_cmp_lt_i32 s{sNIT}, {skip[ph]}")
                A(f"s_cbranch_scc1 {lsk}")
            A(f"v_mfma_f32_32x32x16_bf16 {v(d,16)}, {v(F+4*(idx&7),4)}, {v(b_,4)}, {v(c,16)}")
            if lsk: A.label(lsk)
            if idx % 4 < 2:
                base = (idx & ~3) + 4 + (idx % 4)*2
                for j in (base, base+1):
                    if j < len(allrd): A(rd_line(allrd[j], j & 7))
            for l in extras.get(ph, {}).get(i, []): A(l)
            for l in fq.get((ph, i), []): A(l)
            if i == 7 and ph in post: post[ph]()

    def split_fill(L, n1, n2):
        k = (len(L) * n1) // (n1 + n2)
        return L[:k], L[k:]

    SM1_A, SM1_D = None, None
    def sm1_parts(first, last):
        L = []
        if first:
            L += [f"v_sub_f32 v{NM+r}, 0, v{T+2}" for r in range(16)]
            L += [f"v_sub_f32 v{S+16+r}, v{S+16+r}, v{T+2}" for r in range(16)]
        if last: L += mask_ops(1)
        pre = len(L)
        sm = sm_ops(1)
        k = 18
        return L + sm[:k], sm[k:]

    def iteration(first, last):
        dm = {}
        slV, dm["V"] = kv_issue(True, defer=True)
        slK, dm["K"] = kv_issue(False, defer=True) if not last else ([], [])
        dm["preY"] = slV + [f"v_xor_b32 v{vVA}, 0x8000, v{vVA}"]
        dm["preX"] = slK + [f"v_xor_b32 v{vKA}, 0x8000, v{vKA}"]
        def barY():
            A("s_waitcnt vmcnt(4)")
            A("s_barrier")
        def barX():
            A("s_waitcnt vmcnt(4)")
            A("s_barrier")
            if first and not last:
                l7 = A.newlabel("st3")
                A(f"s_add_u32 s{sT}, s{sW}, s{sPASS}")
                A(f"s_sub_u32 s{sT}, s{sT}, s{sPASS}")
                A(f"s_lshl_b32 s{sT+1}, s{sPASS}, 3")
                A(f"s_add_u32 s{sT}, s{sT}, s{sT+1}")
                A(f"s_cmp_lg_u32 s{sT}, 7")
                A(f"s_cbranch_scc1 {l7}")
                A(f"s_or_b32 s{sT}, s{sXCC}, 0x60")
                A(f"v_mov_b32 v{T+5}, 0")
                state_store(sT, T+4, T+5)
                A.label(l7)
        sm0 = []
        if last: sm0 += mask_ops(0)
        if first:
            sm0 += max_ops(0, T+2)
            sm0 += [f"v_max_f32 v{T+2}, v{T+13}, v{T+2}"]
            sm0 += [f"v_sub_f32 v{S+r}, v{S+r}, v{T+2}" for r in range(16)]
        sm0 += sm_ops(0)
        d_part, _ = sm1_parts(first, last)
        _, a_part = sm1_parts(False, False)
        class Lazy(dict):
            pass
        def dma(kind, q):
            return lambda: (A(dm[kind][q]) if dm.get(kind) else None)
        phases = ["A", "C", "D"] if first else ["A", "B", "C", "D"]
        fills = {}
        if first:
            fills["C"] = (2, sm0)
        else:
            b_part, c_part = split_fill(sm0, 6, 8)
            fills["A"] = (0, a_part)
            fills["B"] = (2, b_part)
            fills["C"] = (0, c_part)
        fills["D"] = (2, d_part)
        pre = {"C": [barY], "D": [barX]}
        post = {"C": lambda: check(0, last, 0)}
        if not first:
            post["A"] = lambda: check(1, False, 1)
        return phases, pre, fills, post, dm

    def emit_iteration(first, last):
        phases, pre, fills, post, dm = iteration(first, last)
        class Ex(dict):
            def get(self, ph, default=None):
                ex = {}
                if ph == "C": ex = {1: [dm["V"][0]], 2: [dm["V"][1]], 3: [dm["V"][2]], 4: [dm["V"][3]]}
                if ph == "D" and dm.get("K"): ex = {1: [dm["K"][0]], 3: [dm["K"][1]], 5: [dm["K"][2]], 7: [dm["K"][3]]}
                if ph == ("A" if first else "B"):
                    ex.setdefault(6, []); ex[6] = ex[6] + dm["preY"]
                if ph == "C":
                    ex.setdefault(6, []); ex[6] = ex[6] + dm["preX"]
                return ex
        stream(phases, "B" if last else "A", pre, fills, Ex(), post, skip=({"A": 1, "C": 2, "D": 1} if last and DIAGSKIP else None))
        if last:
            _, a_part = sm1_parts(False, False)
            for l in a_part: A(l)
            check(1, True, 0)
            A("s_nop 0")
            stream(["B"], None, {}, {}, {}, {}, skip=({"B": 2} if DIAGSKIP else None))

    blk_top = A.newlabel("blk_top")
    A.label(blk_top)
    def astamp(k):
        if not (gen.STAMPS and ATT): return
        l = A.newlabel("ast")
        A(f"s_cmp_lg_u32 s{sPASS}, 0")
        A(f"s_cbranch_scc1 {l}")
        A(f"s_memtime s[{80+2*k}:{81+2*k}]")
        A.label(l)
    astamp(0)
    for r in range(0, 64, 2): A(f"v_mov_b64 {v(O+r,2)}, 0")
    for r in range(0, 16, 2): A(f"v_mov_b64 {v(NM+r,2)}, 0")
    A(f"""
    v_mov_b32 v{vL}, 0
    v_mov_b32 v{T+13}, {f32hex(MFLOOR)}
    v_mov_b32 v{T+14}, {f32hex(BIGL)}
    v_mov_b32 v{T+15}, {f32hex(NEGBIG)}
    s_mov_b32 s{sIT}, 0
    """)
    for i in range(4): A(rd_line(ph_items("A")[i][0], i))
    l_only = A.newlabel("only"); l_mid = A.newlabel("mid"); l_last = A.newlabel("last"); l_merge = A.newlabel("merge")
    A(f"s_cmp_eq_u32 s{sBLK}, 0")
    A(f"s_cbranch_scc1 {l_only}")
    astamp(1)
    emit_iteration(True, False)
    astamp(2)
    A(f"s_mov_b32 s{sIT}, 1")
    A(f"s_cmp_ge_u32 s{sIT}, s{sBLK}")
    A(f"s_cbranch_scc1 {l_last}")
    A.label(l_mid)
    emit_iteration(False, False)
    A(f"s_add_u32 s{sIT}, s{sIT}, 1")
    A(f"s_cmp_lt_u32 s{sIT}, s{sBLK}")
    A(f"s_cbranch_scc1 {l_mid}")
    A.label(l_last)
    astamp(3)
    emit_iteration(False, True)
    A(f"s_branch {l_merge}")
    A.label(l_only)
    emit_iteration(True, True)
    A.label(l_merge)
    astamp(4)
    A(f"""
    v_mov_b32 v{T}, v{vL}
    s_nop 1
    v_permlane32_swap_b32 v{vL}, v{T}
    s_nop 1
    v_add_f32 v{vL}, v{vL}, v{T}
    s_barrier
    s_and_b32 s{sT}, s{sM0K}, 32768
    s_xor_b32 s{sT+1}, s{sM0V}, 32768
    s_and_b32 s{sT+1}, s{sT+1}, {65536+32768}
    s_xor_b32 s{sT+1}, s{sT+1}, 32768
    s_cmp_eq_u32 s{sG}, 0
    s_cselect_b32 s{sT+2}, s{sT}, s{sT+1}
    s_cselect_b32 s{sT+3}, s{sT+1}, s{sT}
    s_lshl_b32 s{sT}, s{sWR}, 13
    s_add_u32 s{sT+2}, s{sT+2}, s{sT}
    s_add_u32 s{sT+3}, s{sT+3}, s{sT}
    v_add_u32 v{T+2}, s{sT+2}, v{vL16}
    v_add_u32 v{T+3}, s{sT+3}, v{vL16}
    v_lshlrev_b32 v{T+4}, 3, v0                  ; lane*8
    s_lshl_b32 s{sT}, s{sG}, 2
    s_add_u32 s{sT}, s{sT}, s{sWR}
    s_lshl_b32 s{sT}, s{sT}, 9
    s_add_u32 s{sT}, s{sT}, 131072
    v_add_u32 v{T+5}, s{sT}, v{T+4}
    s_xor_b32 s{sT}, s{sT}, 2048
    v_add_u32 v{T+4}, s{sT}, v{T+4}
    v_mov_b32 v{T+6}, v{NM}
    v_mov_b32 v{T+7}, v{vL}
    ds_write_b64 v{T+5}, {v(T+6,2)}
    """)
    lg1 = A.newlabel("mg1"); lgd = A.newlabel("mgd")
    A(f"s_cmp_eq_u32 s{sG}, 0")
    A(f"s_cbranch_scc0 {lg1}")
    for gsel in range(2):
        if gsel == 1: A.label(lg1)
        give = O + (32 if gsel == 0 else 0)
        keep = O + (0 if gsel == 0 else 32)
        for i in range(8):
            A(f"ds_write_b128 v{T+2}, {v(give+4*i,4)} offset:{i*1024}")
        A("s_waitcnt lgkmcnt(0)")
        A("s_barrier")
        A(f"ds_read_b64 {v(T+8,2)}, v{T+4}")
        for i in range(8):
            A(f"ds_read_b128 {v(give+4*i,4)}, v{T+3} offset:{i*1024}")
        A(f"""
        s_waitcnt lgkmcnt(8)
        v_min_f32 v{T+10}, v{NM}, v{T+8}          ; -M
        v_sub_f32 v{T+11}, v{T+10}, v{NM}         ; m_self - M
        v_sub_f32 v{T+12}, v{T+10}, v{T+8}        ; m_part - M
        v_exp_f32 v{T+11}, v{T+11}
        v_exp_f32 v{T+12}, v{T+12}
        s_nop 0
        v_mul_f32 v{T+10}, v{vL}, v{T+11}
        v_fmac_f32 v{T+10}, v{T+9}, v{T+12}       ; l_total
        v_rcp_f32 v{T+10}, v{T+10}
        s_nop 0
        v_mul_f32 v{T+11}, v{T+11}, v{T+10}
        v_mul_f32 v{T+12}, v{T+12}, v{T+10}
        s_waitcnt lgkmcnt(0)
        """)
        for r in range(0, 32, 2):
            A(f"v_pk_mul_f32 {v(keep+r,2)}, {v(keep+r,2)}, {v(T+10,2)} op_sel:[0,1] op_sel_hi:[1,1]")
            A(f"v_pk_fma_f32 {v(keep+r,2)}, {v(give+r,2)}, {v(T+12,2)}, {v(keep+r,2)} op_sel_hi:[1,0,1]")
        for i in range(16):
            A(f"v_cvt_pk_bf16_f32 v{S+i}, v{keep+2*i}, v{keep+2*i+1}")
        if gsel == 0: A(f"s_branch {lgd}")
    A.label(lgd)
    A("s_barrier")
    lnk = A.newlabel("nokv")
    A(f"s_cmp_eq_u32 s{sPASS}, 1")
    A(f"s_cbranch_scc1 {lnk}")
    kv_issue(False)
    lnk2 = A.newlabel("nokv2")
    A(f"s_branch {lnk2}")
    A.label(lnk)
    A(f"v_lshlrev_b32 v246, 2, v0")
    A(f"buffer_load_dword v247, v246, s[{S_DBG}:{S_DBG+3}], 0 offen sc1")
    A.label(lnk2)
    A(f"""
    s_lshl_b32 s{sT}, s{sBLK}, 2
    s_add_u32 s{sT}, s{sT}, s{sWR}
    s_lshl_b32 s{sT}, s{sT}, 18                  ; *256*1024
    s_lshl_b32 s{sT+1}, s{sH}, 13
    s_add_u32 s{sT}, s{sT}, s{sT+1}
    s_lshl_b32 s{sT+1}, s{sG}, 12
    s_add_u32 s{sT}, s{sT}, s{sT+1}
    """)
    for i in range(4):
        A(f"buffer_store_dwordx4 {v(S+4*i,4)}, v{vL16}, s[{S_CTX}:{S_CTX+3}], s{sT} offen offset:{i*1024} sc0 sc1")
    astamp(5)
    if ATT: A(f"s_mov_b32 s92, s{sBLK}")
    fin = A.newlabel("k2_fin")
    A(f"s_cmp_eq_u32 s{sPASS}, 1")
    A(f"s_cbranch_scc1 {fin}")
    A(f"s_mov_b32 s{sPASS}, 1")
    A(f"s_mov_b32 s{sBLK}, s{sI}")
    for r in range(0, 32, 2): A(f"v_mov_b64 {v(Q+r,2)}, {v(Q2+r,2)}")
    A(f"s_branch {blk_top}")
    for rr in rescues:
        emit_rescue(*rr)
    A.label(fin)
    stamp(A, 6)
    S_X4, S_OUT, S_WF, S_SY = 8, 12, 16, 20
    sRT, sCT, sQR, sQC, sKG = 43, 44, 45, 46, 47
    sAO, sBO, sAS, sBS, sM4, sST = 48, 49, 50, 51, 52, 53
    NB, NS_F, NS = 5, 14, 46
    vRX, vRW = 4, 5
    A(f"""
    s_load_dwordx2 s[54:55], s[0:1], {KA_X}
    s_load_dwordx2 s[56:57], s[0:1], {KA_OUT}
    v_lshlrev_b32 v{vSA}, 2, v0
    s_and_b32 s{sCT}, s{sH}, 7
    s_lshr_b32 s{sT}, s{sH}, 3
    s_cmp_lt_u32 s{sT}, 2
    s_cselect_b32 s{sRT}, s{sI}, s{sB0}
    s_lshl_b32 s{sRT}, s{sRT}, 1
    s_and_b32 s{sT}, s{sT}, 1
    s_add_u32 s{sRT}, s{sRT}, s{sT}
    s_and_b32 s{sQR}, s{sW}, 1
    s_lshr_b32 s{sQC}, s{sW}, 1
    s_and_b32 s{sQC}, s{sQC}, 1
    s_lshr_b32 s{sKG}, s{sW}, 2
    s_lshl_b32 s{sT}, s{sRT}, 1
    s_add_u32 s{sT}, s{sT}, s{sKG}
    s_and_b32 s{sT+1}, s{sW}, 3
    s_lshl_b32 s{sT+1}, s{sT+1}, 11
    s_lshl_b32 s{sAS}, s{sT}, 18
    s_add_u32 s{sAS}, s{sAS}, s{sT+1}
    s_mul_i32 s{sAO}, s{sT}, {112*1024}
    s_add_u32 s{sAO}, s{sAO}, s{sT+1}
    s_lshl_b32 s{sBS}, s{sW}, 14
    s_lshl_b32 s{sT}, s{sCT}, 11
    s_add_u32 s{sBS}, s{sBS}, s{sT}
    s_add_u32 s{sBO}, s{sBS}, {256*16384}
    s_lshl_b32 s{sM4}, s{sW}, 11
    s_lshl_b32 s{sT}, s{sQR}, 13
    s_lshl_b32 s{sT+1}, s{sKG}, 10
    s_add_u32 s{sT}, s{sT}, s{sT+1}
    v_add_u32 v{vRX}, s{sT}, v{vL16}
    s_lshl_b32 s{sT}, s{sKG}, 11
    s_lshl_b32 s{sT+1}, s{sQC}, 10
    s_add_u32 s{sT}, s{sT}, s{sT+1}
    s_add_u32 s{sT}, s{sT}, 16384
    v_add_u32 v{vRW}, s{sT}, v{vL16}
    """)
    srd(A, S_WF, 4, 5, 5888*1024, WS_WF)
    srd(A, S_SY, 4, 5, 256*128, WS_SYNC)
    RX = [vRX, 10, 11]; RW = [vRW, 12, 13]
    for i in (1, 2):
        A(f"v_add_u32 v{RX[i]}, {65536*i}, v{vRX}")
        A(f"v_add_u32 v{RW[i]}, {65536*i}, v{vRW}")
    AS_, AF_ = 64, 80
    for r in range(0, 32, 2): A(f"v_mov_b64 {v(AS_+r,2)}, 0")
    A("s_waitcnt vmcnt(4) lgkmcnt(0)")
    A(f"v_mov_b32 v{vST}, v247")
    srd(A, S_X4, 54, 55, 2048*1024)
    srd(A, S_OUT, 56, 57, 2048*1024)
    state_wait(2)
    def emit(lines):
        for l in lines:
            if l.endswith(":"): A.label(l[:-1])
            else: A(l)
    def p4pieces(buf, isf):
        b = buf * 32768
        SA = S_H if isf else S_CTX
        return [
          [f"s_add_u32 m0, s{sM4}, {b}", "s_nop 0",
           f"buffer_load_dwordx4 v{vL16}, s[{SA}:{SA+3}], s{sAO} offen lds"],
          [f"buffer_load_dwordx4 v{vL16}, s[{SA}:{SA+3}], s{sAO} offen offset:1024 lds"],
          [f"s_add_u32 m0, s{sM4}, {b + 16384}", f"s_add_u32 s{sAO}, s{sAO}, 8192",
           f"buffer_load_dwordx4 v{vL16}, s[{S_WF}:{S_WF+3}], s{sBO} offen lds"],
          [f"buffer_load_dwordx4 v{vL16}, s[{S_WF}:{S_WF+3}], s{sBO} offen offset:1024 lds",
           f"s_add_u32 s{sBO}, s{sBO}, {128*1024}"]]
    for st in range(NB - 1):
        for p in p4pieces(st, True): emit(p)
    FR4 = 16
    def p4reads(buf, j):
        b = (buf & 1) * 32768
        fr = FR4 + j * 8
        return [f"ds_read_b128 {v(fr,4)}, v{RW[buf>>1]} offset:{b + j*4096}",
                f"ds_read_b128 {v(fr+4,4)}, v{RX[buf>>1]} offset:{b + j*2048}"]
    A(f"s_waitcnt vmcnt({4*(NB-3)})")
    A("s_barrier")
    l0 = A.newlabel("p4_nd")
    A(f"""
    s_cmp_lg_u32 s{sW}, 0
    s_cbranch_scc1 {l0}
    v_mov_b32 v8, 1
    v_mov_b32 v9, 0
    s_lshl_b32 s{sT}, s2, 7
    s_mov_b64 exec, 1
    buffer_store_dword v8, v9, s[{S_SY}:{S_SY+3}], s{sT} offen sc0 sc1
    s_mov_b64 exec, -1
    """)
    A.label(l0)
    for j in range(2): emit(p4reads(0, j))
    def p4stage(st, buf, wait, issue, has_next, acc):
        if st == NS_F - (NB - 1):
            lok = A.newlabel("p4_ok"); lsp = A.newlabel("p4_spin")
            A(f"""
            s_mov_b32 s{sAO}, s{sAS}
            s_mov_b32 s{sBO}, s{sBS}
            s_cmp_lg_u32 s{sW}, 0
            s_cbranch_scc1 {lok}
            v_lshlrev_b32 v9, 7, v0
            s_lshl_b32 s{sT}, s{sI}, 12
            s_mov_b32 s{sT+7}, 0
            """)
            A.label(lsp)
            A(f"""
            s_mov_b64 exec, 0xffffffff
            buffer_load_dword v8, v9, s[{S_SY}:{S_SY+3}], s{sT} offen sc1
            s_waitcnt vmcnt(0)
            v_cmp_eq_u32 vcc, 1, v8
            s_mov_b64 exec, -1
            s_cmp_eq_u32 vcc_lo, -1
            s_cbranch_scc1 {lok}
            s_add_u32 s{sT+7}, s{sT+7}, 1
            s_cmp_ge_u32 s{sT+7}, {SPIN_MAX}
            s_cbranch_scc1 {lok}
            s_sleep 10
            s_branch {lsp}
            """)
            A.label(lok)
        if wait is not None:
            A(f"s_waitcnt vmcnt({wait})")
            A("s_barrier")
        pcs = p4pieces((buf + NB - 1) % NB, issue == "f") if issue else []
        for j in range(4):
            if j < 2: emit(p4reads(buf, j + 2)); A("s_waitcnt lgkmcnt(4)")
            elif has_next: emit(p4reads((buf + 1) % NB, j - 2)); A("s_waitcnt lgkmcnt(4)")
            else: A(f"s_waitcnt lgkmcnt({2*(3-j)})")
            fr = FR4 + j * 8
            mfma(A, acc, fr, fr + 4, acc)
            if pcs: emit(pcs.pop(0))
    W4 = 4*(NB-3)
    for st in range(NS_F):
        p4stage(st, st % NB, None if st == 0 else W4, "f" if st + NB - 1 < NS_F else "s", True, AF_)
    A(f"s_mov_b32 s{sST}, 0")
    l1 = A.newlabel("p4_loop")
    A.label(l1)
    for k in range(5): p4stage(-1, (NS_F + k) % NB, W4, "s", True, AS_)
    A(f"s_add_u32 s{sST}, s{sST}, 1")
    A(f"s_cmp_lt_u32 s{sST}, 5")
    A(f"s_cbranch_scc1 {l1}")
    for st in range(NS_F + 25, NS):
        rem = min(NB - 3, NS - 1 - (st + 1))
        p4stage(-1, st % NB, (4*rem if st < NS - 1 else None), "s" if st + NB - 1 < NS else None, st < NS - 1, AS_)
    A(f"""
    s_nop 7
    s_nop 7
    s_barrier
    s_lshl_b32 s{sT}, s{sW}, 12
    v_add_u32 v6, s{sT}, v{vL16}
    s_xor_b32 s{sT}, s{sT}, 16384
    v_add_u32 v7, s{sT}, v{vL16}
    v_and_b32 v8, 31, v0
    v_lshlrev_b32 v8, 10, v8
    v_lshrrev_b32 v9, 5, v0
    v_lshlrev_b32 v9, 3, v9
    v_add_u32 v8, v8, v9
    s_lshl_b32 s{sT}, s{sRT}, 16
    s_lshl_b32 s{sT+1}, s{sQR}, 15
    s_add_u32 s{sT}, s{sT}, s{sT+1}
    s_lshl_b32 s{sT+1}, s{sCT}, 7
    s_add_u32 s{sT}, s{sT}, s{sT+1}
    s_lshl_b32 s{sT+1}, s{sQC}, 6
    s_add_u32 s{sT}, s{sT}, s{sT+1}
    s_lshl_b32 s{sT+1}, s{sKG}, 5
    s_add_u32 s{sT}, s{sT}, s{sT+1}
    buffer_load_dwordx2 v[10:11], v8, s[{S_X4}:{S_X4+3}], s{sT} offen
    buffer_load_dwordx2 v[12:13], v8, s[{S_X4}:{S_X4+3}], s{sT} offen offset:16
    """)
    lk1 = A.newlabel("p4g1"); lkd = A.newlabel("p4gd")
    A(f"s_cmp_eq_u32 s{sKG}, 0")
    A(f"s_cbranch_scc0 {lk1}")
    for kg in range(2):
        if kg == 1: A.label(lk1)
        keep = 8*kg; give = 8 - keep
        A(f"ds_write_b128 v6, {v(AS_+give,4)}")
        A(f"ds_write_b128 v6, {v(AS_+give+4,4)} offset:1024")
        A(f"ds_write_b128 v6, {v(AF_+give,4)} offset:2048")
        A(f"ds_write_b128 v6, {v(AF_+give+4,4)} offset:3072")
        A("s_waitcnt lgkmcnt(0)")
        A("s_barrier")
        for i in range(4):
            A(f"ds_read_b128 {v(16+4*i,4)}, v7 offset:{i*1024}")
        A("s_waitcnt lgkmcnt(0)")
        for r in range(8):
            A(f"v_add_f32 v{32+r}, v{AS_+keep+r}, v{16+r}")
            A(f"v_add_f32 v{40+r}, v{AF_+keep+r}, v{24+r}")
        if kg == 0: A(f"s_branch {lkd}")
    A.label(lkd)
    A(f"s_mov_b32 s{sT+2}, {f32hex(-LOG2E)}")
    for r in range(8):
        round_bf16(A, 32+r)
        round_bf16(A, 40+r)
        A(f"v_mul_f32 v{48+r}, s{sT+2}, v{40+r}")
        A(f"v_exp_f32 v{48+r}, v{48+r}")
    for r in range(8):
        A(f"v_add_f32 v{48+r}, 1.0, v{48+r}")
        A(f"v_rcp_f32 v{48+r}, v{48+r}")
    for r in range(8):
        A(f"v_mul_f32 v{40+r}, v{40+r}, v{48+r}")
        round_bf16(A, 40+r)
        A(f"v_mul_f32 v{32+r}, v{32+r}, v{40+r}")
        round_bf16(A, 32+r)
    A("s_waitcnt vmcnt(0)")
    for i in range(4):
        A(f"v_lshlrev_b32 v{48}, 16, v{10+i}")
        A(f"v_and_b32 v{49}, 0xffff0000, v{10+i}")
        A(f"v_add_f32 v{32+2*i}, v{32+2*i}, v48")
        A(f"v_add_f32 v{33+2*i}, v{33+2*i}, v49")
        A(f"v_cvt_pk_bf16_f32 v{52+i}, v{32+2*i}, v{33+2*i}")
    A(f"buffer_store_dwordx2 v[52:53], v8, s[{S_OUT}:{S_OUT+3}], s{sT} offen")
    A(f"buffer_store_dwordx2 v[54:55], v8, s[{S_OUT}:{S_OUT+3}], s{sT} offen offset:16")
    if gen.STAMPS:
        A("s_waitcnt vmcnt(0)")
        stamp(A, 7); stamp(A, 9, True)
        stamp_flush(A, 10, 4, 5, sW, 0)
    A.label(done)
    A("s_endpgm")
    A.end_kernel(name, 248, 102)
    A.add_launch(name, 256, 512, 163840)
```

```python
import sys
import gen
from asmlib import *
from gen import *
import gen_main, gen_k3c
A = Asm()
if "stamps" in sys.argv: gen.STAMPS = True
if "nopretouch" in sys.argv: gen.PRETOUCH = False
if "slow" in sys.argv: gen_main.FORCE_SLOW = True
for a_ in sys.argv:
    if "=" in a_:
        k_, v_ = a_.split("=")
        setattr(gen_main, k_, int(v_))
if "clock" in sys.argv: gen.CLOCKMODE = {0: 0, 2: 1, 4: 2, 5: 3, 7: 4}
if "clock2" in sys.argv: gen.CLOCKMODE = {0: 0, 1: 1, 2: 2, 3: 3, 4: 4}
if gen_main.ATT or gen_main.P4ST or gen_main.P1ST: gen.COARSE = False
gen_main.gen_fused(A)
gen.COARSE = True
gen.CLOCKMODE = None
A.label("code_end")
A("s_endpgm")
open(sys.argv[1], "w").write(A.text(HEADER))
```

```python
from asmlib import *
import gen
from gen import *
import math, struct
from gen_k2 import f32hex, LOG2E, QSCALE, GC1, GC2, BIGL, NEGBIG, MFLOOR

FORCE_SLOW = False
BULK = 2
ATT = 0
EARLY4 = 1
SLOWST = 0
P1ST = 0
LAST2 = 0
ALIGN = 1
PRIO = 0
P4ST = 0
TOUCH2_ST = 13
MIRROR = 1
DIAGSKIP = 1
WNB = 4
LN_SIG = 3
LN_ST = -1
TLBWARM = 1
XN_SC1 = 1
TOUCH_ST = 6
SPIN_MAX = 1 << 18
KV_SIGNAL_STAGE = 0

def gen_fused(A):
    name = "main_kernel"
    A.begin_kernel(name)
    done = A.newlabel("f_done")
    S_XN, S_WG, S_WU, S_WQ, S_KF, S_VF, S_H, S_CTX = 8, 12, 16, 20, 24, 28, 32, 36
    S_CKV, S_W, S_X, S_KVO = 24, 28, 32, 32
    S_DBG = 76
    sW, sH, sI, sP, sC, sG, sWR = 40, 41, 42, 43, 44, 45, 46
    sSX, sSWF, sSWQ, sM0 = 47, 48, 49, 50
    sFT, sRBF, sRBO = 51, 52, 53
    sBLK, sIT, sNIT = 54, 55, 56
    sKN, sVN = 57, 58
    sM0K, sM0V = 59, 60
    sHB = 61
    sPASS = 62
    sKJ, sVJ = 63, 64
    sB0 = 65
    sT = 66
    sMK = 12
    sSX1, sSW1, sM0X, sM0W = 54, 55, 56, 57
    sWM, sWN = sG, sWR
    A(f"""
    s_cmp_ge_u32 s2, 256
    s_cbranch_scc1 {done}
    s_load_dwordx8 s[56:63], s[0:1], {KA_X}
    s_load_dwordx4 s[64:67], s[0:1], {KA_WUV}
    s_load_dwordx4 s[68:71], s[0:1], {KA_WG}
    s_load_dwordx2 s[100:101], s[0:1], {KA_WD}
    s_load_dwordx4 s[72:75], s[0:1], {KA_DBG}
    s_getpc_b64 s[76:77]
code_here:
    s_lshr_b32 s3, s2, 3
    s_lshl_b32 s3, s3, 11
    v_lshlrev_b32 v247, 7, v0
    v_add_u32 v247, s3, v247
    v_min_u32 v247, code_end - code_here - 4, v247
    v_cmp_gt_u32 vcc, 16, v0
    s_and_saveexec_b64 s[78:79], vcc
    s_cbranch_execz code_skip
    global_load_dword v247, v247, s[76:77]
code_skip:
    s_mov_b64 exec, -1
    v_lshrrev_b32 v1, 6, v0
    v_and_b32 v0, 63, v0
    v_readfirstlane_b32 s{sW}, v1
    s_and_b32 s{sH}, s2, 7
    s_lshl_b32 s{sH}, s{sH}, 2
    s_lshr_b32 s{sI}, s2, 3
    s_and_b32 s{sI}, s{sI}, 3
    s_add_u32 s{sH}, s{sH}, s{sI}                ; head
    s_lshr_b32 s{sI}, s2, 5
    s_and_b32 s{sP}, s{sW}, 1
    s_lshr_b32 s{sC}, s{sW}, 1
    s_lshr_b32 s{sG}, s{sW}, 2
    s_and_b32 s{sWR}, s{sW}, 3
    v_lshlrev_b32 v1, 4, v0
    s_waitcnt lgkmcnt(0)
    s_mov_b32 s4, s74
    s_mov_b32 s5, s75
    s_mov_b32 s6, s66
    s_mov_b32 s7, s67
    """)
    vL16 = 1
    if PRIO:
        lp = A.newlabel("prio")
        A(f"s_cmp_lt_u32 s{sW}, 4")
        A(f"s_cbranch_scc1 {lp}")
        A("s_setprio 1")
        A.label(lp)
    stamp(A, 0, force=bool(P1ST)); stamp(A, 8, True)
    srd(A, S_X, 56, 57, 2048*1024)
    srd(A, S_CKV, 58, 59, 2048*1024)
    srd(A, S_WQ, 60, 61, 512*8192)
    A(f"""
    s_cmp_lt_u32 s{sW}, 4
    s_cselect_b32 s{S_W}, s62, s64
    s_cselect_b32 s{S_W+1}, s63, s65
    s_mov_b32 s{S_W+2}, {512*8192:#x}
    s_mov_b32 s{S_W+3}, 0x00020000
    """)
    srd(A, 36, 62, 63, 512*8192)
    srd(A, 60, 64, 65, 512*8192)
    srd(A, S_WG, 68, 69, 512*3584)
    srd(A, S_WU, 70, 71, 512*3584)
    srd(A, S_DBG, 72, 73, 256)
    sGRP, sXCC, sSLOW = 3, 74, 75
    srd(A, S_XN, 4, 5, 2048*1024, WS_XN)
    sROW = 58
    vLN = 200
    A(f"""
    s_and_b32 s{sGRP}, s2, 7
    s_sub_u32 s{sB0}, 15, s{sI}
    s_getreg_b32 s{sXCC}, hwreg(HW_REG_XCC_ID)
    s_and_b32 s{sXCC}, s{sXCC}, 7
    s_or_b32 s{sXCC}, s{sXCC}, 0x10
    s_cmp_lt_u32 s{sH}, 16
    s_cselect_b32 s{sROW}, s{sI}, s{sB0}
    s_lshl_b32 s{sROW}, s{sROW}, 7
    s_and_b32 s{sT}, s{sH}, 15
    s_lshl_b32 s{sT}, s{sT}, 3
    s_add_u32 s{sROW}, s{sROW}, s{sT}
    s_add_u32 s{sROW}, s{sROW}, s{sW}
    s_lshl_b32 s{sT+1}, s{sROW}, 10
    s_lshl_b32 s{sT}, s{sW}, 10
    s_add_u32 m0, s{sT}, 0xc000
    v_add_u32 v{vLN+4}, 0xc000, v{vL16}
    v_add_u32 v{vLN+4}, s{sT}, v{vLN+4}
    buffer_load_dwordx4 v{vL16}, s[{S_X}:{S_X+3}], s{sT+1} offen lds
    """)
    A("v_mov_b32 v14, 0")
    A("v_mov_b32 v15, 1")
    A(f"""
    s_cmp_lt_u32 s{sH}, 14
    s_cselect_b32 s{sRBF}, s{sI}, s{sB0}
    s_cselect_b32 s{sRBO}, s{sB0}, s{sI}
    s_sub_u32 s{sFT}, s{sH}, 14
    s_cselect_b32 s{sFT}, s{sH}, s{sFT}
    s_cmp_ge_u32 s{sFT}, 14
    s_cselect_b32 s{sFT}, 0, s{sFT}
    """)
    if TLBWARM:
        A(f"s_load_dwordx2 s[70:71], s[0:1], {KA_OUT}")
        srd(A, 32, 4, 5, 0x8000000)
        A(f"""
        v_mov_b32 v246, 0
        s_lshl_b32 s{sT}, s{sH}, 19
        s_lshl_b32 s{sT+1}, s{sI}, 16
        s_add_u32 s{sT}, s{sT}, s{sT+1}
        s_add_u32 s{sT+1}, s{sT}, {WS_KF:#x}
        v_mov_b32 v246, s{sT+1}
        s_add_u32 s{sT+2}, s{sT}, {WS_VF:#x}
        v_writelane_b32 v246, s{sT+2}, 1
        s_mul_i32 s{sT}, s{sRBF}, {4*112*1024}
        s_lshl_b32 s{sT+2}, s{sFT}, 13
        s_add_u32 s{sT}, s{sT}, s{sT+2}
        s_add_u32 s{sT}, s{sT}, {WS_H:#x}
        s_cmp_lt_u32 s{sH}, 28
        s_cselect_b32 s{sT}, s{sT}, s{sT+1}
        v_writelane_b32 v246, s{sT}, 2
        s_lshl_b32 s{sT+2}, s{sH}, 13
        s_lshl_b32 s{sT}, s{sB0}, 20
        s_add_u32 s{sT}, s{sT}, s{sT+2}
        s_add_u32 s{sT}, s{sT}, {WS_CTX:#x}
        v_writelane_b32 v246, s{sT}, 3
        s_lshl_b32 s{sT}, s{sI}, 20
        s_add_u32 s{sT}, s{sT}, s{sT+2}
        s_add_u32 s{sT}, s{sT}, {WS_CTX:#x}
        v_writelane_b32 v246, s{sT}, 4
        s_mul_i32 s{sT}, s2, {23*1024}
        s_add_u32 s{sT}, s{sT}, {WS_WF:#x}
        v_writelane_b32 v246, s{sT}, 5
        s_lshl_b32 s{sT}, s2, 7
        s_add_u32 s{sT}, s{sT}, {WS_SYNC:#x}
        v_writelane_b32 v246, s{sT}, 6
        s_lshr_b32 s{sT}, s{sROW}, 5
        s_lshl_b32 s{sT}, s{sT}, 15
        s_and_b32 s{sT+2}, s{sROW}, 31
        s_lshl_b32 s{sT+2}, s{sT+2}, 4
        s_add_u32 s{sT}, s{sT}, s{sT+2}
        v_writelane_b32 v246, s{sT}, 7
        s_lshr_b32 s{sT}, s{sH}, 3
        s_cmp_lt_u32 s{sT}, 2
        s_cselect_b32 s{sT+1}, s{sI}, s{sB0}
        s_lshl_b32 s{sT+1}, s{sT+1}, 1
        s_and_b32 s{sT}, s{sT}, 1
        s_add_u32 s{sT+1}, s{sT+1}, s{sT}
        s_lshl_b32 s{sT+1}, s{sT+1}, 16
        s_and_b32 s{sT}, s{sH}, 7
        s_lshl_b32 s{sT}, s{sT}, 7
        s_add_u32 s{sT+1}, s{sT+1}, s{sT}
        """)
        ltl = A.newlabel("tlb_skip")
        A(f"""
        s_cmp_lg_u32 s{sW}, 2
        s_cbranch_scc1 {ltl}
        s_mov_b64 exec, 0xff
        buffer_load_dword v245, v246, s[32:35], 0 offen
        s_waitcnt lgkmcnt(0)
        """)
        srd(A, 32, 70, 71, 2048*1024)
        A(f"""
        s_mov_b64 exec, 1
        buffer_load_dword v245, v14, s[32:35], s{sT+1} offen
        s_mov_b64 exec, -1
        """)
        A.label(ltl)
        A("s_waitcnt lgkmcnt(0)")
    vDX, vDX2, vDW, vDW2 = 2, 3, 4, 5
    A(f"""
    v_lshrrev_b32 v6, 2, v0
    v_lshlrev_b32 v6, 10, v6
    v_lshrrev_b32 v7, 4, v0
    v_and_b32 v8, 3, v0
    v_xor_b32 v8, v8, v7
    v_lshlrev_b32 v8, 4, v8
    v_add_u32 v{vDX}, v6, v8
    v_add_u32 v{vDX2}, {16*1024-1024}, v{vDX}
    v_lshlrev_b32 v6, 13, v7
    v_and_b32 v8, 15, v0
    v_lshlrev_b32 v9, 2, v7
    v_xor_b32 v8, v8, v9
    v_lshlrev_b32 v8, 4, v8
    v_add_u32 v{vDW}, v6, v8
    v_add_u32 v{vDW2}, {32768-1024}, v{vDW}
    s_lshl_b32 s{sT}, s{sG}, 1
    s_add_u32 s{sT}, s{sT}, s{sP}
    s_lshl_b32 s{sSX1}, s{sI}, 18
    s_lshl_b32 s{sT+2}, s{sT}, 16                 ; q*64 rows*1024
    s_add_u32 s{sSX1}, s{sSX1}, s{sT+2}
    s_lshl_b32 s{sSW1}, s{sP}, 17                 ; (q&1)*16 rows*8192
    s_lshl_b32 s{sT+2}, s{sH}, 8
    s_add_u32 s{sSW1}, s{sSW1}, s{sT+2}
    s_lshl_b32 s{sM0X}, s{sT}, 12                 ; q*4096
    s_add_u32 s{sM0W}, s{sM0X}, 0x10000
    """)
    def xpieces(st):
        buf = st & 3
        L = []
        for a_ in range(2):
            L += [[f"s_add_u32 m0, s{sM0X}, {buf*16384 + a_*2048}", f"s_add_u32 s{sT+2}, s{sSX1}, {st*64 + a_*32768}",
                   f"buffer_load_dwordx4 v{vDX}, s[{S_CKV}:{S_CKV+3}], s{sT+2} offen lds"],
                  [f"buffer_load_dwordx4 v{vDX2}, s[{S_CKV}:{S_CKV+3}], s{sT+2} offen offset:1024 lds"]]
        return L
    def wpieces(st):
        buf = st % WNB
        L = []
        for a_ in range(2):
            L += [[f"s_add_u32 m0, s{sM0W}, {buf*16384 + a_*2048}", f"s_add_u32 s{sT+3}, s{sSW1}, {st*32*8192 + a_*65536}",
                   f"buffer_load_dwordx4 v{vDW}, s[{S_W}:{S_W+3}], s{sT+3} offen lds"],
                  [f"buffer_load_dwordx4 v{vDW2}, s[{S_W}:{S_W+3}], s{sT+3} offen offset:1024 lds"]]
        return L
    WLA = WNB - 1
    LA = [3, WLA]
    PF = [xpieces, wpieces]
    lpw = A.newlabel("p1_prow"); lpj = A.newlabel("p1_proj")
    A(f"s_cmp_ge_u32 s{sWN}, 2")
    A(f"s_cbranch_scc1 {lpw}")
    for ver in range(2):
        if ver: A.label(lpw)
        for st in range(LA[ver]):
            for p in PF[ver](st):
                for l in p: A(l)
        if not ver: A(f"s_branch {lpj}")
    A.label(lpj)
    def issue0(ver):
        return [("d", st) for st in range(LA[ver]) for _ in range(4)] + [("o", 1)] * (3 if BULK else 0) + ([("o", 0)] * 2 if LN_ST < 0 else [])
    def allowed(log, need):
        last = max(i for i, (k, st_) in enumerate(log) if k == "d" and st_ == need)
        return len(log) - 1 - last
    if BULK == 2:
        A(f"""
        s_lshl_b32 s{sT}, s2, 3
        s_add_u32 s{sT}, s{sT}, s{sW}
        s_lshl_b32 s{sT+1}, s{sT}, 10
        s_lshl_b32 s{sT}, s{sT}, 11
        v_lshlrev_b32 v6, 7, v0
        s_mov_b64 exec, 0xff
        buffer_load_dword v9, v6, s[{S_CKV}:{S_CKV+3}], s{sT+1} offen
        s_mov_b64 exec, 0xffff
        buffer_load_dword v9, v6, s[36:39], s{sT} offen
        buffer_load_dword v9, v6, s[60:63], s{sT} offen
        s_mov_b64 exec, -1
        """)
    if BULK == 1:
        A(f"""
        s_lshr_b32 s{sT}, s2, 3
        s_lshl_b32 s{sT}, s{sT}, 3
        s_add_u32 s{sT}, s{sT}, s{sW}
        s_lshl_b32 s{sT+1}, s{sT}, 13
        v_lshlrev_b32 v6, 7, v0
        buffer_load_dword v9, v6, s[{S_CKV}:{S_CKV+3}], s{sT+1} offen
        v_and_b32 v6, 7, v0
        v_lshlrev_b32 v6, 7, v6
        v_bfe_u32 v7, v0, 3, 1
        v_lshlrev_b32 v7, 13, v7
        v_add_u32 v6, v6, v7
        s_lshl_b32 s{sT+1}, s{sT}, 14
        s_lshl_b32 s{sT}, s{sGRP}, 10
        s_add_u32 s{sT+1}, s{sT+1}, s{sT}
        s_mov_b64 exec, 0xffff
        buffer_load_dword v9, v6, s[36:39], s{sT+1} offen
        buffer_load_dword v9, v6, s[60:63], s{sT+1} offen
        s_mov_b64 exec, -1
        """)
    A(f"""
    s_mov_b32 s{sT}, {WS_KF:#x}
    s_cmp_lt_u32 s{sWN}, 2
    s_cselect_b32 s{sT}, s{sT}, {WS_VF:#x}
    s_add_u32 s{S_KVO}, s4, s{sT}
    s_addc_u32 s{S_KVO+1}, s5, 0
    s_mov_b32 s{S_KVO+2}, {16*1024*1024:#x}
    s_mov_b32 s{S_KVO+3}, 0x00020000
    """)
    vRX = [10, 11]; vRW = [12, 13]; vRW2 = [192, 193]
    A(f"""
    v_and_b32 v6, 31, v0
    v_lshrrev_b32 v7, 5, v0
    v_lshrrev_b32 v8, 2, v6
    v_and_b32 v8, 3, v8
    v_xor_b32 v8, v8, v7
    v_lshlrev_b32 v8, 4, v8
    v_lshlrev_b32 v6, 6, v6
    v_add_u32 v6, v6, v8
    s_lshl_b32 s{sT+2}, s{sWM}, 13
    v_add_u32 v{vRX[0]}, s{sT+2}, v6
    v_xor_b32 v{vRX[1]}, 32, v{vRX[0]}
    v_lshrrev_b32 v6, 5, v0
    v_lshlrev_b32 v6, 11, v6
    v_bfe_u32 v7, v0, 2, 2
    v_lshlrev_b32 v8, 8, v7
    v_add_u32 v6, v6, v8
    v_lshlrev_b32 v8, 6, v7
    v_add_u32 v6, v6, v8
    v_bfe_u32 v8, v0, 4, 1
    v_lshlrev_b32 v8, 5, v8
    v_add_u32 v6, v6, v8
    v_and_b32 v8, 3, v0
    v_lshlrev_b32 v8, 3, v8
    v_add_u32 v198, v6, v8
    s_lshr_b32 s{sT+2}, s{sWN}, 1
    s_lshl_b32 s{sT+2}, s{sT+2}, 13
    s_add_u32 s{sT+2}, s{sT+2}, 0x10000
    v_add_u32 v6, s{sT+2}, v198
    s_and_b32 s{sT+2}, s{sWN}, 1
    s_lshl_b32 s{sT+2}, s{sT+2}, 7
    v_xor_b32 v{vRW[0]}, s{sT+2}, v6
    v_xor_b32 v{vRW[1]}, 64, v{vRW[0]}
    v_add_u32 v{vRW2[0]}, 0x10000, v{vRW[0]}
    v_add_u32 v{vRW2[1]}, 0x10000, v{vRW[1]}
    """)
    f = vLN + 4
    t = vLN + 12
    lq = A.newlabel("ln_w"); lq2 = A.newlabel("ln_j")
    A(f"s_cmp_ge_u32 s{sWN}, 2")
    A(f"s_cbranch_scc1 {lq}")
    A("s_waitcnt vmcnt(%d)" % (12 + (3 if BULK else 0)))
    A(f"s_branch {lq2}")
    A.label(lq)
    A("s_waitcnt vmcnt(%d)" % (4*WLA + (3 if BULK else 0)))
    A.label(lq2)
    A(f"ds_read_b128 {v(vLN,4)}, v{vLN+4}")
    A("s_waitcnt lgkmcnt(0)")
    for i in range(4):
        A(f"v_lshlrev_b32 v{f+2*i}, 16, v{vLN+i}")
        A(f"v_and_b32 v{f+2*i+1}, 0xffff0000, v{vLN+i}")
    A(f"v_add_f32 v{t}, v{f}, v{f+1}")
    for i in range(2, 8):
        A(f"v_add_f32 v{t}, v{t}, v{f+i}")
    wave_allreduce_add(A, t, None, sT+4)
    A(f"v_mul_f32 v{t}, {1.0/512!r}, v{t}")
    A(f"v_sub_f32 v{t+1}, v{f}, v{t}")
    A(f"v_mul_f32 v{t+2}, v{t+1}, v{t+1}")
    for i in range(1, 8):
        A(f"v_sub_f32 v{t+1}, v{f+i}, v{t}")
        A(f"v_fmac_f32 v{t+2}, v{t+1}, v{t+1}")
    wave_allreduce_add(A, t+2, None, sT+4)
    A(f"v_mul_f32 v{t+2}, {1.0/512!r}, v{t+2}")
    round_bf16(A, t)
    round_bf16(A, t+2)
    A(f"v_add_f32 v{t+2}, 0x3727c5ac, v{t+2}")
    round_bf16(A, t+2)
    A(f"v_sqrt_f32 v{t+2}, v{t+2}")
    A("s_nop 0")
    round_bf16(A, t+2)
    A(f"v_rcp_f32 v{t+3}, v{t+2}")
    A("s_nop 0")
    for i in range(8):
        A(f"v_sub_f32 v{f+i}, v{f+i}, v{t}")
        round_bf16(A, f+i)
        A(f"v_mul_f32 v{t+4}, v{f+i}, v{t+3}")
        A(f"v_fma_f32 v{t+5}, -v{t+4}, v{t+2}, v{f+i}")
        A(f"v_fma_f32 v{f+i}, v{t+5}, v{t+3}, v{t+4}")
    for i in range(4):
        A(f"v_cvt_pk_bf16_f32 v{vLN+i}, v{f+2*i}, v{f+2*i+1}")
    A(f"""
    v_lshrrev_b32 v6, 1, v0
    v_lshlrev_b32 v6, 10, v6
    v_and_b32 v7, 1, v0
    v_lshlrev_b32 v7, 9, v7
    v_add_u32 v6, v6, v7
    s_lshr_b32 s{sT+2}, s{sROW}, 5
    s_lshl_b32 s{sT+2}, s{sT+2}, 15
    s_and_b32 s{sT+3}, s{sROW}, 31
    s_lshl_b32 s{sT+3}, s{sT+3}, 4
    s_add_u32 s{sT+2}, s{sT+2}, s{sT+3}
    """)
    A(f"v_mov_b32 v{vLN+4}, v6")
    A(f"s_mov_b32 s{sROW}, s{sT+2}")
    def ln_stores():
        srd(A, sT+2, 4, 5, 256*128, WS_SYNC)
        A(f"""
        s_lshl_b32 s{sT+6}, s2, 7
        s_cmp_eq_u32 s{sW}, 1
        s_cselect_b32 s{sT+6}, s{sT+6}, 0x7ff00000
        s_mov_b64 exec, 1
        buffer_store_dword v14, v14, s[{sT+2}:{sT+5}], s{sT+6} offen sc0 sc1
        s_mov_b64 exec, -1
        buffer_store_dwordx4 v[{vLN}:{vLN+3}], v{vLN+4}, s[{S_XN}:{S_XN+3}], s{sROW} offen sc0 sc1
        """)
    if LN_ST < 0: ln_stores()
    vST, vSA, vSB = 199, 244, 245
    A(f"v_lshlrev_b32 v{vSA}, 2, v0")
    def state_store(val_sgpr, vtmp, vzero):
        A(f"v_mov_b32 v{vtmp}, s{val_sgpr}")
        A("s_mov_b64 exec, 1")
        A(f"buffer_store_byte v{vtmp}, v{vzero}, s[{S_DBG}:{S_DBG+3}], s2 offen sc0 sc1")
        A("s_mov_b64 exec, -1")
    def state_load():
        A(f"buffer_load_dword v{vST}, v{vSA}, s[{S_DBG}:{S_DBG+3}], 0 offen sc1")
    def peers_byte():
        A(f"s_and_b32 s{sT+4}, s2, 3")
        A(f"s_lshl_b32 s{sT+4}, s{sT+4}, 3")
        A(f"v_lshrrev_b32 v{vSB}, s{sT+4}, v{vST}")
        A(f"s_bfe_u32 s{sT+4}, s2, 0x30002")
        A(f"s_mov_b32 s{sT+2}, 0x01010101")
        A(f"s_mov_b32 s{sT+3}, 0x01010101")
        A(f"s_lshl_b64 s[{sT+2}:{sT+3}], s[{sT+2}:{sT+3}], s{sT+4}")
    def state_wait(kind):
        lok = A.newlabel("fl_ok"); lsp = A.newlabel("fl_spin")
        A(f"s_mov_b32 s{sT+7}, 0")
        A.label(lsp)
        if kind in (0, 3):
            bit = "0x10101010" if kind == 0 else "0x80808080"
            A(f"""
            v_and_b32 v{vSB}, {bit}, v{vST}
            v_cmp_eq_u32 vcc, {bit}, v{vSB}
            s_lshl_b32 s{sT+4}, s{sI}, 3
            s_lshr_b64 s[{sT+2}:{sT+3}], vcc, s{sT+4}
            s_and_b32 s{sT+2}, s{sT+2}, 0xff
            s_cmp_eq_u32 s{sT+2}, 0xff
            """)
        elif kind == 2:
            A(f"""
            v_and_b32 v{vSB}, 0x40404040, v{vST}
            v_cmp_eq_u32 vcc, 0x40404040, v{vSB}
            s_cmp_eq_u64 vcc, -1
            """)
        else:
            peers_byte()
            A(f"""
            v_and_b32 v{vSB}, 0x20, v{vSB}
            v_cmp_ne_u32 vcc, 0, v{vSB}
            s_and_b64 s[{sT+4}:{sT+5}], vcc, s[{sT+2}:{sT+3}]
            s_cmp_eq_u64 s[{sT+4}:{sT+5}], s[{sT+2}:{sT+3}]
            """)
        A(f"""
        s_cbranch_scc1 {lok}
        s_add_u32 s{sT+7}, s{sT+7}, 1
        s_cmp_ge_u32 s{sT+7}, {SPIN_MAX}
        s_cbranch_scc1 {lok}
        s_sleep 16
        """)
        state_load()
        A("s_waitcnt vmcnt(0)")
        A(f"s_branch {lsp}")
        A.label(lok)
    def placement_eval():
        peers_byte()
        A(f"""
        v_and_b32 v{vSB}, 0x17, v{vSB}
        v_cmp_eq_u32 vcc, s{sXCC}, v{vSB}
        s_and_b64 s[{sT+4}:{sT+5}], vcc, s[{sT+2}:{sT+3}]
        s_cmp_eq_u64 s[{sT+4}:{sT+5}], s[{sT+2}:{sT+3}]
        s_cselect_b32 s{sSLOW}, 0, 1
        """)
        if FORCE_SLOW: A(f"s_mov_b32 s{sSLOW}, 1")
    ACC = 64
    FR = [16, 40]
    def reads(ks):
        st, kp = ks >> 1, ks & 1
        buf = st & 3
        fr = FR[ks & 1]
        L = []
        wb = st % WNB
        for nb in range(2):
            for tt in range(2):
                L.append(f"ds_read_b64_tr_b16 {v(fr+16+nb*4+tt*2,2)}, v{(vRW if wb < 4 else vRW2)[nb]} offset:{(wb & 3)*16384 + kp*4096 + tt*1024}")
        for kb in range(4):
            L.append(f"ds_read_b128 {v(fr+kb*4,4)}, v{vRX[kp]} offset:{buf*16384 + kb*2048}")
        return L
    lblV = A.newlabel("p1_v"); lblE = A.newlabel("p1_epi")
    stamp(A, 1)
    A(f"""
    s_lshl_b32 s{sT+2}, s2, 3
    s_add_u32 s{sT+2}, s{sT+2}, s{sW}
    s_lshl_b32 s60, s{sT+2}, 11
    s_mul_i32 s61, s{sT+2}, 896
    v_lshlrev_b32 v8, 7, v0
    """)
    def touch2(S4, S175a, S175b, dst, va):
        A("s_mov_b64 exec, 0xffff")
        A(f"buffer_load_dword v{dst}, v{va}, s[{S4}:{S4+3}], s60 offen")
        A("s_mov_b64 exec, 0x7f")
        A(f"buffer_load_dword v{dst}, v{va}, s[{S175a}:{S175a+3}], s61 offen")
        if S175b: A(f"buffer_load_dword v{dst}, v{va}, s[{S175b}:{S175b+3}], s61 offen")
        A("s_mov_b64 exec, -1")
    A(f"s_cmp_ge_u32 s{sWN}, 2")
    A(f"s_cbranch_scc1 {lblV}")
    for ver in range(2):
        if ver == 1: A.label(lblV)
        log = issue0(ver)
        A("s_waitcnt vmcnt(%d)" % allowed(log, 1))
        A("s_barrier")
        if P1ST and gen.STAMPS: A("s_memtime s[82:83]")
        for r in reads(0): A(r)
        for st in range(16):
            if st > 0:
                n_out = allowed(log, st + 1) if st < 15 else None
                if st == LN_SIG:
                    n_out = min(n_out, len(log) - 1 - max(i for i, o in enumerate(log) if o == ("o", 0)))
                if n_out is not None:
                    A(f"s_waitcnt vmcnt({n_out})")
                    A("s_barrier")
            if P1ST and gen.STAMPS and st in (4, 8, 12): A(f"s_memtime s[{82 + st//2}:{83 + st//2}]")
            pcs = PF[ver](st + LA[ver]) if st + LA[ver] < 16 else []
            log += [("d", st + LA[ver])] * len(pcs)
            if st == LN_ST + 1:
                pass
            if st == LN_SIG and ver == 0:
                lsk = A.newlabel("p1_nf")
                A(f"s_cmp_lg_u32 s{sW}, 0")
                A(f"s_cbranch_scc1 {lsk}")
                state_store(sXCC, 15, 14)
                A.label(lsk)
            if st == TOUCH_ST and gen.PRETOUCH:
                touch2(S_WQ, S_WG, S_WU, 9, 8)
            if st == TOUCH2_ST:
                A(f"""
                s_lshl_b32 s{sT+4}, s{sI}, 3
                s_add_u32 s{sT+4}, s{sT+4}, s{sW}
                s_lshl_b32 s{sT+5}, s{sT+4}, 16
                s_lshl_b32 s{sT+6}, s{sH}, 8
                s_add_u32 s{sT+5}, s{sT+5}, s{sT+6}
                s_mul_i32 s{sT+4}, s{sT+4}, {8*3584}
                s_lshl_b32 s{sT+6}, s{sFT}, 8
                s_add_u32 s{sT+4}, s{sT+4}, s{sT+6}
                v_bfe_u32 v6, v0, 1, 3
                v_and_b32 v7, 1, v0
                v_lshlrev_b32 v7, 7, v7
                v_mul_u32_u24 v8, 3584, v6
                v_add_u32 v8, v8, v7
                v_lshlrev_b32 v6, 13, v6
                v_add_u32 v6, v6, v7
                s_mov_b64 exec, 0xffff
                buffer_load_dword v9, v6, s[{S_WQ}:{S_WQ+3}], s{sT+5} offen
                buffer_load_dword v9, v8, s[{S_WG}:{S_WG+3}], s{sT+4} offen
                buffer_load_dword v9, v8, s[{S_WU}:{S_WU+3}], s{sT+4} offen
                s_mov_b64 exec, -1
                """)
            if st == 14:
                state_load()
            for kp in range(2):
                ks = 2*st + kp
                fr = FR[ks & 1]
                nxt = reads(ks + 1) if ks + 1 < 32 else []
                idx = 0
                for kb in range(4):
                    for nb in range(2):
                        if nb == 0:
                            A(f"s_waitcnt lgkmcnt({min((8 - (4 + kb + 1)) + idx, 15)})")
                        d = ACC + (kb*2+nb)*16
                        xa, wa = fr + kb*4, fr + 16 + nb*4
                        c = None if ks == 0 else d
                        if ver == 0: mfma(A, d, wa, xa, c)
                        else:        mfma(A, d, xa, wa, c)
                        if idx < len(nxt):
                            A(nxt[idx]); idx += 1
                        if pcs and (kb*2+nb) % 4 == 1:
                            for l in pcs.pop(0): A(l)
            if st == LN_ST:
                ln_stores()
                log += [("o", 0)] * 2
        if ver == 0: A(f"s_branch {lblE}")
    A.label(lblE)
    stamp(A, 2)
    if P1ST and gen.STAMPS: A("s_memtime s[90:91]"); A("s_memtime s[92:93]"); A("s_memtime s[94:95]")
    vDF, vDQ = 192, 193
    vRXl, vRXh, vRWl, vRWh = 194, 195, 196, 197
    STG = 40960
    A(f"""
    v_lshrrev_b32 v7, 4, v0
    v_and_b32 v8, 15, v0
    v_lshlrev_b32 v9, 2, v7
    v_xor_b32 v8, v8, v9
    v_lshlrev_b32 v8, 4, v8
    v_mul_u32_u24 v6, 3584, v7
    v_add_u32 v{vDF}, v6, v8
    v_lshlrev_b32 v6, 13, v7
    v_add_u32 v{vDQ}, v6, v8
    s_cmp_lt_u32 s{sW}, 4
    s_cselect_b32 s{sT}, s{sRBF}, s{sRBO}
    s_lshl_b32 s{sT}, s{sT}, 2
    s_add_u32 s{sT}, s{sT}, s{sWR}
    s_lshl_b32 s{sSX}, s{sT}, 15
    s_mul_i32 s{sSWF}, s{sW}, {4*3584}
    s_lshl_b32 s{sT}, s{sFT}, 8
    s_add_u32 s{sSWF}, s{sSWF}, s{sT}
    s_lshl_b32 s{sSWQ}, s{sW}, 15
    s_lshl_b32 s{sT}, s{sH}, 8
    s_add_u32 s{sSWQ}, s{sSWQ}, s{sT}
    s_lshl_b32 s{sM0}, s{sW}, 10
    s_lshl_b32 s{sNIT}, s{sW}, 11
    s_lshl_b32 s{sT}, s{sP}, 12
    v_add_u32 v{vRXl}, s{sT}, v{vL16}
    v_add_u32 v{vRXh}, {2*STG}, v{vRXl}
    s_lshl_b32 s{sT}, s{sC}, 6
    v_xor_b32 v6, s{sT}, v198
    v_add_u32 v{vRWl}, 16384, v6
    v_add_u32 v{vRWh}, {2*STG}, v{vRWl}
    s_waitcnt vmcnt(0)
    s_barrier
    """)
    state_wait(0)
    if SLOWST and gen.STAMPS: A(f"s_mov_b32 s94, s{sT+7}")
    placement_eval()
    if SLOWST and gen.STAMPS: A(f"s_mov_b32 s92, s{sSLOW}")
    XNSC = ' sc1' if XN_SC1 else ''
    def gpieces(st):
        b = (st & 3) * STG
        return [
         [f"s_add_u32 m0, s{sNIT}, {b}", f"s_add_u32 s{sT+1}, s{sSX}, {st*2048}",
          f"buffer_load_dwordx4 v{vL16}, s[{S_XN}:{S_XN+3}], s{sT+1} offen{XNSC} lds"],
         [f"buffer_load_dwordx4 v{vL16}, s[{S_XN}:{S_XN+3}], s{sT+1} offen offset:1024{XNSC} lds"],
         [f"s_add_u32 m0, s{sM0}, {b+16384}", f"s_add_u32 s{sT+2}, s{sSWF}, {st*32*3584}",
          f"buffer_load_dwordx4 v{vDF}, s[{S_WG}:{S_WG+3}], s{sT+2} offen lds"],
         [f"s_add_u32 m0, s{sM0}, {b+24576}", f"s_add_u32 s{sT+3}, s{sSWQ}, {st*32*8192}",
          f"buffer_load_dwordx4 v{vDF}, s[{S_WU}:{S_WU+3}], s{sT+2} offen lds"],
         [f"s_add_u32 m0, s{sM0}, {b+32768}", "s_nop 0",
          f"buffer_load_dwordx4 v{vDQ}, s[{S_WQ}:{S_WQ+3}], s{sT+3} offen lds"]]
    for st in range(3):
        for p in gpieces(st):
            for l in p: A(l)
    A(f"""
    s_lshl_b32 s{sT+4}, s{sH}, 19
    s_lshl_b32 s{sT+5}, s{sI}, 16
    s_add_u32 s{sT+4}, s{sT+4}, s{sT+5}
    s_lshl_b32 s{sT+5}, s{sWM}, 15
    s_add_u32 s{sT+4}, s{sT+4}, s{sT+5}
    s_and_b32 s{sT+5}, s{sWN}, 1
    s_lshl_b32 s{sT+5}, s{sT+5}, 12
    s_add_u32 s{sT+4}, s{sT+4}, s{sT+5}
    """)
    lwt = A.newlabel("p1e_wt"); lje = A.newlabel("p1e_join")
    A(f"s_cmp_lg_u32 s{sSLOW}, 0")
    A(f"s_cbranch_scc1 {lwt}")
    for wt in range(2):
        if wt: A.label(lwt)
        fl = " sc0 sc1" if wt else ""
        for kb in range(4):
            for nb in range(2):
                d = ACC + (kb*2+nb)*16
                p = 200 + ((kb*2+nb) & 3) * 8
                for i in range(8):
                    A(f"v_cvt_pk_bf16_f32 v{p+i}, v{d+2*i}, v{d+2*i+1}")
                A(f"buffer_store_dwordx4 {v(p,4)}, v{vL16}, s[{S_KVO}:{S_KVO+3}], s{sT+4} offen offset:{nb*2048}{fl}")
                A(f"buffer_store_dwordx4 {v(p+4,4)}, v{vL16}, s[{S_KVO}:{S_KVO+3}], s{sT+4} offen offset:{nb*2048+1024}{fl}")
            if kb < 3:
                A(f"s_add_u32 s{sT+4}, s{sT+4}, 8192")
        if not wt: A(f"s_branch {lje}")
    A.label(lje)
    stamp(A, 3)
    srd(A, S_KF, 4, 5, 16*1024*1024, WS_KF)
    srd(A, S_VF, 4, 5, 16*1024*1024, WS_VF)
    srd(A, S_H, 4, 5, 64*112*1024, WS_H)
    srd(A, S_CTX, 4, 5, 16*1024*1024, WS_CTX)
    FR = [8, 36]
    XOFF = [0, 2048, 8192, 10240]
    def greads(ks):
        st, kp = ks >> 1, ks & 1
        buf = st & 3
        fr = FR[ks & 1]
        rx = vRXl if buf < 2 else vRXh
        rw = vRWl if buf < 2 else vRWh
        bo = (buf & 1) * STG
        def wr(sub):
            return [f"ds_read_b64_tr_b16 {v(fr+sub*4+tt*2,2)}, v{rw} offset:{bo + sub*8192 + kp*4096 + tt*1024}" for tt in range(2)]
        def xr(i):
            return [f"ds_read_b128 {v(fr+12+i*4,4)}, v{rx} offset:{bo + XOFF[i] + kp*1024}"]
        return wr(0) + xr(0) + xr(1) + wr(1) + wr(2) + xr(2) + xr(3)
    MF = [(0, 0, 0, 3), (1, 0, 1, 4), (2, 1, 0, 6), (3, 1, 1, 6), (4, 2, 0, 8), (5, 2, 1, 8), (6, 2, 2, 9), (7, 2, 3, 10)]
    def relayout_loads():
        srd(A, 24, 6, 7, 4096*1024)
        srd(A, 28, 100, 101, 1792*1024)
        A(f"""
        v_and_b32 v2, 31, v0
        v_lshlrev_b32 v2, 1, v2
        v_lshrrev_b32 v3, 5, v0
        v_lshlrev_b32 v3, 12, v3
        v_add_u32 v2, v2, v3
        v_add_u32 v3, 8192, v2                       ; +8 rows
        s_mul_i32 s{sT}, s2, 23
        s_mul_i32 s{sT+1}, s{sW}, 3
        s_add_u32 s{sBLK}, s{sT}, s{sT+1}
        """)
        for i in range(3):
            lwd = A.newlabel("rl_wd"); lj = A.newlabel("rl_j")
            R = 220 + 8*i
            A(f"""
            s_add_u32 s{sT}, s{sBLK}, {i}
            s_lshr_b32 s{sT+1}, s{sT}, 4
            s_and_b32 s{sT}, s{sT}, 15
            s_lshl_b32 s{sT}, s{sT}, 6
            s_cmp_ge_u32 s{sT+1}, 256
            s_cbranch_scc1 {lwd}
            s_lshl_b32 s{sT+1}, s{sT+1}, 14
            s_add_u32 s{sT}, s{sT}, s{sT+1}
            """)
            for S_ in (24, 28):
                if S_ == 28:
                    A.label(lwd)
                    A(f"s_sub_u32 s{sT+1}, s{sT+1}, 256")
                    A(f"s_lshl_b32 s{sT+1}, s{sT+1}, 14")
                    A(f"s_add_u32 s{sT}, s{sT}, s{sT+1}")
                for j in range(8):
                    va = 2 if j < 4 else 3
                    A(f"buffer_load_ushort v{R + j}, v{va}, s[{S_}:{S_+3}], s{sT} offen offset:{(j & 3)*1024}")
                if S_ == 24: A(f"s_branch {lj}")
            A.label(lj)

        srd(A, S_KF, 4, 5, 16*1024*1024, WS_KF)
        srd(A, S_VF, 4, 5, 16*1024*1024, WS_VF)
    A(f"v_mov_b32 v4, 0")
    A(f"v_mov_b32 v5, 1")
    A("s_waitcnt vmcnt(21)")
    A("s_barrier")
    for r in greads(0): A(r)
    for st in range(16):
        if st > 0:
            n_out = 5 if st < 14 else (0 if st == 14 else None)
            if st == 1: n_out = 21
            if n_out is not None:
                A(f"s_waitcnt vmcnt({n_out})")
                A("s_barrier")
        if st == 2:
            lsk = A.newlabel("p2_ns")
            A(f"s_cmp_lg_u32 s{sW}, 7")
            A(f"s_cbranch_scc1 {lsk}")
            A(f"s_or_b32 s{sT+4}, s{sXCC}, 0x20")
            state_store(sT+4, 5, 4)
            A.label(lsk)
        pcs = gpieces(st + 3) if st + 3 < 16 else []
        if st == 14:
            state_load()
            relayout_loads()
        for kp in range(2):
            ks = 2*st + kp
            fr = FR[ks & 1]
            nxt = greads(ks + 1) if ks + 1 < 32 else []
            idx = 0
            prev_need = 0
            for (acc, sub, xi, need) in MF:
                if need > prev_need:
                    A(f"s_waitcnt lgkmcnt({min((10 - need) + idx, 15)})")
                    prev_need = need
                d = ACC + acc*16
                mfma(A, d, fr + sub*4, fr + 12 + xi*4, None if ks == 0 else d)
                for _ in range(2 if acc in (0, 1) else 1):
                    if idx < len(nxt):
                        A(nxt[idx]); idx += 1
                if pcs and (kp*8 + acc) % 3 == 1:
                    for l in pcs.pop(0): A(l)
        assert not pcs
    stamp(A, 4)
    A(f"""
    s_waitcnt vmcnt(24)
    s_barrier
    v_mov_b32 v14, 0
    """)
    A(f"""
    s_mul_i32 s{sT}, s{sG}, {3 if MIRROR else 0}
    s_xor_b32 s{sWR}, s{sWR}, s{sT}
    s_lshl_b32 s{sT}, s{sG}, 1
    s_sub_u32 s{sNIT}, s{sWR}, s{sT}
    s_add_u32 s{sNIT}, s{sNIT}, 1
    s_lshl_b32 s{sHB}, s{sH}, 19
    s_lshl_b32 s{sT}, s{sW}, 12
    s_add_u32 s{sHB}, s{sHB}, s{sT}
    s_lshl_b32 s{sM0}, s{sW}, 12
    s_mov_b32 s{sKJ}, 0
    s_mov_b32 s{sVJ}, 0
    s_mov_b32 s{sKN}, s{sHB}
    s_mov_b32 s{sVN}, s{sHB}
    s_mov_b32 s{sM0K}, s{sM0}
    s_add_u32 s{sM0V}, s{sM0}, 65536
    """)
    sDS = 72
    def kv_issue(isV, defer=False):
        sJ = sVJ if isV else sKJ
        sN = sVN if isV else sKN
        sMM = sM0V if isV else sM0K
        S = S_VF if isV else S_KF
        sD = sDS + (1 if isV else 0)
        SL = [f"s_mov_b32 m0, s{sMM}", f"s_mov_b32 s{sD}, s{sN}", f"s_xor_b32 s{sMM}, s{sMM}, 32768",
              f"s_add_u32 s{sN}, s{sN}, 32768", f"s_cmp_eq_u32 s{sJ}, s{sB0}", f"s_cselect_b32 s{sN}, s{sHB}, s{sN}",
              f"s_add_u32 s{sJ}, s{sJ}, 1"]
        L = [f"buffer_load_dwordx4 v{vL16}, s[{S}:{S+3}], s{sD} offen offset:{q*1024} lds" for q in range(4)]
        if defer: return SL, L
        for l in SL: A(l)
        for l in L: A(l)
    state_wait(1)
    kv_issue(False)
    kv_issue(True)
    kv_issue(False)
    T = 200
    A(f"v_mov_b32 v{T+16}, {f32hex(QSCALE)}")
    A(f"""
    s_lshl_b32 s{sT}, s{sP}, 14                   ; 2p*8192
    s_lshl_b32 s{sT+1}, s{sC}, 11                 ; 2c*1024
    s_add_u32 s{sT}, s{sT}, s{sT+1}
    s_add_u32 s{sT}, s{sT}, {96*1024}
    v_add_u32 v6, s{sT}, v{vL16}
    """)
    for qi in range(4):
        d = ACC + (4+qi)*16
        for r in range(0, 16, 2):
            A(f"v_pk_mul_f32 {v(d+r,2)}, {v(d+r,2)}, {v(T+16,2)} op_sel_hi:[1,0]")
        p = T + (qi & 1)*8
        for i in range(8):
            A(f"v_cvt_pk_bf16_f32 v{p+i}, v{d+2*i}, v{d+2*i+1}")
        xb_off = [0, 8192, 32768, 40960][qi]
        A(f"ds_write_b128 v6, {v(p,4)} offset:{xb_off}")
        A(f"ds_write_b128 v6, {v(p+4,4)} offset:{xb_off+1024}")
    A("s_waitcnt lgkmcnt(0)")
    A(f"v_mov_b32 v{T+8}, {f32hex(GC1)}")
    A(f"v_mov_b32 v{T+9}, {f32hex(GC2)}")
    A(f"v_mov_b32 v{T+10}, 1.0")
    A(f"""
    s_lshl_b32 s{sT}, s{sRBF}, 2
    s_lshl_b32 s{sT+1}, s{sP}, 1
    s_add_u32 s{sT}, s{sT}, s{sT+1}
    s_mul_i32 s{sT}, s{sT}, {112*1024}
    s_lshl_b32 s{sT+1}, s{sFT}, 13
    s_add_u32 s{sT}, s{sT}, s{sT+1}
    s_lshl_b32 s{sT+1}, s{sC}, 11
    s_add_u32 s{sT}, s{sT}, s{sT+1}
    s_cmp_lt_u32 s{sH}, 28
    s_cselect_b32 s{sT}, s{sT}, 0x7ff00000
    """)
    for j in range(2):
        g0 = ACC + j*16
        u0 = ACC + (2+j)*16
        for r0 in range(0, 16, 8):
            prs = [(g0 + r, u0 + r, T + 12 + (r - r0)) for r in range(r0, r0 + 8, 2)]
            for x, u, t in prs: A(f"v_pk_mul_f32 {v(t,2)}, {v(x,2)}, {v(x,2)}")
            for x, u, t in prs: A(f"v_pk_fma_f32 {v(t,2)}, {v(t,2)}, {v(T+8,2)}, {v(T+8,2)} op_sel:[0,1,0] op_sel_hi:[1,1,0]")
            for x, u, t in prs: A(f"v_pk_mul_f32 {v(t,2)}, {v(t,2)}, {v(x,2)}")
            for x, u, t in prs:
                A(f"v_exp_f32 v{t}, v{t}"); A(f"v_exp_f32 v{t+1}, v{t+1}")
            for x, u, t in prs: A(f"v_pk_mul_f32 {v(x,2)}, {v(x,2)}, {v(u,2)}")
            for x, u, t in prs: A(f"v_pk_add_f32 {v(t,2)}, {v(t,2)}, {v(T+10,2)} op_sel_hi:[1,0]")
            for x, u, t in prs:
                A(f"v_rcp_f32 v{t}, v{t}"); A(f"v_rcp_f32 v{t+1}, v{t+1}")
            A("s_nop 0")
            for x, u, t in prs: A(f"v_pk_mul_f32 {v(x,2)}, {v(x,2)}, {v(t,2)}")
        p = T
        for i in range(8):
            A(f"v_cvt_pk_bf16_f32 v{p+i}, v{g0+2*i}, v{g0+2*i+1}")
        A(f"buffer_store_dwordx4 {v(p,4)}, v{vL16}, s[{S_H}:{S_H+3}], s{sT} offen sc0 sc1")
        A(f"buffer_store_dwordx4 {v(p+4,4)}, v{vL16}, s[{S_H}:{S_H+3}], s{sT} offen offset:1024 sc0 sc1")
        if j == 0:
            A(f"s_add_u32 s{sT}, s{sT}, {112*1024}")
    stamp(A, 5)
    srd(A, 12, 4, 5, 5888*1024, WS_WF)
    A(f"""
    s_lshl_b32 s{sT}, s{sBLK}, 10
    s_add_u32 s{sT+1}, s{sT}, 2048
    s_cmp_eq_u32 s{sW}, 7
    s_cselect_b32 s{sT+1}, 0x7ff00000, s{sT+1}
    s_waitcnt vmcnt(16)
    """)
    for q in range(12):
        A(f"v_lshl_or_b32 v{32+q}, v{221+2*q}, 16, v{220+2*q}")
    A(f"""
    buffer_store_dwordx4 v[32:35], v{vL16}, s[12:15], s{sT} offen sc0 sc1
    buffer_store_dwordx4 v[36:39], v{vL16}, s[12:15], s{sT} offen offset:1024 sc0 sc1
    buffer_store_dwordx4 v[40:43], v{vL16}, s[12:15], s{sT+1} offen sc0 sc1
    """)
    vKA, vVA, vL, vM, vTMP, vD = 2, 3, 4, 5, 6, 7
    F = 8; Q = 40; Q2 = 72; S = 104; NM = 136; P = 152; O = 168; T = 232
    A(f"""
    s_waitcnt lgkmcnt(0)
    s_barrier
    s_cmp_eq_u32 s{sRBF}, s{sB0}
    s_cselect_b32 s{sT}, 0, 32768
    s_cselect_b32 s{sT+1}, 32768, 0
    s_lshl_b32 s{sT+2}, s{sWR}, 13
    s_add_u32 s{sT+2}, s{sT+2}, {96*1024}
    s_add_u32 s{sT}, s{sT}, s{sT+2}
    s_add_u32 s{sT+1}, s{sT+1}, s{sT+2}
    v_add_u32 v{vTMP}, s{sT}, v{vL16}
    v_add_u32 v{vD}, s{sT+1}, v{vL16}
    """)
    for ks in range(8):
        A(f"ds_read_b128 {v(Q+4*ks,4)}, v{vTMP} offset:{ks*1024}")
    for ks in range(8):
        A(f"ds_read_b128 {v(Q2+4*ks,4)}, v{vD} offset:{ks*1024}")
    A(f"""
    s_waitcnt lgkmcnt(0)
    v_and_b32 v{vD}, 31, v0
    v_lshrrev_b32 v{vTMP}, 5, v0
    v_lshlrev_b32 v{vTMP}, 2, v{vTMP}
    v_sub_u32 v{vD}, v{vD}, v{vTMP}
    s_lshl_b32 s{sT}, s{sWR}, 5
    s_lshl_b32 s{sT+1}, s{sG}, 6
    s_sub_u32 s{sT}, s{sT}, s{sT+1}
    v_add_u32 v{vD}, s{sT}, v{vD}
    s_mov_b32 s{sPASS}, 0
    s_mov_b32 s{sBLK}, s{sB0}
    s_lshl_b32 s{sT}, s{sG}, 14
    v_add_u32 v{vKA}, s{sT}, v{vL16}              ; K(0) slot 0
    s_add_u32 s{sT}, s{sT}, {65536+32768}
    v_add_u32 v{vVA}, s{sT}, v{vL16}
    """)
    A("s_waitcnt vmcnt(8)")
    A("s_barrier")

    def mask_ops(kb):
        L = []
        for r0 in range(0, 16, 4):
            for j in range(4):
                r = r0 + j
                c = 32*kb + 8*(r >> 2) + (r & 3)
                L.append(f"v_cmp_gt_i32 s[{sMK+2*j}:{sMK+2*j+1}], {c}, v{vD}")
            for j in range(4):
                r = r0 + j
                L.append(f"v_cndmask_b32 v{S+16*kb+r}, v{S+16*kb+r}, v{T+15}, s[{sMK+2*j}:{sMK+2*j+1}]")
        return L
    def max_ops(kb, dst):
        x = S + 16*kb
        L = [f"v_max3_f32 v{dst}, v{x}, v{x+1}, v{x+2}"]
        for r in range(3, 15, 2):
            L.append(f"v_max3_f32 v{dst}, v{dst}, v{x+r}, v{x+r+1}")
        L.append(f"v_max_f32 v{dst}, v{dst}, v{x+15}")
        L.append(f"v_mov_b32 v{dst+1}, v{dst}")
        L.append("s_nop 1")
        L.append(f"v_permlane32_swap_b32 v{dst}, v{dst+1}")
        L.append("s_nop 1")
        L.append(f"v_max_f32 v{dst}, v{dst}, v{dst+1}")
        return L
    LS = [T+12, vL]
    def sm_ops(kb):
        x = S + 16*kb
        src, dst, t1 = LS[1-kb], LS[kb], T+kb
        L = []
        for r in range(0, 16, 2):
            L.append(f"v_exp_f32 v{x+r}, v{x+r}")
            L.append(f"v_exp_f32 v{x+r+1}, v{x+r+1}")
            if r >= 2:
                q = r - 2
                if q == 0:
                    L.append(f"v_add_f32 v{dst}, v{src}, v{x}")
                    L.append(f"v_cvt_pk_bf16_f32 v{P+8*kb}, v{x}, v{x+1}")
                elif q == 2:
                    L.append(f"v_add_f32 v{dst}, v{dst}, v{x+q}")
                    L.append(f"v_add_f32 v{t1}, v{x+1}, v{x+q+1}")
                    L.append(f"v_cvt_pk_bf16_f32 v{P+8*kb+q//2}, v{x+q}, v{x+q+1}")
                else:
                    L.append(f"v_add_f32 v{dst}, v{dst}, v{x+q}")
                    L.append(f"v_add_f32 v{t1}, v{t1}, v{x+q+1}")
                    L.append(f"v_cvt_pk_bf16_f32 v{P+8*kb+q//2}, v{x+q}, v{x+q+1}")
        L.append(f"v_add_f32 v{dst}, v{dst}, v{x+14}")
        L.append(f"v_add_f32 v{t1}, v{t1}, v{x+15}")
        L.append(f"v_cvt_pk_bf16_f32 v{P+8*kb+7}, v{x+14}, v{x+15}")
        L.append(f"v_add_f32 v{dst}, v{dst}, v{t1}")
        return L
    rescues = []
    def check(kb, masked, it_back):
        lr = A.newlabel("resc"); lb = A.newlabel("back")
        A(f"v_cmp_nle_f32 vcc, v{LS[kb]}, v{T+14}")
        A(f"s_cbranch_vccnz {lr}")
        A.label(lb)
        rescues.append((lr, lb, kb, masked, it_back))
    def emit_rescue(lr, lb, kb, masked, it_back):
        A.label(lr)
        A("s_nop 15")
        A("s_nop 15")
        A(f"""
        s_sub_u32 s{sT}, s{sIT}, {it_back}
        s_lshl_b32 s{sT}, s{sT}, 1
        s_add_u32 s{sT}, s{sT}, s{sG}
        s_lshl_b32 s{sT}, s{sT}, 14
        s_lshl_b32 s{sT+1}, s{sH}, 19
        s_add_u32 s{sT}, s{sT}, s{sT+1}
        s_add_u32 s{sT}, s{sT}, {kb*8192}
        s_add_u32 s{sT+1}, s{sT}, 4096
        """)
        for ks in range(8):
            so = sT if ks < 4 else sT+1
            A(f"buffer_load_dwordx4 {v(T+4,4)}, v{vL16}, s[{S_KF}:{S_KF+3}], s{so} offen offset:{(ks&3)*1024}")
            A("s_waitcnt vmcnt(0)")
            mfma(A, S+16*kb, T+4, Q+4*ks, NM if ks == 0 else S+16*kb)
            A("s_nop 7")
        A("s_nop 15")
        if masked:
            for op in mask_ops(kb): A(op)
        for op in max_ops(kb, T+2): A(op)
        A(f"v_max_f32 v{T+2}, 0, v{T+2}")
        A(f"v_sub_f32 v{T+3}, 0, v{T+2}")
        A(f"v_exp_f32 v{T+3}, v{T+3}")
        for r in range(16):
            A(f"v_sub_f32 v{NM+r}, v{NM+r}, v{T+2}")
        for r in range(32):
            A(f"v_sub_f32 v{S+r}, v{S+r}, v{T+2}")
        for r in range(64):
            A(f"v_mul_f32 v{O+r}, v{O+r}, v{T+3}")
        A(f"v_mul_f32 v{LS[1-kb]}, v{LS[1-kb]}, v{T+3}")
        for op in sm_ops(kb): A(op)
        A("s_nop 1")
        A(f"s_branch {lb}")

    def ph_items(ph):
        L = []
        for i in range(8):
            if ph in ("A", "C"):
                kb = 0 if ph == "A" else 1
                rd = (vKA, kb*8192 + i*1024)
                d = S + 16*kb
                mf = (d, Q + 4*i, NM if i == 0 else d)
            else:
                kk = (2 if ph == "B" else 0) + (i >> 2); db = i & 3
                rd = (vVA, (kk >> 1)*8192 + db*2048 + (kk & 1)*1024)
                d = O + 16*db
                mf = (d, P + 4*kk, d)
            L.append((rd, mf))
        return L
    def rd_line(rd, slot):
        return f"ds_read_b128 {v(F+4*slot,4)}, v{rd[0]} offset:{rd[1]}"

    def stream(phases, nxt_phase, pre, fills, extras, post, skip=None):
        items = []
        for ph in phases: items += [(ph, i, it) for i, it in enumerate(ph_items(ph))]
        tail_items = ph_items(nxt_phase)[:4] if nxt_phase else []
        allrd = [it[2][0] for it in items] + [t[0] for t in tail_items]
        n = len(items)
        fq = {}
        for ph in phases:
            st, lines = fills.get(ph, (0, []))
            slots = 8 - st
            per = [len(lines)//slots + (1 if k < len(lines) % slots else 0) for k in range(slots)]
            k = 0
            for i in range(st, 8):
                fq[(ph, i)] = lines[k:k+per[i-st]]; k += per[i-st]
        for idx, (ph, i, (rd, mf)) in enumerate(items):
            if i == 0:
                for l in pre.get(ph, []):
                    if callable(l): l()
                    else: A(l)
            if idx % 4 == 0:
                A("s_waitcnt lgkmcnt(0)")
            d, b_, c = mf
            lsk = None
            if skip and ph in skip:
                lsk = A.newlabel("msk")
                A(f"s_cmp_lt_i32 s{sNIT}, {skip[ph]}")
                A(f"s_cbranch_scc1 {lsk}")
            A(f"v_mfma_f32_32x32x16_bf16 {v(d,16)}, {v(F+4*(idx&7),4)}, {v(b_,4)}, {v(c,16)}")
            if lsk: A.label(lsk)
            if idx % 4 < 2:
                base = (idx & ~3) + 4 + (idx % 4)*2
                for j in (base, base+1):
                    if j < len(allrd): A(rd_line(allrd[j], j & 7))
            for l in extras.get(ph, {}).get(i, []): A(l)
            for l in fq.get((ph, i), []): A(l)
            if i == 7 and ph in post: post[ph]()

    def split_fill(L, n1, n2):
        k = (len(L) * n1) // (n1 + n2)
        return L[:k], L[k:]

    SM1_A, SM1_D = None, None
    def sm1_parts(first, last):
        L = []
        if first:
            L += [f"v_sub_f32 v{NM+r}, 0, v{T+2}" for r in range(16)]
            L += [f"v_sub_f32 v{S+16+r}, v{S+16+r}, v{T+2}" for r in range(16)]
        if last: L += mask_ops(1)
        pre = len(L)
        sm = sm_ops(1)
        k = 18
        return L + sm[:k], sm[k:]

    def iteration(first, last):
        dm = {}
        slV, dm["V"] = kv_issue(True, defer=True)
        slK, dm["K"] = kv_issue(False, defer=True) if not last else ([], [])
        dm["preY"] = slV + [f"v_xor_b32 v{vVA}, 0x8000, v{vVA}"]
        dm["preX"] = slK + [f"v_xor_b32 v{vKA}, 0x8000, v{vKA}"]
        def barY():
            A("s_waitcnt vmcnt(4)")
            A("s_barrier")
        def barX():
            A("s_waitcnt vmcnt(4)")
            A("s_barrier")
            if first:
                l7 = A.newlabel("st3")
                A(f"s_cmp_lg_u32 s{sW}, 7")
                A(f"s_cbranch_scc1 {l7}")
                A(f"s_lshl_b32 s{sT}, s{sPASS}, 7")
                A(f"s_or_b32 s{sT}, s{sT}, s{sXCC}")
                A(f"s_or_b32 s{sT}, s{sT}, 0x60")
                A(f"v_mov_b32 v{T+5}, 0")
                state_store(sT, T+4, T+5)
                A.label(l7)
        sm0 = []
        if last: sm0 += mask_ops(0)
        if first:
            sm0 += max_ops(0, T+2)
            sm0 += [f"v_max_f32 v{T+2}, v{T+13}, v{T+2}"]
            sm0 += [f"v_sub_f32 v{S+r}, v{S+r}, v{T+2}" for r in range(16)]
        sm0 += sm_ops(0)
        d_part, _ = sm1_parts(first, last)
        _, a_part = sm1_parts(False, False)
        class Lazy(dict):
            pass
        def dma(kind, q):
            return lambda: (A(dm[kind][q]) if dm.get(kind) else None)
        phases = ["A", "C", "D"] if first else ["A", "B", "C", "D"]
        fills = {}
        if first:
            fills["C"] = (2, sm0)
        else:
            b_part, c_part = split_fill(sm0, 6, 8)
            fills["A"] = (0, a_part)
            fills["B"] = (2, b_part)
            fills["C"] = (0, c_part)
        fills["D"] = (2, d_part)
        pre = {"C": [barY], "D": [barX]}
        post = {"C": lambda: check(0, last, 0)}
        if not first:
            post["A"] = lambda: check(1, False, 1)
        return phases, pre, fills, post, dm

    def emit_iteration(first, last, doskip=True):
        phases, pre, fills, post, dm = iteration(first, last)
        class Ex(dict):
            def get(self, ph, default=None):
                ex = {}
                if ph == "C": ex = {1: [dm["V"][0]], 2: [dm["V"][1]], 3: [dm["V"][2]], 4: [dm["V"][3]]}
                if ph == "D" and dm.get("K"): ex = {1: [dm["K"][0]], 3: [dm["K"][1]], 5: [dm["K"][2]], 7: [dm["K"][3]]}
                if ph == ("A" if first else "B"):
                    ex.setdefault(6, []); ex[6] = ex[6] + dm["preY"]
                if ph == "C":
                    ex.setdefault(6, []); ex[6] = ex[6] + dm["preX"]
                return ex
        stream(phases, "B" if last else "A", pre, fills, Ex(), post, skip=({"A": 1, "C": 2, "D": 1} if last and DIAGSKIP and doskip else None))
        if last:
            _, a_part = sm1_parts(False, False)
            for l in a_part: A(l)
            check(1, True, 0)
            A("s_nop 0")
            stream(["B"], None, {}, {}, {}, {}, skip=({"B": 2} if DIAGSKIP and doskip else None))

    blk_top = A.newlabel("blk_top")
    A.label(blk_top)
    def astamp(k):
        if not (gen.STAMPS and ATT): return
        l = A.newlabel("ast")
        A(f"s_cmp_lg_u32 s{sPASS}, 0")
        A(f"s_cbranch_scc1 {l}")
        A(f"s_memtime s[{80+2*k}:{81+2*k}]")
        A.label(l)
    astamp(0)
    for r in range(0, 64, 2): A(f"v_mov_b64 {v(O+r,2)}, 0")
    for r in range(0, 16, 2): A(f"v_mov_b64 {v(NM+r,2)}, 0")
    A(f"""
    v_mov_b32 v{vL}, 0
    v_mov_b32 v{T+13}, {f32hex(MFLOOR)}
    v_mov_b32 v{T+14}, {f32hex(BIGL)}
    v_mov_b32 v{T+15}, {f32hex(NEGBIG)}
    s_mov_b32 s{sIT}, 0
    """)
    for i in range(4): A(rd_line(ph_items("A")[i][0], i))
    l_only = A.newlabel("only"); l_mid = A.newlabel("mid"); l_last = A.newlabel("last"); l_merge = A.newlabel("merge")
    A(f"s_cmp_eq_u32 s{sBLK}, 0")
    A(f"s_cbranch_scc1 {l_only}")
    astamp(1)
    emit_iteration(True, False)
    astamp(2)
    A(f"s_mov_b32 s{sIT}, 1")
    A(f"s_cmp_ge_u32 s{sIT}, s{sBLK}")
    A(f"s_cbranch_scc1 {l_last}")
    if ALIGN: A.lines.append(".p2align 6")
    A.label(l_mid)
    emit_iteration(False, False)
    A(f"s_add_u32 s{sIT}, s{sIT}, 1")
    A(f"s_cmp_lt_u32 s{sIT}, s{sBLK}")
    A(f"s_cbranch_scc1 {l_mid}")
    A.label(l_last)
    astamp(3)
    if LAST2:
        l_full = A.newlabel("lastfull")
        A(f"s_cmp_ge_i32 s{sNIT}, 2")
        A(f"s_cbranch_scc1 {l_full}")
    emit_iteration(False, True)
    A(f"s_branch {l_merge}")
    if LAST2:
        A.label(l_full)
        emit_iteration(False, True, doskip=False)
        A(f"s_branch {l_merge}")
    A.label(l_only)
    emit_iteration(True, True)
    A.label(l_merge)
    astamp(4)
    A(f"""
    v_mov_b32 v{T}, v{vL}
    s_nop 1
    v_permlane32_swap_b32 v{vL}, v{T}
    s_nop 1
    v_add_f32 v{vL}, v{vL}, v{T}
    s_barrier
    s_and_b32 s{sT}, s{sM0K}, 32768
    s_xor_b32 s{sT+1}, s{sM0V}, 32768
    s_and_b32 s{sT+1}, s{sT+1}, {65536+32768}
    s_xor_b32 s{sT+1}, s{sT+1}, 32768
    s_cmp_eq_u32 s{sG}, 0
    s_cselect_b32 s{sT+2}, s{sT}, s{sT+1}
    s_cselect_b32 s{sT+3}, s{sT+1}, s{sT}
    s_lshl_b32 s{sT}, s{sWR}, 13
    s_add_u32 s{sT+2}, s{sT+2}, s{sT}
    s_add_u32 s{sT+3}, s{sT+3}, s{sT}
    v_add_u32 v{T+2}, s{sT+2}, v{vL16}
    v_add_u32 v{T+3}, s{sT+3}, v{vL16}
    v_lshlrev_b32 v{T+4}, 3, v0                  ; lane*8
    s_lshl_b32 s{sT}, s{sG}, 2
    s_add_u32 s{sT}, s{sT}, s{sWR}
    s_lshl_b32 s{sT}, s{sT}, 9
    s_add_u32 s{sT}, s{sT}, 131072
    v_add_u32 v{T+5}, s{sT}, v{T+4}
    s_xor_b32 s{sT}, s{sT}, 2048
    v_add_u32 v{T+4}, s{sT}, v{T+4}
    v_mov_b32 v{T+6}, v{NM}
    v_mov_b32 v{T+7}, v{vL}
    ds_write_b64 v{T+5}, {v(T+6,2)}
    """)
    lg1 = A.newlabel("mg1"); lgd = A.newlabel("mgd")
    A(f"s_cmp_eq_u32 s{sG}, 0")
    A(f"s_cbranch_scc0 {lg1}")
    for gsel in range(2):
        if gsel == 1: A.label(lg1)
        give = O + (32 if gsel == 0 else 0)
        keep = O + (0 if gsel == 0 else 32)
        for i in range(8):
            A(f"ds_write_b128 v{T+2}, {v(give+4*i,4)} offset:{i*1024}")
        A("s_waitcnt lgkmcnt(0)")
        A("s_barrier")
        A(f"ds_read_b64 {v(T+8,2)}, v{T+4}")
        for i in range(8):
            A(f"ds_read_b128 {v(give+4*i,4)}, v{T+3} offset:{i*1024}")
        A(f"""
        s_waitcnt lgkmcnt(8)
        v_min_f32 v{T+10}, v{NM}, v{T+8}          ; -M
        v_sub_f32 v{T+11}, v{T+10}, v{NM}         ; m_self - M
        v_sub_f32 v{T+12}, v{T+10}, v{T+8}        ; m_part - M
        v_exp_f32 v{T+11}, v{T+11}
        v_exp_f32 v{T+12}, v{T+12}
        s_nop 0
        v_mul_f32 v{T+10}, v{vL}, v{T+11}
        v_fmac_f32 v{T+10}, v{T+9}, v{T+12}       ; l_total
        v_rcp_f32 v{T+10}, v{T+10}
        s_nop 0
        v_mul_f32 v{T+11}, v{T+11}, v{T+10}
        v_mul_f32 v{T+12}, v{T+12}, v{T+10}
        s_waitcnt lgkmcnt(0)
        """)
        for r in range(0, 32, 2):
            A(f"v_pk_mul_f32 {v(keep+r,2)}, {v(keep+r,2)}, {v(T+10,2)} op_sel:[0,1] op_sel_hi:[1,1]")
            A(f"v_pk_fma_f32 {v(keep+r,2)}, {v(give+r,2)}, {v(T+12,2)}, {v(keep+r,2)} op_sel_hi:[1,0,1]")
        for i in range(16):
            A(f"v_cvt_pk_bf16_f32 v{S+i}, v{keep+2*i}, v{keep+2*i+1}")
        if gsel == 0: A(f"s_branch {lgd}")
    A.label(lgd)
    A("s_barrier")
    lnk = A.newlabel("nokv")
    A(f"s_cmp_eq_u32 s{sPASS}, 1")
    A(f"s_cbranch_scc1 {lnk}")
    kv_issue(False)
    lnk2 = A.newlabel("nokv2")
    A(f"s_branch {lnk2}")
    A.label(lnk)
    A(f"v_lshlrev_b32 v246, 2, v0")
    A(f"buffer_load_dword v247, v246, s[{S_DBG}:{S_DBG+3}], 0 offen sc1")
    A.label(lnk2)
    sCO = 58
    def ctx_off(d):
        A(f"""
        s_lshl_b32 s{d}, s{sBLK}, 2
        s_add_u32 s{d}, s{d}, s{sWR}
        s_lshl_b32 s{d}, s{d}, 18
        s_lshl_b32 s{sT+1}, s{sH}, 13
        s_add_u32 s{d}, s{d}, s{sT+1}
        s_lshl_b32 s{sT+1}, s{sG}, 12
        s_add_u32 s{d}, s{d}, s{sT+1}
        """)
    def ctx_stores(d):
        for i in range(4):
            A(f"buffer_store_dwordx4 {v(S+4*i,4)}, v{vL16}, s[{S_CTX}:{S_CTX+3}], s{d} offen offset:{i*1024} sc0 sc1")
    fin = A.newlabel("k2_fin")
    A(f"s_cmp_eq_u32 s{sPASS}, 1")
    A(f"s_cbranch_scc1 {fin}")
    ctx_off(sT)
    ctx_stores(sT)
    astamp(5)
    if ATT: A(f"s_mov_b32 s92, s{sBLK}")
    A(f"s_mov_b32 s{sPASS}, 1")
    A(f"s_mov_b32 s{sBLK}, s{sI}")
    for r in range(0, 32, 2): A(f"v_mov_b64 {v(Q+r,2)}, {v(Q2+r,2)}")
    A(f"s_branch {blk_top}")
    for rr in rescues:
        emit_rescue(*rr)
    A.label(fin)
    ctx_off(sCO)
    if not SLOWST: stamp(A, 6)
    if P4ST and gen.STAMPS: A("s_memtime s[80:81]")
    S_X4, S_OUT, S_WF, S_SY = 8, 12, 16, 20
    sRT, sCT, sQR, sQC, sKG = 43, 44, 45, 46, 47
    sAO, sBO, sAS, sBS, sM4, sST = 48, 49, 50, 51, 52, 53
    NB, NS_F, NS = 5, 14, 46
    vRX, vRW = 4, 5
    A(f"""
    s_load_dwordx2 s[54:55], s[0:1], {KA_X}
    s_load_dwordx2 s[56:57], s[0:1], {KA_OUT}
    v_lshlrev_b32 v{vSA}, 2, v0
    s_and_b32 s{sCT}, s{sH}, 7
    s_lshr_b32 s{sT}, s{sH}, 3
    s_cmp_lt_u32 s{sT}, 2
    s_cselect_b32 s{sRT}, s{sI}, s{sB0}
    s_lshl_b32 s{sRT}, s{sRT}, 1
    s_and_b32 s{sT}, s{sT}, 1
    s_add_u32 s{sRT}, s{sRT}, s{sT}
    s_and_b32 s{sQR}, s{sW}, 1
    s_lshr_b32 s{sQC}, s{sW}, 1
    s_and_b32 s{sQC}, s{sQC}, 1
    s_lshr_b32 s{sKG}, s{sW}, 2
    s_lshl_b32 s{sT}, s{sRT}, 1
    s_add_u32 s{sT}, s{sT}, s{sKG}
    s_and_b32 s{sT+1}, s{sW}, 3
    s_lshl_b32 s{sT+1}, s{sT+1}, 11
    s_lshl_b32 s{sAS}, s{sT}, 18
    s_add_u32 s{sAS}, s{sAS}, s{sT+1}
    s_mul_i32 s{sAO}, s{sT}, {112*1024}
    s_add_u32 s{sAO}, s{sAO}, s{sT+1}
    s_lshl_b32 s{sBS}, s{sW}, 14
    s_lshl_b32 s{sT}, s{sCT}, 11
    s_add_u32 s{sBS}, s{sBS}, s{sT}
    s_add_u32 s{sBO}, s{sBS}, {256*16384}
    s_lshl_b32 s{sM4}, s{sW}, 11
    s_lshl_b32 s{sT}, s{sQR}, 13
    s_lshl_b32 s{sT+1}, s{sKG}, 10
    s_add_u32 s{sT}, s{sT}, s{sT+1}
    v_add_u32 v{vRX}, s{sT}, v{vL16}
    s_lshl_b32 s{sT}, s{sKG}, 11
    s_lshl_b32 s{sT+1}, s{sQC}, 10
    s_add_u32 s{sT}, s{sT}, s{sT+1}
    s_add_u32 s{sT}, s{sT}, 16384
    v_add_u32 v{vRW}, s{sT}, v{vL16}
    """)
    srd(A, S_WF, 4, 5, 5888*1024, WS_WF)
    srd(A, S_SY, 4, 5, 256*128, WS_SYNC)
    RX = [vRX, 10, 11]; RW = [vRW, 12, 13]
    for i in (1, 2):
        A(f"v_add_u32 v{RX[i]}, {65536*i}, v{vRX}")
        A(f"v_add_u32 v{RW[i]}, {65536*i}, v{vRW}")
    AS_, AF_ = 64, 80
    for r in range(0, 32, 2): A(f"v_mov_b64 {v(AS_+r,2)}, 0")
    A("s_waitcnt vmcnt(0) lgkmcnt(0)")
    A(f"v_mov_b32 v{vST}, v247")
    srd(A, S_X4, 54, 55, 2048*1024)
    srd(A, S_OUT, 56, 57, 2048*1024)
    if P4ST and gen.STAMPS: A("s_memtime s[82:83]")
    state_wait(2)
    if EARLY4:
        le = A.newlabel("p4_late")
        A(f"s_cmp_lt_u32 s{sH}, 16")
        A(f"s_cbranch_scc1 {le}")
        state_wait(3)
        A.label(le)
    def emit(lines):
        for l in lines:
            if l.endswith(":"): A.label(l[:-1])
            else: A(l)
    def p4pieces(buf, isf):
        b = buf * 32768
        SA = S_H if isf else S_CTX
        return [
          [f"s_add_u32 m0, s{sM4}, {b}", "s_nop 0",
           f"buffer_load_dwordx4 v{vL16}, s[{SA}:{SA+3}], s{sAO} offen lds"],
          [f"buffer_load_dwordx4 v{vL16}, s[{SA}:{SA+3}], s{sAO} offen offset:1024 lds"],
          [f"s_add_u32 m0, s{sM4}, {b + 16384}", f"s_add_u32 s{sAO}, s{sAO}, 8192",
           f"buffer_load_dwordx4 v{vL16}, s[{S_WF}:{S_WF+3}], s{sBO} offen lds"],
          [f"buffer_load_dwordx4 v{vL16}, s[{S_WF}:{S_WF+3}], s{sBO} offen offset:1024 lds",
           f"s_add_u32 s{sBO}, s{sBO}, {128*1024}"]]
    for st in range(NB - 1):
        for p in p4pieces(st, True): emit(p)
    ctx_stores(sCO)
    A(f"""
    v_and_b32 v98, 31, v0
    v_lshlrev_b32 v98, 10, v98
    v_lshrrev_b32 v99, 5, v0
    v_lshlrev_b32 v99, 3, v99
    v_add_u32 v98, v98, v99
    s_lshl_b32 s{sCO}, s{sRT}, 16
    s_lshl_b32 s{sT+1}, s{sQR}, 15
    s_add_u32 s{sCO}, s{sCO}, s{sT+1}
    s_lshl_b32 s{sT+1}, s{sCT}, 7
    s_add_u32 s{sCO}, s{sCO}, s{sT+1}
    s_lshl_b32 s{sT+1}, s{sQC}, 6
    s_add_u32 s{sCO}, s{sCO}, s{sT+1}
    s_lshl_b32 s{sT+1}, s{sKG}, 5
    s_add_u32 s{sCO}, s{sCO}, s{sT+1}
    buffer_load_dwordx2 v[100:101], v98, s[{S_X4}:{S_X4+3}], s{sCO} offen
    buffer_load_dwordx2 v[102:103], v98, s[{S_X4}:{S_X4+3}], s{sCO} offen offset:16
    """)
    FR4 = 16
    def p4reads(buf, j):
        b = (buf & 1) * 32768
        fr = FR4 + j * 8
        return [f"ds_read_b128 {v(fr,4)}, v{RW[buf>>1]} offset:{b + j*4096}",
                f"ds_read_b128 {v(fr+4,4)}, v{RX[buf>>1]} offset:{b + j*2048}"]
    A(f"s_waitcnt vmcnt({4*(NB-3) + 6})")
    A("s_barrier")
    if P4ST and gen.STAMPS: A("s_memtime s[84:85]")
    for j in range(2): emit(p4reads(0, j))
    def p4stage(st, buf, wait, issue, has_next, acc):
        if st == NS_F - (NB - 1):
            lok = A.newlabel("p4_ok"); lsp = A.newlabel("p4_spin")
            if P4ST and gen.STAMPS: A("s_memtime s[86:87]")
            A(f"""
            s_mov_b32 s{sAO}, s{sAS}
            s_mov_b32 s{sBO}, s{sBS}
            s_cmp_lg_u32 s{sW}, 0
            s_cbranch_scc1 {lok}
            s_cmp_ge_u32 s{sH}, {16 if EARLY4 else 64}
            s_cbranch_scc1 {lok}
            v_lshlrev_b32 v9, 7, v0
            s_lshl_b32 s{sT}, s{sI}, 12
            s_mov_b32 s{sT+7}, 0
            """)
            A.label(lsp)
            A(f"""
            s_mov_b64 exec, 0xffffffff
            buffer_load_dword v8, v9, s[{S_SY}:{S_SY+3}], s{sT} offen sc1
            s_waitcnt vmcnt(0)
            v_cmp_eq_u32 vcc, 1, v8
            s_mov_b64 exec, -1
            s_cmp_eq_u32 vcc_lo, -1
            s_cbranch_scc1 {lok}
            s_add_u32 s{sT+7}, s{sT+7}, 1
            s_cmp_ge_u32 s{sT+7}, {SPIN_MAX}
            s_cbranch_scc1 {lok}
            s_sleep 4
            s_branch {lsp}
            """)
            A.label(lok)
        if wait is not None:
            A(f"s_waitcnt vmcnt({wait})")
            A("s_barrier")
        if st == 3:
            l0 = A.newlabel("p4_nd")
            A(f"""
            s_cmp_lg_u32 s{sW}, 0
            s_cbranch_scc1 {l0}
            v_mov_b32 v8, 1
            v_mov_b32 v9, 0
            s_lshl_b32 s{sT}, s2, 7
            s_mov_b64 exec, 1
            buffer_store_dword v8, v9, s[{S_SY}:{S_SY+3}], s{sT} offen sc0 sc1
            s_mov_b64 exec, -1
            """)
            A.label(l0)
        pcs = p4pieces((buf + NB - 1) % NB, issue == "f") if issue else []
        for j in range(4):
            if j < 2: emit(p4reads(buf, j + 2)); A("s_waitcnt lgkmcnt(4)")
            elif has_next: emit(p4reads((buf + 1) % NB, j - 2)); A("s_waitcnt lgkmcnt(4)")
            else: A(f"s_waitcnt lgkmcnt({2*(3-j)})")
            fr = FR4 + j * 8
            mfma(A, acc, fr, fr + 4, acc)
            if pcs: emit(pcs.pop(0))
    W4 = 4*(NB-3)
    for st in range(NS_F):
        p4stage(st, st % NB, None if st == 0 else (W4 + 6 if st < 3 else W4), "f" if st + NB - 1 < NS_F else "s", True, AF_)
    if P4ST and gen.STAMPS: A("s_memtime s[88:89]")
    A(f"s_mov_b32 s{sST}, 0")
    l1 = A.newlabel("p4_loop")
    if ALIGN: A.lines.append(".p2align 6")
    A.label(l1)
    for k in range(5): p4stage(-1, (NS_F + k) % NB, W4, "s", True, AS_)
    A(f"s_add_u32 s{sST}, s{sST}, 1")
    A(f"s_cmp_lt_u32 s{sST}, 5")
    A(f"s_cbranch_scc1 {l1}")
    for st in range(NS_F + 25, NS):
        rem = min(NB - 3, NS - 1 - (st + 1))
        p4stage(-1, st % NB, (4*rem if st < NS - 1 else None), "s" if st + NB - 1 < NS else None, st < NS - 1, AS_)
    if P4ST and gen.STAMPS: A("s_memtime s[90:91]")
    A(f"""
    s_nop 7
    s_nop 7
    s_barrier
    s_lshl_b32 s{sT}, s{sW}, 12
    v_add_u32 v6, s{sT}, v{vL16}
    s_xor_b32 s{sT}, s{sT}, 16384
    v_add_u32 v7, s{sT}, v{vL16}
    """)
    lk1 = A.newlabel("p4g1"); lkd = A.newlabel("p4gd")
    A(f"s_cmp_eq_u32 s{sKG}, 0")
    A(f"s_cbranch_scc0 {lk1}")
    for kg in range(2):
        if kg == 1: A.label(lk1)
        keep = 8*kg; give = 8 - keep
        A(f"ds_write_b128 v6, {v(AS_+give,4)}")
        A(f"ds_write_b128 v6, {v(AS_+give+4,4)} offset:1024")
        A(f"ds_write_b128 v6, {v(AF_+give,4)} offset:2048")
        A(f"ds_write_b128 v6, {v(AF_+give+4,4)} offset:3072")
        A("s_waitcnt lgkmcnt(0)")
        A("s_barrier")
        for i in range(4):
            A(f"ds_read_b128 {v(16+4*i,4)}, v7 offset:{i*1024}")
        A("s_waitcnt lgkmcnt(0)")
        for r in range(8):
            A(f"v_add_f32 v{32+r}, v{AS_+keep+r}, v{16+r}")
            A(f"v_add_f32 v{40+r}, v{AF_+keep+r}, v{24+r}")
        if kg == 0: A(f"s_branch {lkd}")
    A.label(lkd)
    A(f"s_mov_b32 s{sT+2}, {f32hex(-LOG2E)}")
    for r in range(8):
        round_bf16(A, 32+r)
        round_bf16(A, 40+r)
        A(f"v_mul_f32 v{48+r}, s{sT+2}, v{40+r}")
        A(f"v_exp_f32 v{48+r}, v{48+r}")
    for r in range(8):
        A(f"v_add_f32 v{48+r}, 1.0, v{48+r}")
        A(f"v_rcp_f32 v{48+r}, v{48+r}")
    for r in range(8):
        A(f"v_mul_f32 v{40+r}, v{40+r}, v{48+r}")
        round_bf16(A, 40+r)
        A(f"v_mul_f32 v{32+r}, v{32+r}, v{40+r}")
        round_bf16(A, 32+r)
    A("s_waitcnt vmcnt(0)")
    for i in range(4):
        A(f"v_lshlrev_b32 v{48}, 16, v{100+i}")
        A(f"v_and_b32 v{49}, 0xffff0000, v{100+i}")
        A(f"v_add_f32 v{32+2*i}, v{32+2*i}, v48")
        A(f"v_add_f32 v{33+2*i}, v{33+2*i}, v49")
        A(f"v_cvt_pk_bf16_f32 v{52+i}, v{32+2*i}, v{33+2*i}")
    A(f"buffer_store_dwordx2 v[52:53], v98, s[{S_OUT}:{S_OUT+3}], s{sCO} offen")
    A(f"buffer_store_dwordx2 v[54:55], v98, s[{S_OUT}:{S_OUT+3}], s{sCO} offen offset:16")
    if gen.STAMPS:
        A("s_waitcnt vmcnt(0)")
        if not SLOWST: stamp(A, 7)
        stamp(A, 9, True)
        if P4ST: A("s_memtime s[92:93]"); A("s_memtime s[94:95]")
        stamp_flush(A, 10, 4, 5, sW, 0)
    A.label(done)
    A("s_endpgm")
    A.end_kernel(name, 248, 102)
    A.add_launch(name, 256, 512, 163840)
```
